```python
import torch

def _softmax(x, axis=-1):
    return torch.softmax(x, dim=axis)
def _gelu(x):
    return torch.nn.functional.gelu(x, approximate="tanh")
def _silu(x):
    return torch.nn.functional.silu(x)
def _sigmoid(x):
    return torch.sigmoid(x)
def _layernorm(x, axis=-1, eps=1e-5):
    m = x.mean(dim=axis, keepdim=True)
    v = x.var(dim=axis, keepdim=True, unbiased=False)
    return (x - m) / torch.sqrt(v + eps)
def _scatter_add(tgt, idx, src, axis=0):
    return tgt.clone().index_add_(axis, idx, src)
def _segment_sum(src, seg, n):
    out = torch.zeros((n,) + src.shape[1:], dtype=src.dtype)
    return out.index_add_(0, seg, src)
def _pad(x, pw):
    flat = tuple(v for pair in reversed(pw) for v in pair)
    return torch.nn.functional.pad(x, flat)

kernel_name = 'gated_mix__sliding_local_dilated__softmax_full_mha__prompt'

def setup_inputs():

    _w = (lambda a: (lambda t: t.to(torch.bfloat16) if t.is_floating_point() else t)(torch.as_tensor(a)))
    def _A_setup():
        B, S, D = 1, 2048, 576
        return {
            "x": _w((lambda *s: torch.randn(*s, dtype=torch.bfloat16) * 0.05)(B, S, D)),
            "wqkv": _w((lambda *s: torch.randn(*s, dtype=torch.bfloat16) * 3.2)(D, 3 * D)),
            "wo": _w((lambda *s: torch.randn(*s, dtype=torch.bfloat16) * 0.1)(D, D)),
        }
    _A_in = _A_setup()

    def _B_setup():
        B, S, D = 1, 2048, 576
        return {
            "x": _w((lambda *s: torch.randn(*s, dtype=torch.bfloat16) * 0.05)(B, S, D)),
            "wqkv": _w((lambda *s: torch.randn(*s, dtype=torch.bfloat16) * 1.6)(D, 3 * D)),
            "wo": _w((lambda *s: torch.randn(*s, dtype=torch.bfloat16) * 0.2)(D, D)),
        }
    _B_in = _B_setup()

    return {
        "A_x": _A_in["x"],
        "A_wqkv": _A_in["wqkv"],
        "A_wo": _A_in["wo"],
        "B_x": _B_in["x"],
        "B_wqkv": _B_in["wqkv"],
        "B_wo": _B_in["wo"],
        "gate_w": _w((lambda *s: torch.randn(*s, dtype=torch.bfloat16) * 0.05)(576) * 16.0),
    }

def reference(A_x, A_wqkv, A_wo, B_x, B_wqkv, B_wo, gate_w):
    def _A_ref(x, wqkv, wo):
        B, S, D = x.shape
        H = 32; Dh = D // H
        W, dil = 8, 2
        qkv = (lambda x, *d: x.permute(*d))((x @ wqkv).reshape(B, S, 3, H, Dh), 2, 0, 3, 1, 4)
        q, k, v = qkv[0], qkv[1], qkv[2]
        scale = Dh ** -0.5
        pos = torch.arange(S)
        off = torch.arange(W) * dil
        idx = pos[:, None] - off[None, :]
        mask = idx >= 0
        idx_c = torch.where(mask, idx, 0).reshape(-1)
        kg = k[:, :, idx_c, :].reshape(B, H, S, W, Dh)
        vg = v[:, :, idx_c, :].reshape(B, H, S, W, Dh)
        logits = torch.einsum("bhsd,bhswd->bhsw", q, kg) * scale
        logits = torch.where(mask[None, None, :, :], logits, -1e9)
        attn = _softmax(logits, axis=-1)
        o = torch.einsum("bhsw,bhswd->bhsd", attn, vg)
        return (lambda x, *d: x.permute(*d))(o, 0, 2, 1, 3).reshape(B, S, D) @ wo

    def _B_ref(x, wqkv, wo):
        B, S, D = x.shape
        H = 32; Dh = D // H
        qkv = (lambda x, *d: x.permute(*d))((x @ wqkv).reshape(B, S, 3, H, Dh), 2, 0, 3, 1, 4)
        q, k, v = qkv[0], qkv[1], qkv[2]
        scale = Dh ** -0.5
        scores = torch.einsum("bhqd,bhkd->bhqk", q, k) * scale
        p = _softmax(scores, axis=-1)
        o = torch.einsum("bhqk,bhkd->bhqd", p, v)
        return (lambda x, *d: x.permute(*d))(o, 0, 2, 1, 3).reshape(B, S, D) @ wo

    x = A_x
    g = _sigmoid((x * gate_w).sum(-1, keepdims=True))
    a = _A_ref(x, A_wqkv, A_wo)
    b = _B_ref(x, B_wqkv, B_wo)
    return g * a + (1 - g) * b
```

```python
class Asm:
    def __init__(self):
        self.lines=[]
    def __call__(self, s=""):
        for l in s.split("\n"):
            self.lines.append(l)
    def i(self, s):
        self.lines.append("  "+s)
    def label(self, s):
        self.lines.append(s+":")
    def text(self):
        return "\n".join(self.lines)+"\n"

def vr(a,n=1):
    return f"v{a}" if n==1 else f"v[{a}:{a+n-1}]"
def sr(a,n=1):
    return f"s{a}" if n==1 else f"s[{a}:{a+n-1}]"

def kernel_header(A,name):
    A(f".globl {name}")
    A(".p2align 8")
    A(f".type {name},@function")
    A.label(name)

def kernel_footer(A,name,nvgpr,nsgpr=102,accum=None):
    if accum is None: accum=(nvgpr+3)//4*4
    A('.section .rodata,"a"')
    A(".p2align 6")
    A(f".amdhsa_kernel {name}")
    A(f"  .amdhsa_next_free_vgpr {nvgpr}")
    A(f"  .amdhsa_next_free_sgpr {nsgpr}")
    A(f"  .amdhsa_accum_offset {accum}")
    A("  .amdhsa_group_segment_fixed_size 0")
    A("  .amdhsa_kernarg_size 80")
    A("  .amdhsa_user_sgpr_count 2")
    A("  .amdhsa_user_sgpr_kernarg_segment_ptr 1")
    A("  .amdhsa_system_sgpr_workgroup_id_x 1")
    A("  .amdhsa_float_denorm_mode_32 3")
    A(".end_amdhsa_kernel")
    A(".text")

KA_X=0; KA_AWQKV=8; KA_AWO=16; KA_BX=24; KA_BWQKV=32; KA_BWO=40; KA_GW=48; KA_OUT=56; KA_DBG=64; KA_WS=72

TILE_B=2368
KV_HEAD=64*TILE_B
OFF_V=1024; OFF_KR=2240
QT_B=1152
WS_KVB=0
WS_QB=0x500000
WS_KVA=0x800000
WS_QA=0xD00000
WS_OB=0x1000000
WS_OA=0x1300000
WS_G=0x1600000
WS_PROF=0x1800000
```

```python
from asmlib import *
from k2 import stamp, stamp_store
import struct
C_SCALE=18**-0.5*1.4426950408889634
def f32bits(x): return struct.unpack('<I',struct.pack('<f',x))[0]

V_LANE=1; XA=2; WA=6; DXE=8; DXO=9; DW=10; T0=11; T1=12; T2=13; T3=14; T4=15
XF=16
WF=32
EA=48
ACC=64
NV=128
STAGE=49152; WOFF=32768
NPRE=0

def csel(A,d,a,b):
    A.i(f"s_mov_b32 s{d}, {b}")
    A.i(f"s_cselect_b32 s{d}, {a}, s{d}")

def mfma(A,d,a,b,first=False):
    c = "0" if first else vr(d,16)
    A.i(f"v_mfma_f32_32x32x16_bf16 {vr(d,16)}, {vr(a,4)}, {vr(b,4)}, {c}")

def dma_list(c):
    sb=(c%3)*STAGE
    L=[]
    for i in range(2):
        L.append([f"s_add_u32 s30, s23, {(c*64+4*i)*3456}",f"s_add_u32 m0, s25, {sb+i*1024}","s_nop 0",
                  f"buffer_load_dwordx4 v{DW}, s[12:15], s30 offen lds"])
    for i in range(4):
        L.append([f"s_add_u32 s30, s22, {8*i*1152+c*128}",f"s_add_u32 m0, s24, {sb+i*1024}","s_nop 0",
                  f"buffer_load_dwordx4 v{DXO if i&1 else DXE}, s[8:11], s30 offen lds"])
    return L
def dma_chunk(A,c):
    for g in dma_list(c):
        for l in g: A.i(l)

def reads(ks,buf):
    r=[]
    for tt in range(2):
        r.append(f"ds_read_b128 {vr(XF+buf*8+tt*4,4)}, v{XA+ks} offset:{tt*4096}")
    for ct in range(2):
        for u in range(2):
            r.append(f"ds_read_b64_tr_b16 {vr(WF+buf*8+ct*4+2*u,2)}, v{WA+ct} offset:{ks*4096+u*1024}")
    return r

def mainloop(A,vtype,prof):
    for l in reads(0,0): A.i(l)
    step=0
    pend=dma_list(1)[NPRE:]+dma_list(2)
    for c in range(9):
        for ks in range(4):
            buf=step&1
            last = (c==8 and ks==3)
            A.i("s_waitcnt lgkmcnt(0)")
            if ks==3 and c<8:
                assert not pend
                A.i(f"s_waitcnt vmcnt({6 if c<7 else 0})")
                A.i("s_barrier")
                if c+3<9: pend=dma_list(c+3)
                d = STAGE if (c+1)%3!=0 else -2*STAGE
                for r in list(range(XA,XA+4))+[WA,WA+1]:
                    if d>0: A.i(f"v_add_u32 v{r}, {d}, v{r}")
                    else: A.i(f"v_subrev_u32 v{r}, {-d}, v{r}")
            rd = [] if last else reads((ks+1)%4,buf^1)
            k=0
            for tt in range(2):
                for ct in range(2):
                    d=ACC+(tt*2+ct)*16
                    xf=XF+buf*8+tt*4; wf=WF+buf*8+ct*4
                    if vtype: mfma(A,d,xf,wf,step==0)
                    else: mfma(A,d,wf,xf,step==0)
                    for l in rd[k:k+2]: A.i(l)
                    k+=2
                    if pend and ((tt*2+ct) in (1,3) or c==0):
                        for l in pend.pop(0): A.i(l)
            step+=1

def gen_k1(A,name="k1_qkv_kernel",prof=False):
    kernel_header(A,name)
    A.i("s_cmp_ge_u32 s2, 256")
    A.i(f"s_cbranch_scc1 {name}_end")
    A.i(f"s_load_dwordx2 s[20:21], s[0:1], {KA_WS}")
    A.i(f"s_load_dwordx2 s[8:9], s[0:1], {KA_X}")
    if prof: A.i("s_memrealtime s[58:59]")
    stamp(A,0,prof)
    A.i(f"v_and_b32 v{V_LANE}, 63, v0")
    A.i(f"v_lshrrev_b32 v{T0}, 6, v0")
    A.i("s_nop 0")
    A.i(f"v_readfirstlane_b32 s5, v{T0}")
    A.i("s_cmp_ge_u32 s2, 224")
    A.i(f"s_cbranch_scc1 {name}_gate")
    A.i(f"s_load_dwordx2 s[12:13], s[0:1], {KA_AWQKV}")
    A.i(f"s_load_dwordx2 s[14:15], s[0:1], {KA_BWQKV}")
    A.i("s_mov_b32 s70, s5")
    A.i("s_and_b32 s6, s2, 7")
    A.i("s_lshr_b32 s7, s2, 3")
    A.i("s_and_b32 s3, s6, 1")
    A.i("s_lshl_b32 s3, s3, 2")
    A.i("s_and_b32 s30, s7, 3")
    A.i("s_add_u32 s3, s3, s30")
    A.i("s_lshr_b32 s6, s6, 1")
    A.i("s_mul_i32 s6, s6, 7")
    A.i("s_lshr_b32 s7, s7, 2")
    A.i("s_add_u32 s4, s6, s7")
    A.i("s_cmp_ge_u32 s4, 14")
    A.i("s_cselect_b32 s26, 1, 0")
    A.i("s_mul_i32 s6, s26, 14")
    A.i("s_sub_u32 s4, s4, s6")
    A.i("s_cmp_ge_u32 s4, 9")
    A.i("s_cselect_b32 s27, 1, 0")
    A.i("s_and_b32 s28, s5, 3")
    A.i("s_lshr_b32 s29, s5, 2")
    A.i(f"v_lshrrev_b32 v{T0}, 3, v{V_LANE}")
    A.i(f"v_mul_u32_u24 v{T0}, 1152, v{T0}")
    A.i(f"v_and_b32 v{T1}, 7, v{V_LANE}")
    A.i(f"v_lshrrev_b32 v{T2}, 4, v{V_LANE}")
    A.i(f"v_xor_b32 v{T1}, v{T1}, v{T2}")
    A.i(f"v_lshl_add_u32 v{DXE}, v{T1}, 4, v{T0}")
    A.i(f"v_xor_b32 v{DXO}, 64, v{DXE}")
    A.i(f"v_mul_u32_u24 v{T0}, 3456, v{T2}")
    A.i(f"v_and_b32 v{T1}, 15, v{V_LANE}")
    A.i(f"v_lshlrev_b32 v{T2}, 2, v{T2}")
    A.i(f"v_xor_b32 v{T1}, v{T1}, v{T2}")
    A.i(f"v_lshl_add_u32 v{DW}, v{T1}, 4, v{T0}")
    A.i("s_lshl_b32 s6, s3, 8")
    A.i("s_lshl_b32 s7, s5, 5")
    A.i("s_add_u32 s6, s6, s7")
    A.i("s_mul_i32 s22, s6, 1152")
    A.i(f"s_mul_i32 s23, s5, {8*3456}")
    A.i("s_lshl_b32 s6, s4, 8")
    A.i("s_add_u32 s23, s23, s6")
    A.i("s_lshl_b32 s24, s5, 12")
    A.i("s_lshl_b32 s25, s5, 11")
    A.i(f"s_add_u32 s25, s25, {WOFF}")
    A.i("s_waitcnt lgkmcnt(0)")
    A.i("s_and_b32 s9, s9, 0xffff")
    A.i(f"s_mov_b32 s10, {2048*1152}")
    A.i("s_mov_b32 s11, 0x20000")
    A.i("s_cmp_eq_u32 s26, 1")
    A.i("s_cselect_b32 s12, s14, s12")
    A.i("s_cselect_b32 s13, s15, s13")
    A.i("s_and_b32 s13, s13, 0xffff")
    A.i(f"s_mov_b32 s14, {576*3456}")
    A.i("s_mov_b32 s15, 0x20000")
    stamp(A,4,prof)
    dma_chunk(A,0)
    for g in dma_list(1)[:NPRE]:
        for l in g: A.i(l)
    stamp(A,5,prof)
    A.i("s_mov_b32 s16, s20")
    A.i("s_and_b32 s17, s21, 0xffff")
    A.i("s_mov_b32 s18, 0x2000000")
    A.i("s_mov_b32 s19, 0x20000")
    A.i(f"v_and_b32 v{T0}, 31, v{V_LANE}")
    A.i(f"v_lshrrev_b32 v{T1}, 5, v{V_LANE}")
    A.i(f"v_bfe_u32 v{T2}, v{V_LANE}, 1, 3")
    A.i(f"v_xor_b32 v{T2}, v{T1}, v{T2}")
    A.i(f"v_lshlrev_b32 v{T2}, 4, v{T2}")
    A.i(f"v_lshl_add_u32 v{T2}, v{T0}, 7, v{T2}")
    A.i("s_lshl_b32 s6, s28, 13")
    A.i(f"v_add_u32 v{XA}, s6, v{T2}")
    for ks in range(1,4): A.i(f"v_xor_b32 v{XA+ks}, {ks<<5}, v{XA}")
    A.i(f"v_bfe_u32 v{T0}, v{V_LANE}, 2, 2")
    A.i(f"v_lshl_add_u32 v{T2}, v{T1}, 3, v{T0}")
    A.i(f"v_lshlrev_b32 v{T2}, 8, v{T2}")
    A.i("s_lshl_b32 s6, s29, 1")
    A.i(f"v_xor_b32 v{T0}, s6, v{T0}")
    A.i(f"v_lshl_add_u32 v{T2}, v{T0}, 6, v{T2}")
    A.i(f"v_bfe_u32 v{T0}, v{V_LANE}, 4, 1")
    A.i(f"v_and_b32 v{T1}, 3, v{V_LANE}")
    A.i(f"v_lshl_add_u32 v{T0}, v{T0}, 2, v{T1}")
    A.i(f"v_lshl_add_u32 v{T2}, v{T0}, 3, v{T2}")
    A.i(f"v_add_u32 v{WA}, {WOFF}, v{T2}")
    A.i(f"v_xor_b32 v{WA+1}, 64, v{WA}")
    A.i(f"s_waitcnt vmcnt({NPRE})")
    A.i("s_barrier")
    stamp(A,1,prof)
    A.i("s_cmp_eq_u32 s27, 1")
    A.i(f"s_cbranch_scc1 {name}_vtype")
    mainloop(A,False,prof)
    stamp(A,2,prof)
    A.i("s_lshl_b32 s6, s4, 7")
    A.i("s_lshl_b32 s7, s29, 6")
    A.i("s_add_u32 s6, s6, s7")
    A.i("s_cmp_ge_u32 s6, 576")
    A.i("s_cselect_b32 s7, 576, 0")
    A.i("s_sub_u32 s6, s6, s7")
    A.i("s_lshr_b32 s32, s6, 2")
    A.i("s_cmp_eq_u32 s7, 576")
    csel(A,33,WS_KVA,WS_QA)
    csel(A,38,WS_KVB,WS_QB)
    csel(A,34,KV_HEAD,64*QT_B)
    csel(A,35,TILE_B,QT_B)
    csel(A,36,OFF_KR,1024)
    A.i(f"s_cselect_b32 s37, 1.0, {f32bits(C_SCALE)}")
    A.i("s_cmp_eq_u32 s26, 1")
    A.i("s_cselect_b32 s33, s38, s33")
    A.i("s_lshl_b32 s6, s3, 3")
    A.i("s_lshl_b32 s7, s28, 1")
    A.i("s_add_u32 s6, s6, s7")
    A.i("s_mul_i32 s38, s6, s35")
    A.i("s_add_u32 s39, s38, s35")
    A.i(f"v_and_b32 v{T0}, 31, v{V_LANE}")
    A.i(f"v_lshrrev_b32 v{T1}, 5, v{V_LANE}")
    A.i(f"v_add_u32 v{T1}, s32, v{T1}")
    A.i("s_nop 7")
    for r in range(64): A.i(f"v_mul_f32 v{ACC+r}, s37, v{ACC+r}")
    for r in range(32): A.i(f"v_cvt_pk_bf16_f32 v{ACC+r}, v{ACC+2*r}, v{ACC+2*r+1}")
    G_=EA; P_=EA+1; R_=EA+2; ODD=EA+3; AM=EA+4; AR=EA+5
    for ct in range(2):
        for g in range(4):
            A.i(f"v_add_u32 v{G_}, {8*ct+2*g}, v{T1}")
            A.i(f"v_mul_u32_u24 v{P_}, 7282, v{G_}")
            A.i(f"v_lshrrev_b32 v{P_}, 16, v{P_}")
            A.i(f"v_mul_u32_u24 v{R_}, 9, v{P_}")
            A.i(f"v_sub_u32 v{R_}, v{G_}, v{R_}")
            A.i(f"v_cmp_lt_u32 vcc, 4, v{R_}")
            A.i(f"v_cndmask_b32 v{ODD}, 0, 1, vcc")
            A.i(f"v_lshl_add_u32 v{AM}, v{P_}, 1, v{ODD}")
            A.i(f"v_mul_u32_u24 v{ODD}, 5, v{ODD}")
            A.i(f"v_sub_u32 v{ODD}, v{R_}, v{ODD}")
            A.i(f"v_mul_u32_u24 v{AM}, s34, v{AM}")
            A.i(f"v_lshl_add_u32 v{AM}, v{T0}, 4, v{AM}")
            A.i(f"v_lshrrev_b32 v{AR}, 1, v{ODD}")
            A.i(f"v_lshl_add_u32 v{AM}, v{AR}, 9, v{AM}")
            A.i(f"v_and_b32 v{AR}, 1, v{ODD}")
            A.i(f"v_lshl_add_u32 v{AM}, v{AR}, 3, v{AM}")
            A.i(f"v_add_u32 v{AM}, s33, v{AM}")
            A.i(f"v_cmp_eq_u32 vcc, 4, v{R_}")
            A.i(f"v_mov_b32 v{AR}, 0x7fff0000")
            A.i(f"v_cndmask_b32 v{AM}, v{AM}, v{AR}, vcc")
            for tt in range(2):
                b=ACC+(tt*2+ct)*8+2*g
                A.i(f"buffer_store_dwordx2 {vr(b,2)}, v{AM}, s[16:19], s{38+tt} offen")
            lab=f"{name}_norem_{ct}_{g}"
            A.i(f"s_cbranch_vccz {lab}")
            A.i("s_and_saveexec_b64 s[30:31], vcc")
            A.i(f"v_lshlrev_b32 v{P_}, 1, v{P_}")
            A.i(f"v_mul_u32_u24 v{AR}, s34, v{P_}")
            A.i(f"v_lshl_add_u32 v{AR}, v{T0}, 2, v{AR}")
            A.i(f"v_add_u32 v{AR}, s33, v{AR}")
            A.i(f"v_add_u32 v{AR}, s36, v{AR}")
            A.i(f"v_add_u32 v{P_}, s34, v{AR}")
            for tt in range(2):
                b=ACC+(tt*2+ct)*8+2*g
                A.i(f"buffer_store_dword v{b}, v{AR}, s[16:19], s{38+tt} offen")
                A.i(f"buffer_store_dword v{b+1}, v{P_}, s[16:19], s{38+tt} offen")
            A.i("s_mov_b64 exec, s[30:31]")
            A.label(lab)
    if prof: A.i("s_waitcnt vmcnt(0)")
    stamp(A,3,prof)
    stamp_store(A,6,prof,name)
    A.i("s_endpgm")
    A.label(f"{name}_vtype")
    mainloop(A,True,prof)
    stamp(A,2,prof)
    A.i("s_lshl_b32 s6, s4, 7")
    A.i("s_lshl_b32 s7, s29, 6")
    A.i("s_add_u32 s6, s6, s7")
    A.i("s_sub_u32 s32, s6, 1152")
    A.i("s_cmp_ge_u32 s32, 576")
    A.i(f"s_cbranch_scc1 {name}_end")
    A.i("s_cmp_eq_u32 s26, 1")
    csel(A,33,WS_KVB+OFF_V,WS_KVA+OFF_V)
    A.i("s_lshl_b32 s6, s3, 3")
    A.i("s_lshl_b32 s7, s28, 1")
    A.i("s_add_u32 s6, s6, s7")
    A.i(f"s_mul_i32 s38, s6, {TILE_B}")
    A.i(f"s_add_u32 s39, s38, {TILE_B}")
    A.i(f"s_mov_b32 s34, {KV_HEAD}")
    A.i(f"v_and_b32 v{T0}, 31, v{V_LANE}")
    A.i(f"v_lshrrev_b32 v{T1}, 5, v{V_LANE}")
    A.i(f"v_mul_u32_u24 v{T1}, 304, v{T1}")
    A.i(f"v_add_u32 v{T1}, s33, v{T1}")
    A.i(f"v_add_u32 v{T0}, s32, v{T0}")
    for r in range(4): A.i(f"v_mov_b32 v{XF+r}, 0x3f803f80")
    A.i("s_nop 7")
    for r in range(32): A.i(f"v_cvt_pk_bf16_f32 v{ACC+r}, v{ACC+2*r}, v{ACC+2*r+1}")
    for ct in range(2):
        VC=EA; HD=EA+1; DM=EA+2; AD=EA+3
        A.i(f"v_add_u32 v{VC}, {32*ct}, v{T0}")
        A.i(f"v_mul_u32_u24 v{HD}, 3641, v{VC}")
        A.i(f"v_lshrrev_b32 v{HD}, 16, v{HD}")
        A.i(f"v_mul_u32_u24 v{DM}, 18, v{HD}")
        A.i(f"v_sub_u32 v{DM}, v{VC}, v{DM}")
        A.i(f"v_mul_u32_u24 v{AD}, s34, v{HD}")
        A.i(f"v_lshl_add_u32 v{AD}, v{DM}, 4, v{AD}")
        A.i(f"v_add_u32 v{AD}, v{T1}, v{AD}")
        for tt in range(2):
            b=ACC+(tt*2+ct)*8
            A.i(f"buffer_store_dwordx4 {vr(b,4)}, v{AD}, s[16:19], s{38+tt} offen")
            A.i(f"buffer_store_dwordx4 {vr(b+4,4)}, v{AD}, s[16:19], s{38+tt} offen offset:608")
        A.i(f"v_cmp_eq_u32 vcc, 17, v{DM}")
        A.i("s_and_saveexec_b64 s[30:31], vcc")
        for tt in range(2):
            A.i(f"buffer_store_dwordx4 {vr(XF,4)}, v{AD}, s[16:19], s{38+tt} offen offset:16")
            A.i(f"buffer_store_dwordx4 {vr(XF,4)}, v{AD}, s[16:19], s{38+tt} offen offset:{608+16}")
        A.i("s_mov_b64 exec, s[30:31]")
    if prof: A.i("s_waitcnt vmcnt(0)")
    stamp(A,3,prof)
    stamp_store(A,6,prof,name)
    A.i("s_endpgm")
    A.label(f"{name}_gate")
    A.i(f"s_load_dwordx2 s[12:13], s[0:1], {KA_GW}")
    A.i("s_sub_u32 s6, s2, 224")
    A.i("s_lshl_b32 s6, s6, 6")
    A.i("s_lshl_b32 s7, s5, 3")
    A.i("s_add_u32 s6, s6, s7")
    A.i(f"v_lshrrev_b32 v{T0}, 3, v{V_LANE}")
    A.i(f"v_add_u32 v{T0}, s6, v{T0}")
    A.i(f"v_and_b32 v{T1}, 7, v{V_LANE}")
    A.i(f"v_lshlrev_b32 v{T1}, 4, v{T1}")
    A.i(f"v_mul_u32_u24 v{T2}, 1152, v{T0}")
    A.i(f"v_add_u32 v{T2}, v{T2}, v{T1}")
    A.i("s_waitcnt lgkmcnt(0)")
    A.i("s_and_b32 s9, s9, 0xffff")
    A.i(f"s_mov_b32 s10, {2048*1152}")
    A.i("s_mov_b32 s11, 0x20000")
    A.i("s_and_b32 s13, s13, 0xffff")
    A.i("s_mov_b32 s14, 1152")
    A.i("s_mov_b32 s15, 0x20000")
    for s in range(9):
        A.i(f"buffer_load_dwordx4 {vr(16+4*s,4)}, v{T2}, s[8:11], 0 offen offset:{128*s}")
        A.i(f"buffer_load_dwordx4 {vr(64+4*s,4)}, v{T1}, s[12:15], 0 offen offset:{128*s}")
    A.i("s_mov_b32 s16, s20")
    A.i("s_and_b32 s17, s21, 0xffff")
    A.i("s_mov_b32 s18, 0x2000000")
    A.i("s_mov_b32 s19, 0x20000")
    A.i(f"v_mov_b32 v{T3}, 0")
    A.i(f"v_mov_b32 v{T4}, 0")
    for s in range(9):
        A.i(f"s_waitcnt vmcnt({2*(8-s)})")
        for r in range(4):
            acc = T3 if r%2==0 else T4
            A.i(f"v_dot2_f32_bf16 v{acc}, v{16+4*s+r}, v{64+4*s+r}, v{acc}")
    A.i("s_nop 4")
    A.i(f"v_add_f32 v{T3}, v{T3}, v{T4}")
    A.i("s_nop 1")
    A.i(f"v_add_f32_dpp v{T3}, v{T3}, v{T3} quad_perm:[1,0,3,2] row_mask:0xf bank_mask:0xf")
    A.i("s_nop 1")
    A.i(f"v_add_f32_dpp v{T3}, v{T3}, v{T3} quad_perm:[2,3,0,1] row_mask:0xf bank_mask:0xf")
    A.i("s_nop 1")
    A.i(f"v_add_f32_dpp v{T3}, v{T3}, v{T3} row_half_mirror row_mask:0xf bank_mask:0xf")
    A.i("s_nop 1")
    A.i(f"v_mul_f32 v{T3}, {f32bits(-1.4426950408889634)}, v{T3}")
    A.i(f"v_exp_f32 v{T3}, v{T3}")
    A.i("s_nop 0")
    A.i(f"v_add_f32 v{T3}, 1.0, v{T3}")
    A.i(f"v_rcp_f32 v{T3}, v{T3}")
    A.i(f"v_lshlrev_b32 v{T0}, 2, v{T0}")
    A.i(f"v_add_u32 v{T0}, {WS_G}, v{T0}")
    A.i(f"v_and_b32 v{T1}, 7, v{V_LANE}")
    A.i(f"v_cmp_eq_u32 vcc, 0, v{T1}")
    A.i("s_and_saveexec_b64 s[30:31], vcc")
    A.i(f"buffer_store_dword v{T3}, v{T0}, s[16:19], 0 offen")
    A.label(f"{name}_end")
    A.i("s_endpgm")
    kernel_footer(A,name,NV)
```

```python
from asmlib import *

V_LANE=1; A_KM=2; A_KR=3; A_V=4; T0=5; T1=6; T2=7
QM=8; QR=12; QR0=14
KM=16; KR=20; V0=24; V1=28; P=32; O=40; S0=56; S1=72
X0=88
NV=104

def mfma16(A,d,a,b,c):
    cs = "0" if c is None else vr(c,16)
    A.i(f"v_mfma_f32_32x32x16_bf16 {vr(d,16)}, {vr(a,4)}, {vr(b,4)}, {cs}")
def mfma8(A,d,a,b,c):
    cs = "0" if c is None else vr(c,16)
    A.i(f"v_mfma_f32_32x32x8_bf16 {vr(d,16)}, {vr(a,2)}, {vr(b,2)}, {cs}")

def exps(A,s,lo,p):
    A.i(f"v_exp_f32 v{s+lo}, v{s+lo}")
    A.i(f"v_exp_f32 v{s+lo+1}, v{s+lo+1}")
    A.i(f"v_exp_f32 v{s+lo+2}, v{s+lo+2}")
    A.i(f"v_cvt_pk_bf16_f32 v{P+p}, v{s+lo}, v{s+lo+1}")
    A.i(f"v_exp_f32 v{s+lo+3}, v{s+lo+3}")
    return f"v_cvt_pk_bf16_f32 v{P+p+1}, v{s+lo+2}, v{s+lo+3}"

OPT={}
def step(A0,tau,cur,nxt,dma=None):
    class F:
        def i(self,x):
            if OPT.get('nods') and x.startswith('ds_'): return
            if OPT.get('nowait') and x.startswith('s_waitcnt'): return
            if OPT.get('nomfma') and x.startswith('v_mfma'): return
            if OPT.get('nopv') and x.startswith('v_mfma') and f'v[{O}:' in x.split(',')[0]: return
            if OPT.get('nocvt') and x.startswith('v_cvt'): return
            if OPT.get('nov') and x.startswith('ds_read_b64_tr'): return
            A0.i(x)
    A=F()
    A.i("s_waitcnt lgkmcnt(3)")
    mfma16(A,nxt,KM,QM,None)
    A.i(f"ds_read_b128 {vr(KM,4)}, v{A_KM} offset:{(tau+2)*TILE_B}")
    c=exps(A,cur,0,0)
    A.i("s_waitcnt lgkmcnt(3)")
    A.i(c)
    mfma16(A,O,V1,P+4,O)
    A.i(f"ds_read_b128 {vr(V1,4)}, v{A_V} offset:{tau*TILE_B+608}")
    c=exps(A,cur,4,2)
    A.i("s_waitcnt lgkmcnt(3)")
    A.i(c)
    mfma8(A,nxt,KR,QR,nxt)
    A.i(f"ds_read_b32 v{KR}, v{A_KR} offset:{(tau+2)*TILE_B}")
    c=exps(A,cur,8,4)
    A.i("s_waitcnt lgkmcnt(3)")
    A.i(c)
    mfma16(A,O,V0,P,O)
    A.i(f"ds_read_b128 {vr(V0,4)}, v{A_V} offset:{(tau+1)*TILE_B}")
    if dma:
        for l in dma: A.i(l)
    c=exps(A,cur,12,6)
    A.i("s_nop 0")
    A.i(c)

def set_bias(A,m,tmp):
    a,b,c=tmp,tmp+1,tmp+2
    A.i(f"v_sub_f32 v{a}, 0, v{m}")
    A.i(f"v_and_b32 v{b}, 0xffff0000, v{a}")
    A.i(f"v_sub_f32 v{a}, v{a}, v{b}")
    A.i(f"v_and_b32 v{c}, 0xffff0000, v{a}")
    A.i(f"v_sub_f32 v{a}, v{a}, v{c}")
    A.i(f"v_lshrrev_b32 v{b}, 16, v{b}")
    A.i(f"v_or_b32 v{b}, v{b}, v{c}")
    A.i(f"v_lshrrev_b32 v{a}, 16, v{a}")
    A.i(f"v_cmp_gt_u32 vcc, 32, v{V_LANE}")
    A.i("s_nop 1")
    A.i(f"v_cndmask_b32 v{QR+1}, v{a}, v{b}, vcc")

def xhalf_max(A,m,t):
    A.i(f"v_mov_b32 v{t}, v{m}")
    A.i("s_nop 1")
    A.i(f"v_permlane32_swap_b32 v{m}, v{t}")
    A.i("s_nop 1")
    A.i(f"v_max_f32 v{m}, v{m}, v{t}")

def max16(A,dst,s,first):
    if first:
        A.i(f"v_max3_f32 v{dst}, v{s}, v{s+1}, v{s+2}")
        k=3
        A.i(f"v_max_f32 v{dst}, v{dst}, v{s+3}")
        k=4
    else:
        k=0
    while k<16:
        A.i(f"v_max3_f32 v{dst}, v{dst}, v{s+k}, v{s+k+1}")
        k+=2

def stamp(A,i,prof):
    if prof:
        A.i(f"s_memtime s[{40+2*i}:{41+2*i}]")
        A.i("s_waitcnt lgkmcnt(0)")
def stamp_store(A,n,prof,name,base=0):
    if prof:
        A.i("s_memrealtime s[60:61]")
        A.i("s_waitcnt lgkmcnt(0)")
        A.i("s_lshl_b32 s6, s2, 4")
        A.i("s_add_u32 s6, s6, s70")
        A.i("s_lshl_b32 s6, s6, 6")
        A.i(f"s_add_u32 s6, s6, {WS_PROF+base}")
        A.i("s_add_u32 s64, s20, s6")
        A.i("s_addc_u32 s65, s21, 0")
        A.i(f"v_mov_b32 v{X0+8}, 0")
        for i in range(n):
            A.i(f"v_mov_b32 v{X0+9}, s{40+2*i}")
            A.i(f"global_store_dword v{X0+8}, v{X0+9}, s[64:65] offset:{4*i}")
        A.i(f"v_mov_b32 v{X0+9}, s58")
        A.i(f"global_store_dword v{X0+8}, v{X0+9}, s[64:65] offset:{56}")
        A.i(f"v_mov_b32 v{X0+9}, s60")
        A.i(f"global_store_dword v{X0+8}, v{X0+9}, s[64:65] offset:{60}")
def lane_mask(f):
    m=0
    for l in range(64):
        if f(l): m|=1<<l
    return m
LQ=104; LQR=108; LKM0=110; LKM1=114; LKR0=118; LKR1=120; LV0=122; LV1=126; LV2=130; DMAV=134; LNEG=135
NV=136

def finish_store(A,srd,PK,qt_s,h_s):
    A.i(f"v_rcp_f32 v{X0}, v{X0}")
    A.i("s_nop 0")
    for r in range(10):
        A.i(f"v_mul_f32 v{O+r}, v{O+r}, v{X0}")
    for r in range(5):
        A.i(f"v_cvt_pk_bf16_f32 v{PK+r}, v{O+2*r}, v{O+2*r+1}")
    A.i(f"v_and_b32 v{T0}, 31, v{V_LANE}")
    A.i(f"s_lshl_b32 s6, s{qt_s}, 5")
    A.i(f"v_add_u32 v{T0}, s6, v{T0}")
    A.i(f"v_mul_u32_u24 v{T0}, 1152, v{T0}")
    A.i(f"s_mul_i32 s6, s{h_s}, 36")
    A.i(f"v_lshrrev_b32 v{T1}, 5, v{V_LANE}")
    A.i(f"v_lshlrev_b32 v{T1}, 3, v{T1}")
    A.i(f"v_add3_u32 v{T0}, v{T0}, v{T1}, s6")
    A.i(f"buffer_store_dwordx2 {vr(PK,2)}, v{T0}, {sr(srd,4)}, 0 offen")
    A.i(f"buffer_store_dwordx2 {vr(PK+2,2)}, v{T0}, {sr(srd,4)}, 0 offen offset:16")
    A.i(f"v_cmp_gt_u32 vcc, 32, v{V_LANE}")
    A.i("s_and_saveexec_b64 s[24:25], vcc")
    A.i(f"buffer_store_dword v{PK+4}, v{T0}, {sr(srd,4)}, 0 offen offset:32")
    A.i("s_mov_b64 exec, s[24:25]")

def local_attn(A):
    A.i(f"v_mov_b32 v{LQR+1}, 0")
    A.i(f"v_mov_b32 v{LKR0+1}, 0")
    A.i(f"v_mov_b32 v{LKR1+1}, 0")
    A.i(f"v_mov_b32 v{LNEG}, 0xf149f2ca")
    mfma16(A,S0,LKM0,LQ,None)
    mfma16(A,S1,LKM1,LQ,None)
    A.i("s_nop 9")
    mfma8(A,S0,LKR0,LQR,S0)
    mfma8(A,S1,LKR1,LQR,S1)
    A.i("s_nop 11")
    def msk(reg,m,flag):
        A.i(f"s_mov_b32 s32, {m&0xffffffff}")
        A.i(f"s_mov_b32 s33, {m>>32}")
        if flag:
            A.i("s_and_b32 s32, s32, s34")
            A.i("s_and_b32 s33, s33, s34")
        A.i(f"v_cndmask_b32 v{reg}, v{LNEG}, v{reg}, s[32:33]")
    for i in range(16):
        def ok(l,i=i):
            key=8*(i//4)+4*(l//32)+i%4; d=(l%32)-key
            return d>=0 and d<=14 and d%2==0
        msk(S0+i,lane_mask(ok),False)
    for i in range(8,16):
        def ok(l,i=i):
            key=8*(i//4)+4*(l//32)+i%4; d=(l%32)+32-key
            return d>=0 and d<=14 and d%2==0
        msk(S1+i,lane_mask(ok),True)
    max16(A,X0,S0,True)
    for k in range(8,16,2):
        A.i(f"v_max3_f32 v{X0}, v{X0}, v{S1+k}, v{S1+k+1}")
    xhalf_max(A,X0,X0+1)
    regs=[S0+i for i in range(16)]+[S1+i for i in range(8,16)]
    for r in regs: A.i(f"v_sub_f32 v{r}, v{r}, v{X0}")
    for r in regs: A.i(f"v_exp_f32 v{r}, v{r}")
    A.i("s_nop 0")
    for r in range(8): A.i(f"v_cvt_pk_bf16_f32 v{P+r}, v{S0+2*r}, v{S0+2*r+1}")
    for r in range(4): A.i(f"v_cvt_pk_bf16_f32 v{X0+4+r}, v{S1+8+2*r}, v{S1+8+2*r+1}")
    A.i("s_nop 1")
    mfma16(A,O,LV0,P,None)
    mfma16(A,O,LV1,P+4,O)
    mfma16(A,O,LV2,X0+4,O)
    A.i("s_nop 11")
    A.i("s_nop 7")
    A.i(f"v_mov_b32 v{X0}, v{O+10}")
    A.i(f"v_mov_b32 v{X0+1}, v{O+10}")
    A.i("s_nop 1")
    A.i(f"v_permlane32_swap_b32 v{X0}, v{X0+1}")
    A.i("s_nop 1")
    finish_store(A,36,LQ,7,3)

def gen_k2(A,name="k2_attn_kernel",prof=False):
    kernel_header(A,name)
    A.i("s_cmp_ge_u32 s2, 256")
    A.i(f"s_cbranch_scc1 {name}_end")
    A.i(f"s_load_dwordx2 s[20:21], s[0:1], {KA_WS}")
    if prof: A.i("s_memrealtime s[58:59]")
    stamp(A,0,prof)
    A.i(f"v_and_b32 v{V_LANE}, 63, v0")
    A.i(f"v_lshrrev_b32 v{T0}, 6, v0")
    A.i("s_and_b32 s3, s2, 7")
    A.i(f"v_readfirstlane_b32 s5, v{T0}")
    A.i("s_nop 3")
    A.i("s_mov_b32 s70, s5")
    A.i("s_lshl_b32 s3, s3, 2")
    A.i("s_lshr_b32 s4, s2, 3")
    A.i("s_and_b32 s6, s4, 3")
    A.i("s_add_u32 s3, s3, s6")
    A.i("s_lshr_b32 s4, s2, 5")
    A.i("s_lshl_b32 s7, s4, 3")
    A.i("s_add_u32 s7, s7, s5")
    A.i(f"v_lshlrev_b32 v{A_KM}, 4, v{V_LANE}")
    A.i(f"v_mov_b32 v{DMAV}, v{A_KM}")
    A.i(f"v_and_b32 v{T0}, 31, v{V_LANE}")
    A.i(f"v_lshlrev_b32 v{A_KR}, 2, v{T0}")
    A.i(f"v_add_u32 v{A_KR}, {OFF_KR}, v{A_KR}")
    A.i(f"v_lshrrev_b32 v{T1}, 5, v{V_LANE}")
    A.i(f"v_mul_u32_u24 v{T1}, 304, v{T1}")
    A.i(f"v_lshl_add_u32 v{A_V}, v{T0}, 4, v{T1}")
    A.i(f"v_add_u32 v{A_V}, {OFF_V}, v{A_V}")
    A.i(f"v_lshlrev_b32 v{T1}, 2, v{V_LANE}")
    A.i(f"s_mul_i32 s6, s3, {KV_HEAD}")
    A.i("s_lshl_b32 s30, s3, 6")
    A.i("s_add_u32 s30, s30, s7")
    A.i(f"s_mul_i32 s30, s30, {QT_B}")
    A.i(f"s_mul_i32 s31, s7, {TILE_B}")
    A.i("s_cmp_eq_u32 s7, 0")
    A.i("s_cselect_b32 s34, 0, -1")
    A.i(f"s_sub_u32 s35, s31, {TILE_B}")
    A.i("s_cselect_b32 s35, s35, s35")
    A.i("s_cmp_eq_u32 s7, 0")
    A.i("s_cselect_b32 s35, s31, s35")
    A.i("s_waitcnt lgkmcnt(0)")
    def srd(d,off_const,off_s,num):
        A.i(f"s_add_u32 s{d}, s20, s{off_s}")
        A.i(f"s_addc_u32 s{d+1}, s21, 0")
        if off_const:
            A.i(f"s_add_u32 s{d}, s{d}, {off_const}")
            A.i(f"s_addc_u32 s{d+1}, s{d+1}, 0")
        A.i(f"s_and_b32 s{d+1}, s{d+1}, 0xffff")
        A.i(f"s_mov_b32 s{d+2}, {num}")
        A.i(f"s_mov_b32 s{d+3}, 0x20000")
    srd(24,WS_KVA,6,KV_HEAD)
    srd(16,WS_QA,30,QT_B)
    A.i(f"buffer_load_dwordx4 {vr(LQ,4)}, v{A_KM}, s[16:19], 0 offen")
    A.i(f"buffer_load_dword v{LQR}, v{T1}, s[16:19], 0 offen offset:1024")
    A.i(f"buffer_load_dwordx4 {vr(LKM0,4)}, v{A_KM}, s[24:27], s31 offen")
    A.i(f"buffer_load_dword v{LKR0}, v{A_KR}, s[24:27], s31 offen")
    A.i(f"buffer_load_dwordx4 {vr(LKM1,4)}, v{A_KM}, s[24:27], s35 offen")
    A.i(f"buffer_load_dword v{LKR1}, v{A_KR}, s[24:27], s35 offen")
    A.i(f"buffer_load_dwordx4 {vr(LV0,4)}, v{A_V}, s[24:27], s31 offen")
    A.i(f"buffer_load_dwordx4 {vr(LV1,4)}, v{A_V}, s[24:27], s31 offen offset:608")
    A.i(f"buffer_load_dwordx4 {vr(LV2,4)}, v{A_V}, s[24:27], s35 offen offset:608")
    srd(8,WS_KVB,6,KV_HEAD)
    srd(12,WS_QB,30,QT_B)
    A.i(f"buffer_load_dwordx4 {vr(QM,4)}, v{A_KM}, s[12:15], 0 offen")
    A.i(f"buffer_load_dword v{QR}, v{T1}, s[12:15], 0 offen offset:1024")
    A.i("s_lshl_b32 s22, s5, 10")
    dma=["s_mov_b32 m0, s22","s_nop 0",f"buffer_load_dwordx4 v{DMAV}, s[8:11], s22 offen lds","s_add_u32 s22, s22, 8192"]
    for i in range(3):
        for l in dma: A.i(l)
    A.i(f"s_add_u32 s36, s20, {WS_OA}")
    A.i("s_addc_u32 s37, s21, 0")
    A.i("s_and_b32 s37, s37, 0xffff")
    A.i(f"s_mov_b32 s38, {2048*1152}")
    A.i("s_mov_b32 s39, 0x20000")
    A.i("s_waitcnt vmcnt(5)")
    stamp(A,6,prof)
    local_attn(A)
    A.i(f"s_add_u32 s16, s20, {WS_OB}")
    A.i("s_addc_u32 s17, s21, 0")
    A.i("s_and_b32 s17, s17, 0xffff")
    A.i(f"s_mov_b32 s18, {2048*1152}")
    A.i("s_mov_b32 s19, 0x20000")
    A.i(f"v_mov_b32 v{KR+1}, 0x3f803f80")
    A.i(f"v_mov_b32 v{QR+1}, 0")
    for r in range(16): A.i(f"v_mov_b32 v{O+r}, 0")
    for r in range(4): A.i(f"v_mov_b32 v{V1+r}, 0")
    for r in range(4): A.i(f"v_mov_b32 v{P+4+r}, 0")
    A.i("s_waitcnt vmcnt(3)")
    A.i("s_barrier")
    stamp(A,1,prof)
    A.i(f"ds_read_b128 {vr(KM,4)}, v{A_KM}")
    A.i(f"ds_read_b32 v{KR}, v{A_KR}")
    A.i(f"v_mov_b32 v{QR0}, v{QR}")
    A.i(f"v_mov_b32 v{QR0+1}, 0")
    A.i("s_waitcnt lgkmcnt(0)")
    mfma16(A,S0,KM,QM,None)
    A.i(f"ds_read_b128 {vr(KM,4)}, v{A_KM} offset:{TILE_B}")
    A.i("s_nop 9")
    mfma8(A,S0,KR,QR,S0)
    A.i(f"ds_read_b32 v{KR}, v{A_KR} offset:{TILE_B}")
    A.i(f"ds_read_b128 {vr(V0,4)}, v{A_V}")
    A.i("s_nop 9")
    max16(A,X0,S0,True)
    xhalf_max(A,X0,X0+1)
    set_bias(A,X0,X0+2)
    for r in range(16): A.i(f"v_sub_f32 v{S0+r}, v{S0+r}, v{X0}")
    A.i("s_waitcnt lgkmcnt(0)")
    stamp(A,2,prof)
    def iteration(with_dma=False):
        for tau in range(8):
            step(A,tau,S0 if tau%2==0 else S1, S1 if tau%2==0 else S0, dma if with_dma else None)
        for a in (A_KM,A_KR,A_V):
            A.i(f"v_add_u32 v{a}, {8*TILE_B}, v{a}")
    iteration(True)
    A.i("s_waitcnt vmcnt(3)")
    A.i("s_barrier")
    iteration(True)
    iteration()
    A.i("s_waitcnt vmcnt(0)")
    A.i("s_barrier")
    if prof: A.i("s_waitcnt lgkmcnt(0)")
    stamp(A,3,prof)
    A.i("s_mov_b32 s23, 5")
    A.label(f"{name}_loop")
    iteration()
    A.i("s_sub_u32 s23, s23, 1")
    A.i("s_cmp_lg_u32 s23, 0")
    A.i(f"s_cbranch_scc1 {name}_loop")
    A.i("s_waitcnt lgkmcnt(0)")
    stamp(A,4,prof)
    mfma16(A,O,V1,P+4,O)
    A.i("s_nop 11")
    A.label(f"{name}_check")
    A.i(f"v_mov_b32 v{X0}, v{O+10}")
    A.i(f"v_mov_b32 v{X0+1}, v{O+10}")
    A.i(f"v_mul_f32 v{X0+2}, 0, v{O}")
    A.i(f"v_fma_f32 v{X0+2}, v{O+1}, 0, v{X0+2}")
    A.i(f"v_permlane32_swap_b32 v{X0}, v{X0+1}")
    for r in range(2,10):
        A.i(f"v_fma_f32 v{X0+2}, v{O+r}, 0, v{X0+2}")
    A.i(f"v_add_f32 v{X0+2}, v{X0+2}, v{X0}")
    A.i(f"v_mov_b32 v{X0+3}, 0x5f800000")
    A.i(f"v_cmp_nlt_f32 vcc, v{X0+2}, v{X0+3}")
    A.i("s_nop 4")
    A.i(f"s_cbranch_vccnz {name}_slow")
    A.label(f"{name}_fin")
    finish_store(A,16,P,7,3)
    if prof: A.i("s_waitcnt vmcnt(0)")
    stamp(A,5,prof)
    stamp_store(A,7,prof,name,0x40000)
    A.label(f"{name}_end")
    A.i("s_endpgm")
    A.label(f"{name}_slow")
    A.i(f"v_subrev_u32 v{A_KM}, {64*TILE_B}, v{A_KM}")
    A.i(f"v_subrev_u32 v{A_KR}, {64*TILE_B}, v{A_KR}")
    A.i(f"v_subrev_u32 v{A_V}, {64*TILE_B}, v{A_V}")
    A.i(f"v_mov_b32 v{X0}, 0xff800000")
    A.i("s_mov_b32 s23, 64")
    A.label(f"{name}_slow_max")
    A.i(f"ds_read_b128 {vr(KM,4)}, v{A_KM}")
    A.i(f"ds_read_b32 v{KR}, v{A_KR}")
    A.i("s_waitcnt lgkmcnt(0)")
    mfma16(A,S0,KM,QM,None)
    A.i("s_nop 9")
    mfma8(A,S0,KR,QR0,S0)
    A.i("s_nop 11")
    max16(A,X0,S0,False)
    A.i(f"v_add_u32 v{A_KM}, {TILE_B}, v{A_KM}")
    A.i(f"v_add_u32 v{A_KR}, {TILE_B}, v{A_KR}")
    A.i("s_sub_u32 s23, s23, 1")
    A.i("s_cmp_lg_u32 s23, 0")
    A.i(f"s_cbranch_scc1 {name}_slow_max")
    A.i(f"v_subrev_u32 v{A_KM}, {64*TILE_B}, v{A_KM}")
    A.i(f"v_subrev_u32 v{A_KR}, {64*TILE_B}, v{A_KR}")
    xhalf_max(A,X0,X0+1)
    set_bias(A,X0,X0+2)
    for r in range(16): A.i(f"v_mov_b32 v{O+r}, 0")
    A.i("s_mov_b32 s23, 64")
    A.label(f"{name}_slow_main")
    A.i(f"ds_read_b128 {vr(KM,4)}, v{A_KM}")
    A.i(f"ds_read_b32 v{KR}, v{A_KR}")
    A.i(f"ds_read_b128 {vr(V0,4)}, v{A_V}")
    A.i(f"ds_read_b128 {vr(V1,4)}, v{A_V} offset:608")
    A.i("s_waitcnt lgkmcnt(0)")
    mfma16(A,S0,KM,QM,None)
    A.i("s_nop 9")
    mfma8(A,S0,KR,QR,S0)
    A.i("s_nop 11")
    for r in range(16): A.i(f"v_exp_f32 v{S0+r}, v{S0+r}")
    A.i("s_nop 0")
    for r in range(8): A.i(f"v_cvt_pk_bf16_f32 v{P+r}, v{S0+2*r}, v{S0+2*r+1}")
    A.i("s_nop 1")
    mfma16(A,O,V0,P,O)
    mfma16(A,O,V1,P+4,O)
    A.i(f"v_add_u32 v{A_KM}, {TILE_B}, v{A_KM}")
    A.i(f"v_add_u32 v{A_KR}, {TILE_B}, v{A_KR}")
    A.i(f"v_add_u32 v{A_V}, {TILE_B}, v{A_V}")
    A.i("s_sub_u32 s23, s23, 1")
    A.i("s_cmp_lg_u32 s23, 0")
    A.i(f"s_cbranch_scc1 {name}_slow_main")
    A.i("s_nop 11")
    A.i(f"v_mov_b32 v{X0}, v{O+10}")
    A.i(f"v_mov_b32 v{X0+1}, v{O+10}")
    A.i("s_nop 1")
    A.i(f"v_permlane32_swap_b32 v{X0}, v{X0+1}")
    A.i("s_nop 1")
    A.i(f"s_branch {name}_fin")
    kernel_footer(A,name,NV)
```

```python
from asmlib import *
from k2 import stamp, stamp_store

V_LANE=1; XA=2; WA=4; DX=5; DWE=6; DWO=7; T0=8; T1=9; T2=10; T3=11
G=12
XF=16
WF=40
ACCA=48
ACCB=60
PK=72
NV=104
STG=36864; WOFF=20480
def osrc(hh): return (WS_OA+hh*128) if hh<9 else (WS_OB+(hh-9)*128)

def dma_list(sc,tg):
    sb=(sc%4)*STG
    L=[]
    hh=2*sc+tg
    wsrd = "s[12:15]" if hh<9 else "s[16:19]"
    kb=(hh%9)*64
    for i in range(2):
        L.append([f"s_add_u32 s30, s23, {(kb+8*i)*1152}",f"s_add_u32 m0, s25, {sb+i*1024}","s_nop 0",
                  f"buffer_load_dwordx4 v{DWO if i else DWE}, {wsrd}, s30 offen lds"])
    for i in range(2):
        L.append([f"s_add_u32 s30, s22, {osrc(hh)+32*i*1152}",f"s_add_u32 m0, s24, {sb+tg*10240+i*4096}","s_nop 0",
                  f"buffer_load_dwordx4 v{DX}, s[8:11], s30 offen lds"])
    if tg==0:
        d = "s29" if sc==4 else "s28"
        L.append([f"s_add_u32 s30, s26, {osrc(2*sc)}",f"s_add_u32 s30, s30, {d}",f"s_add_u32 m0, s27, {sb}","s_nop 0",
                  f"buffer_load_dwordx4 v{DX}, s[8:11], s30 offen lds"])
    return L

def reads(ks,buf,nt):
    r=[]
    for u in range(2):
        r.append(f"ds_read_b64_tr_b16 {vr(WF+buf*4+2*u,2)}, v{WA} offset:{WOFF+ks*4096+u*512}")
    for tt in range(nt):
        r.append(f"ds_read_b128 {vr(XF+buf*12+tt*4,4)}, v{XA+(ks&1)} offset:{(ks>>1)*10240+tt*2048}")
    return r

def body(A,tg,prof,name):
    nt=3 if tg==0 else 2
    n=5 if tg==0 else 4
    for sc in range(3):
        for g in dma_list(sc,tg):
            for l in g: A.i(l)
    if tg==0: stamp(A,4,prof)
    else: stamp(A,4,prof)
    step=0
    for sc in range(9):
        rem=min(2,8-sc)
        A.i(f"s_waitcnt vmcnt({n*rem})")
        A.i("s_barrier")
        if sc==0: stamp(A,1,prof)
        pend = dma_list(sc+3,tg) if sc+3<9 else []
        if sc>0:
            d = STG if sc%4!=0 else -3*STG
            for r in (XA,XA+1,WA):
                if d>0: A.i(f"v_add_u32 v{r}, {d}, v{r}")
                else: A.i(f"v_subrev_u32 v{r}, {-d}, v{r}")
        for l in reads(0,step&1,nt): A.i(l)
        for ks in range(4):
            buf=step&1
            hh=2*sc+(ks>>1)
            acc=ACCA if hh<9 else ACCB
            first = (hh%9==0 and (ks&1)==0)
            if ks<3:
                for l in reads(ks+1,buf^1,nt): A.i(l)
                A.i(f"s_waitcnt lgkmcnt({2+nt})")
            else:
                A.i("s_waitcnt lgkmcnt(0)")
            for tt in range(nt):
                d=acc+tt*4
                c="0" if first else vr(d,4)
                A.i(f"v_mfma_f32_16x16x32_bf16 {vr(d,4)}, {vr(WF+buf*4,4)}, {vr(XF+buf*12+tt*4,4)}, {c}")
            for _ in range(2):
                if pend:
                    for l in pend.pop(0): A.i(l)
            step+=1
        assert not pend
    stamp(A,2,prof)
    A.i("s_nop 7")
    for tt in range(nt):
        for r in range(4):
            a=ACCA+tt*4+r; b=ACCB+tt*4+r
            A.i(f"v_sub_f32 v{a}, v{a}, v{b}")
            A.i(f"v_fma_f32 v{a}, v{G+tt}, v{a}, v{b}")
        A.i(f"v_cvt_pk_bf16_f32 v{PK+2*tt}, v{ACCA+tt*4}, v{ACCA+tt*4+1}")
        A.i(f"v_cvt_pk_bf16_f32 v{PK+2*tt+1}, v{ACCA+tt*4+2}, v{ACCA+tt*4+3}")
        A.i(f"buffer_store_dwordx2 {vr(PK+2*tt,2)}, v{T3}, s[32:35], 0 offen")
        if tt<nt-1: A.i(f"v_add_u32 v{T3}, {16*1152}, v{T3}")
    if prof: A.i("s_waitcnt vmcnt(0)")
    stamp(A,3,prof)
    stamp_store(A,5,prof,name,0x80000)
    A.i("s_endpgm")

def gen_k3(A,name="k3_out_kernel",prof=False):
    kernel_header(A,name)
    A.i("s_cmp_ge_u32 s2, 240")
    A.i(f"s_cbranch_scc1 {name}_end")
    A.i(f"s_load_dwordx2 s[20:21], s[0:1], {KA_WS}")
    A.i(f"s_load_dwordx2 s[12:13], s[0:1], {KA_AWO}")
    A.i(f"s_load_dwordx2 s[16:17], s[0:1], {KA_BWO}")
    A.i(f"s_load_dwordx2 s[32:33], s[0:1], {KA_OUT}")
    if prof: A.i("s_memrealtime s[58:59]")
    stamp(A,0,prof)
    A.i(f"v_and_b32 v{V_LANE}, 63, v0")
    A.i(f"v_lshrrev_b32 v{T0}, 6, v0")
    A.i("s_and_b32 s6, s2, 7")
    A.i(f"v_readfirstlane_b32 s5, v{T0}")
    A.i("s_mul_i32 s6, s6, 30")
    A.i("s_lshr_b32 s7, s2, 3")
    A.i("s_add_u32 s6, s6, s7")
    A.i("s_mov_b32 s70, s5")
    A.i("s_cmp_ge_u32 s6, 234")
    A.i(f"s_cbranch_scc1 {name}_end")
    A.i("s_mul_i32 s3, s6, 7282")
    A.i("s_lshr_b32 s3, s3, 16")
    A.i("s_mul_i32 s7, s3, 9")
    A.i("s_sub_u32 s4, s6, s7")
    A.i("s_mul_i32 s3, s3, 80")
    A.i(f"v_lshrrev_b32 v{T0}, 3, v{V_LANE}")
    A.i(f"v_mul_u32_u24 v{T0}, 1152, v{T0}")
    A.i(f"v_and_b32 v{T1}, 7, v{V_LANE}")
    A.i(f"v_lshrrev_b32 v{T2}, 4, v{V_LANE}")
    A.i(f"v_xor_b32 v{T3}, v{T1}, v{T2}")
    A.i(f"v_lshl_add_u32 v{DX}, v{T3}, 4, v{T0}")
    A.i("s_and_b32 s6, s5, 1")
    A.i("s_lshl_b32 s6, s6, 6")
    A.i(f"v_xor_b32 v{DX}, s6, v{DX}")
    A.i(f"v_and_b32 v{T2}, 1, v{T2}")
    A.i(f"v_lshlrev_b32 v{T2}, 1, v{T2}")
    A.i(f"v_xor_b32 v{T3}, v{T1}, v{T2}")
    A.i(f"v_lshl_add_u32 v{DWE}, v{T3}, 4, v{T0}")
    A.i(f"v_xor_b32 v{DWO}, 64, v{DWE}")
    A.i("s_and_b32 s6, s5, 3")
    A.i(f"s_mul_i32 s23, s6, {16*1152}")
    A.i("s_lshl_b32 s7, s4, 7")
    A.i("s_add_u32 s23, s23, s7")
    A.i("s_lshl_b32 s25, s5, 11")
    A.i(f"s_add_u32 s25, s25, {WOFF}")
    A.i("s_lshl_b32 s7, s6, 3")
    A.i("s_add_u32 s7, s7, s3")
    A.i("s_mul_i32 s22, s7, 1152")
    A.i("s_lshl_b32 s24, s6, 10")
    A.i("s_and_b32 s7, s5, 1")
    A.i("s_lshl_b32 s26, s7, 3")
    A.i("s_add_u32 s26, s26, s3")
    A.i("s_add_u32 s26, s26, 64")
    A.i("s_mul_i32 s26, s26, 1152")
    A.i("s_lshl_b32 s27, s7, 10")
    A.i("s_add_u32 s27, s27, 8192")
    A.i("s_lshr_b32 s7, s6, 1")
    A.i("s_mul_i32 s31, s7, 10240")
    A.i("s_add_u32 s27, s27, s31")
    A.i("s_lshl_b32 s28, s7, 7")
    A.i(f"s_mul_i32 s29, s7, {osrc(9)-osrc(8)}")
    A.i(f"v_and_b32 v{T0}, 15, v{V_LANE}")
    A.i(f"v_lshrrev_b32 v{T1}, 4, v{V_LANE}")
    A.i(f"v_bfe_u32 v{T2}, v{V_LANE}, 1, 3")
    A.i(f"v_xor_b32 v{T2}, v{T1}, v{T2}")
    A.i(f"v_lshlrev_b32 v{T2}, 4, v{T2}")
    A.i(f"v_lshl_add_u32 v{T2}, v{T0}, 7, v{T2}")
    A.i("s_lshr_b32 s7, s5, 2")
    A.i(f"s_mul_i32 s31, s7, {3*2048}")
    A.i(f"v_add_u32 v{XA}, s31, v{T2}")
    A.i(f"v_xor_b32 v{XA+1}, 64, v{XA}")
    A.i(f"v_bfe_u32 v{T2}, v{V_LANE}, 2, 2")
    A.i(f"v_lshl_add_u32 v{T3}, v{T1}, 3, v{T2}")
    A.i(f"v_lshlrev_b32 v{T3}, 7, v{T3}")
    A.i(f"v_lshrrev_b32 v{T2}, 1, v{T2}")
    A.i(f"v_and_b32 v{T1}, 1, v{T1}")
    A.i(f"v_lshl_or_b32 v{T2}, v{T1}, 1, v{T2}")
    A.i(f"v_xor_b32 v{T2}, s6, v{T2}")
    A.i(f"v_lshl_add_u32 v{T3}, v{T2}, 5, v{T3}")
    A.i(f"v_and_b32 v{T1}, 3, v{V_LANE}")
    A.i(f"v_lshl_add_u32 v{WA}, v{T1}, 3, v{T3}")
    A.i("s_mul_i32 s31, s7, 48")
    A.i("s_add_u32 s31, s31, s3")
    A.i(f"v_add_u32 v{T0}, s31, v{T0}")
    A.i(f"v_lshlrev_b32 v{T1}, 2, v{T0}")
    A.i(f"v_add_u32 v{T1}, {WS_G}, v{T1}")
    A.i(f"v_mul_u32_u24 v{T3}, 1152, v{T0}")
    A.i(f"v_lshrrev_b32 v{T2}, 4, v{V_LANE}")
    A.i(f"v_lshl_add_u32 v{T3}, v{T2}, 3, v{T3}")
    A.i("s_lshl_b32 s31, s4, 7")
    A.i("s_lshl_b32 s36, s6, 5")
    A.i("s_add_u32 s31, s31, s36")
    A.i(f"v_add_u32 v{T3}, s31, v{T3}")
    A.i("s_waitcnt lgkmcnt(0)")
    A.i("s_mov_b32 s8, s20")
    A.i("s_and_b32 s9, s21, 0xffff")
    A.i("s_mov_b32 s10, 0x2000000")
    A.i("s_mov_b32 s11, 0x20000")
    for d in (12,16):
        A.i(f"s_and_b32 s{d+1}, s{d+1}, 0xffff")
        A.i(f"s_mov_b32 s{d+2}, {576*1152}")
        A.i(f"s_mov_b32 s{d+3}, 0x20000")
    A.i("s_and_b32 s33, s33, 0xffff")
    A.i(f"s_mov_b32 s34, {2048*1152}")
    A.i("s_mov_b32 s35, 0x20000")
    for tt in range(3):
        A.i(f"buffer_load_dword v{G+tt}, v{T1}, s[8:11], 0 offen offset:{64*tt}")
    A.i("s_cmp_ge_u32 s5, 4")
    A.i(f"s_cbranch_scc1 {name}_tg1")
    body(A,0,prof,name)
    A.label(f"{name}_tg1")
    body(A,1,prof,name)
    A.label(f"{name}_end")
    A.i("s_endpgm")
    kernel_footer(A,name,NV)
```

```python
import sys
from asmlib import *
from build import *
import k1,k2,k3
prof='prof' in sys.argv
out=[a[4:] for a in sys.argv if a.startswith('out=')]
out=out[0] if out else 'all'
k1.NPRE=6
A=Asm()
k1.gen_k1(A,prof=prof)
k2.gen_k2(A,prof=prof)
k3.gen_k3(A,prof=prof)
L=[("k1_qkv_kernel",256,512,147456),("k2_attn_kernel",256,512,163840),("k3_out_kernel",240,512,147456)]
txt=header(L)+A.text()
open(out+'.s','w').write(txt)
assemble(txt,out,[l[0] for l in L])
```

```python
class Asm:
    def __init__(self):
        self.lines=[]
    def __call__(self, s=""):
        for l in s.split("\n"):
            self.lines.append(l)
    def i(self, s):
        self.lines.append("  "+s)
    def label(self, s):
        self.lines.append(s+":")
    def text(self):
        return "\n".join(self.lines)+"\n"

def vr(a,n=1):
    return f"v{a}" if n==1 else f"v[{a}:{a+n-1}]"
def sr(a,n=1):
    return f"s{a}" if n==1 else f"s[{a}:{a+n-1}]"

def kernel_header(A,name):
    A(f".globl {name}")
    A(".p2align 8")
    A(f".type {name},@function")
    A.label(name)

def kernel_footer(A,name,nvgpr,nsgpr=102,accum=None):
    if accum is None: accum=(nvgpr+3)//4*4
    A('.section .rodata,"a"')
    A(".p2align 6")
    A(f".amdhsa_kernel {name}")
    A(f"  .amdhsa_next_free_vgpr {nvgpr}")
    A(f"  .amdhsa_next_free_sgpr {nsgpr}")
    A(f"  .amdhsa_accum_offset {accum}")
    A("  .amdhsa_group_segment_fixed_size 0")
    A("  .amdhsa_kernarg_size 80")
    A("  .amdhsa_user_sgpr_count 2")
    A("  .amdhsa_user_sgpr_kernarg_segment_ptr 1")
    A("  .amdhsa_system_sgpr_workgroup_id_x 1")
    A("  .amdhsa_float_denorm_mode_32 3")
    A(".end_amdhsa_kernel")
    A(".text")

KA_X=0; KA_AWQKV=8; KA_AWO=16; KA_BX=24; KA_BWQKV=32; KA_BWO=40; KA_GW=48; KA_OUT=56; KA_DBG=64; KA_WS=72

TILE_B=2368
KV_HEAD=64*TILE_B
OFF_V=1024; OFF_KR=2240
QT_B=1152
WS_KVB=0
WS_QB=0x500000
WS_KVA=0x800000
WS_QA=0xD00000
WS_OB=0x1000000
WS_OA=0x1300000
WS_G=0x1600000
WS_PROF=0x1800000
WS_OAR=WS_OA+0x200000
WS_FLAG=0x1610000
WS_WOT=0x1700000
WS_WOTB=0x1900000
WS_OBR=WS_OB+0x200000
WS_AT=0x1A00000
WS_FLAGB=WS_FLAG+0x4000
WS_FLAGA=WS_FLAG+0x5000

def code_touch(A,tag,first,last,wave_s,dst,tmp,sa,back,lanes=32):
    A.i(f"s_getpc_b64 s[{sa}:{sa+1}]")
    A.label(f"{tag}_pc")
    if back:
        A.i(f"s_sub_u32 s{sa}, s{sa}, {tag}_pc-{first}")
        A.i(f"s_subb_u32 s{sa+1}, s{sa+1}, 0")
    else:
        A.i(f"s_add_u32 s{sa}, s{sa}, {first}-{tag}_pc")
        A.i(f"s_addc_u32 s{sa+1}, s{sa+1}, 0")
    A.i(f"v_and_b32 v{tmp}, {lanes-1}, v0")
    A.i(f"s_mul_i32 s{sa+2}, s{wave_s}, {lanes}")
    A.i(f"v_add_u32 v{tmp}, s{sa+2}, v{tmp}")
    A.i(f"v_lshlrev_b32 v{tmp}, 7, v{tmp}")
    A.i(f"s_mov_b32 s{sa+2}, {last}-{first}-4")
    A.i(f"v_min_u32 v{tmp}, s{sa+2}, v{tmp}")
    A.i(f"v_mov_b32 v{tmp+1}, s{sa+1}")
    A.i(f"v_add_co_u32 v{tmp}, vcc, s{sa}, v{tmp}")
    A.i(f"v_addc_co_u32 v{tmp+1}, vcc, 0, v{tmp+1}, vcc")
    A.i(f"global_load_dword v{dst}, v[{tmp}:{tmp+1}], off")
```

```python
from asmlib import *
from k2 import stamp, stamp_store
import struct
C_SCALE=18**-0.5*1.4426950408889634
def f32bits(x): return struct.unpack('<I',struct.pack('<f',x))[0]

V_LANE=1; XA=2; WA=6; DXE=8; DXO=9; DW=10; T0=11; T1=12; T2=13; T3=14; T4=15
XF=16
WF=32
EA=48
ACC=64
NV=128
STAGE=49152; WOFF=32768
NPRE=0
PF=0
FAKE=0
W_MOD=''
X_MOD=''
PF2=0
PF0=2
QK_MOD=''
TMOD=None
WOT_MOD=''
WOTB=0
DAF=0
MIX=0
MONO=0
FLV=170
W64=0
DAF_MOD='sc1'
NZ=40
VA_MOD=None
V_MOD=''

def csel(A,d,a,b):
    A.i(f"s_mov_b32 s{d}, {b}")
    A.i(f"s_cselect_b32 s{d}, {a}, s{d}")

M16=0
_par=[0]
def mfma(A,d,a,b,first=False):
    if M16:
        for q in range(2):
            dd=d+8*((_par[0]>>2)&1)+4*q
            A.i(f"v_mfma_f32_16x16x32_bf16 {vr(dd,4)}, {vr(a,4)}, {vr(b,4)}, {vr(dd,4)}")
        _par[0]+=1
        return
    c = "0" if first else vr(d,16)
    A.i(f"v_mfma_f32_32x32x16_bf16 {vr(d,16)}, {vr(a,4)}, {vr(b,4)}, {c}")

def dma_list(c):
    sb=(c%3)*STAGE
    L=[]
    for i in range(2):
        L.append([f"s_add_u32 s30, s23, {(c*64+4*i)*3456}",f"s_add_u32 m0, s25, {sb+i*1024}","s_nop 0",
                  f"buffer_load_dwordx4 v{DW}, s[12:15], s30 offen {W_MOD} lds"])
    for i in range(4):
        L.append([f"s_add_u32 s30, s22, {8*i*1152+c*128}",f"s_add_u32 m0, s24, {sb+i*1024}","s_nop 0",
                  f"buffer_load_dwordx4 v{DXO if i&1 else DXE}, s[8:11], s30 offen {X_MOD} lds"])
    return L
def dma_chunk(A,c):
    for g in dma_list(c):
        for l in g: A.i(l)

def reads(ks,buf):
    r=[]
    for tt in range(2):
        r.append(f"ds_read_b128 {vr(XF+buf*8+tt*4,4)}, v{XA+ks} offset:{tt*4096}")
    for ct in range(2):
        for u in range(2):
            r.append(f"ds_read_b64_tr_b16 {vr(WF+buf*8+ct*4+2*u,2)}, v{WA+ct} offset:{ks*4096+u*1024}")
    return r

RPOS=[0,1,2,3,4,5,6,7,8,9,10,11]
DPOS=[4,9,14]
def mainloop16(A,vtype,prof):
    XB=[16,24,128,136]; WB=[32,40,144,152]
    def rds(s2,par):
        r=[]
        for h in range(2):
            ks=2*s2+h; b=2*par+h
            for tt in range(2):
                r.append(f"ds_read_b128 {vr(XB[b]+tt*4,4)}, v{XA+ks} offset:{tt*4096}")
            for ct in range(2):
                for u in range(2):
                    r.append(f"ds_read_b64_tr_b16 {vr(WB[b]+ct*4+2*u,2)}, v{WA+ct} offset:{ks*4096+u*1024}")
        return r
    for l in rds(0,0): A.i(l)
    pend=dma_list(1)[NPRE:]+dma_list(2)
    step=0
    for c in range(9):
        for s2 in range(2):
            par=step&1
            last=(c==8 and s2==1)
            A.i("s_waitcnt lgkmcnt(0)")
            if s2==1 and c<8:
                while pend:
                    for l in pend.pop(0): A.i(l)
                A.i(f"s_waitcnt vmcnt({6 if c<7 else 0})")
                A.i("s_barrier")
                if c+3<9: pend=dma_list(c+3)
                d = STAGE if (c+1)%3!=0 else -2*STAGE
                for r in list(range(XA,XA+4))+[WA,WA+1]:
                    if d>0: A.i(f"v_add_u32 v{r}, {d}, v{r}")
                    else: A.i(f"v_subrev_u32 v{r}, {-d}, v{r}")
            rd=[] if last else rds((s2+1)%2,par^1)
            n=0
            for i in range(4):
                for j in range(4):
                    jj=j if i%2==0 else 3-j
                    xf=XB[2*par+(i>>1)]+4*(i&1); wf=WB[2*par+(jj>>1)]+4*(jj&1)
                    d=ACC+(i*4+jj)*4
                    a,b=(xf,wf) if vtype else (wf,xf)
                    A.i(f"v_mfma_f32_16x16x32_bf16 {vr(d,4)}, {vr(a,4)}, {vr(b,4)}, {vr(d,4) if step else 0}")
                    for q,p in enumerate(RPOS):
                        if p==n and rd: A.i(rd[q])
                    if pend and (n in DPOS or (c==0 and n in (2,7,12))):
                        for l in pend.pop(0): A.i(l)
                    n+=1
            step+=1

def mainloop(A,vtype,prof):
    if M16==4: return mainloop16(A,vtype,prof)
    for l in reads(0,0): A.i(l)
    step=0
    pend=dma_list(1)[NPRE:]+dma_list(2)
    for c in range(9):
        for ks in range(4):
            buf=step&1
            last = (c==8 and ks==3)
            A.i("s_waitcnt lgkmcnt(0)")
            if ks==3 and c<8:
                assert not pend
                A.i(f"s_waitcnt vmcnt({6 if c<7 else 0})")
                A.i("s_barrier")
                if c+3<9: pend=dma_list(c+3)
                d = STAGE if (c+1)%3!=0 else -2*STAGE
                for r in list(range(XA,XA+4))+[WA,WA+1]:
                    if d>0: A.i(f"v_add_u32 v{r}, {d}, v{r}")
                    else: A.i(f"v_subrev_u32 v{r}, {-d}, v{r}")
            rd = [] if last else reads((ks+1)%4,buf^1)
            k=0
            if M16>=2:
                n=0
                for rep in range(2):
                    order=[(0,0),(0,1),(1,1),(1,0)] if M16==3 else [(0,0),(0,1),(1,0),(1,1)]
                    for tt,ct in order:
                        d=ACC+(tt*2+ct)*16+8*(step&1)+4*rep
                        xf=XF+buf*8+tt*4; wf=WF+buf*8+ct*4
                        a,b=(xf,wf) if vtype else (wf,xf)
                        A.i(f"v_mfma_f32_16x16x32_bf16 {vr(d,4)}, {vr(a,4)}, {vr(b,4)}, {vr(d,4)}")
                        if n<6 and rd: A.i(rd[n])
                        if pend and (n in (3,7) or (c==0 and n in (1,5))):
                            for l in pend.pop(0): A.i(l)
                        n+=1
                step+=1
                continue
            for tt in range(2):
                for ct in range(2):
                    d=ACC+(tt*2+ct)*16
                    xf=XF+buf*8+tt*4; wf=WF+buf*8+ct*4
                    if vtype: mfma(A,d,xf,wf,step==0)
                    else: mfma(A,d,wf,xf,step==0)
                    for l in rd[k:k+2]: A.i(l)
                    k+=2
                    if pend and ((tt*2+ct) in (1,3) or c==0):
                        for l in pend.pop(0): A.i(l)
            step+=1


DENSE=1
SM_MOD=''
SR_MOD=''
import qkperm
OOB=0x7fff0000
def qk_scalars(A):
    A.i("s_lshl_b32 s6, s4, 7")
    A.i(f"s_lshl_b32 s7, s{97 if MIX else 29}, 6")
    A.i("s_add_u32 s6, s6, s7")
    A.i("s_cmp_ge_u32 s6, 576")
    A.i("s_cselect_b32 s7, 576, 0")
    A.i("s_sub_u32 s6, s6, s7")
    A.i("s_lshr_b32 s32, s6, 2")
    A.i("s_cmp_eq_u32 s7, 576")
    csel(A,33,WS_KVA,WS_QA)
    csel(A,38,WS_KVB,WS_QB)
    csel(A,34,KV_HEAD,64*QT_B)
    csel(A,35,TILE_B,QT_B)
    csel(A,36,OFF_KR,1024)
    A.i(f"s_cselect_b32 s37, 1.0, {f32bits(C_SCALE)}")
    A.i("s_cselect_b32 s78, 1, 0")
    A.i("s_cmp_eq_u32 s26, 1")
    A.i("s_cselect_b32 s33, s38, s33")
    A.i("s_lshl_b32 s6, s3, 3")
    A.i("s_lshl_b32 s7, s28, 1")
    A.i("s_add_u32 s6, s6, s7")
    A.i("s_mul_i32 s38, s6, s35")
    A.i("s_add_u32 s39, s38, s35")

AMR=EA
ASR=EA+4
def single_list(m):
    info,tab,slots=qkperm.plan(m)
    out=[]
    for ct in range(2):
        for g in range(4):
            gp,j=divmod(g,2)
            byk={}
            for h in range(2):
                it=slots[(ct,gp,h)]
                if it[0]=='S':
                    a=it[1][j]; byk.setdefault(info[a][0],{})[h]=info[a]
            for k,d in byk.items(): out.append((ct,g,k,d))
    return out
def addr_pair(A,dst,base,c):
    for h in range(2):
        r=80+h
        if c[h] is None: A.i(f"s_mov_b32 s{r}, {OOB}")
        else:
            head,const,rem=c[h]
            A.i(f"s_mul_i32 s{r}, s34, {head}")
            A.i(f"s_add_u32 s{r}, s{r}, s33")
            if rem: A.i(f"s_add_u32 s{r}, s{r}, s36")
            if const: A.i(f"s_add_u32 s{r}, s{r}, {const}")
    A.i(f"v_mov_b32 v{T3}, s80")
    A.i(f"v_mov_b32 v{T4}, s81")
    A.i(f"v_cndmask_b32 v{dst}, v{T3}, v{T4}, s[74:75]")
    A.i(f"v_add_u32 v{dst}, v{dst}, v{base}")
def qk_setup(A,name):
    A.i("s_mov_b32 s72, 0x76543210")
    A.i("s_mov_b32 s73, 0xfedcba98")
    A.i("s_cmp_eq_u32 s27, 1")
    A.i(f"s_cbranch_scc1 {name}_setup_done")
    qk_scalars(A)
    A.i("s_lshr_b32 s79, s32, 4")
    A.i("s_add_u32 s76, s38, s34")
    A.i("s_add_u32 s77, s39, s34")
    A.i("s_mov_b32 s74, 0")
    A.i("s_mov_b32 s75, -1")
    A.i(f"v_and_b32 v{T0}, 31, v{V_LANE}")
    A.i(f"v_lshlrev_b32 v{T1}, 4, v{T0}")
    A.i(f"v_lshlrev_b32 v{T2}, 2, v{T0}")
    for m in range(9):
        if m<8:
            A.i(f"s_cmp_lg_u32 s79, {m}")
            A.i(f"s_cbranch_scc1 {name}_setup{m+1}")
        info,tab,slots=qkperm.plan(m)
        for ct in range(2):
            A.i(f"s_mov_b32 s{72+ct}, {hex(sum(tab[ct][q]<<(4*q) for q in range(8)))}")
        for ct in range(2):
            for gp in range(2):
                c=[]
                for h in range(2):
                    it=slots[(ct,gp,h)]
                    if it[0]=='G':
                        _,head,sl=info[it[1][0]]; c.append((head,(sl>>1)*512,False))
                    else: c.append(None)
                addr_pair(A,AMR+2*ct+gp,T1,c)
        for n,(ct,g,k,d) in enumerate(single_list(m)):
            c=[None,None]
            for h,inf in d.items():
                if k=='M': c[h]=(inf[1],(inf[2]>>1)*512+(inf[2]&1)*8,False)
                else: c[h]=(2*inf[1],0,True)
            addr_pair(A,ASR+n,T1 if k=='M' else T2,c)
        A.i(f"s_branch {name}_setup_done")
        if m<8: A.label(f"{name}_setup{m+1}")
    A.label(f"{name}_setup_done")
def qk_epilogue(A,name,prof):
    A.i("s_nop 7")
    A.i("s_cmp_eq_u32 s78, 1")
    A.i(f"s_cbranch_scc1 {name}_noscale")
    A.i("s_mov_b32 s36, s37")
    for r in range(0,64,2): A.i(f"v_pk_mul_f32 {vr(ACC+r,2)}, {vr(ACC+r,2)}, s[36:37]")
    A.label(f"{name}_noscale")
    for tt in range(2):
        for ct in range(2):
            b=ACC+(tt*2+ct)*8; a=ACC+(tt*2+ct)*16
            for r in range(8): A.i(f"v_cvt_pk_bf16_f32 v{b+r}, v{a+2*r}, v{a+2*r+1}")
            for gp in range(2):
                A.i(f"buffer_store_dwordx4 {vr(b+4*gp,4)}, v{AMR+2*ct+gp}, s[16:19], s{38+tt} offen {QK_MOD}")
    for m in range(9):
        if m<8:
            A.i(f"s_cmp_lg_u32 s79, {m}")
            A.i(f"s_cbranch_scc1 {name}_epi{m+1}")
        for n,(ct,g,k,d) in enumerate(single_list(m)):
            for tt in range(2):
                b=ACC+(tt*2+ct)*8+2*g
                if k=='M': A.i(f"buffer_store_dwordx2 {vr(b,2)}, v{ASR+n}, s[16:19], s{38+tt} offen {SM_MOD if k=='M' else SR_MOD}")
                else:
                    A.i(f"buffer_store_dword v{b}, v{ASR+n}, s[16:19], s{38+tt} offen {SM_MOD if k=='M' else SR_MOD}")
                    A.i(f"buffer_store_dword v{b+1}, v{ASR+n}, s[16:19], s{76+tt} offen {SM_MOD if k=='M' else SR_MOD}")
        if m<8:
            A.i(f"s_branch {name}_epi_done")
            A.label(f"{name}_epi{m+1}")
    A.label(f"{name}_epi_done")
    if prof: A.i("s_waitcnt vmcnt(0)")
    stamp(A,3,prof)
    stamp_store(A,6,prof,name)
    A.i("s_endpgm")

WBL2=0
_wb=[0]
def wb(A,name):
    if not WBL2: return
    _wb[0]+=1
    if WBL2==1:
        A.i("s_cmp_lg_u32 s5, 7")
        A.i(f"s_cbranch_scc1 {name}_wb{_wb[0]}")
    if WBL2 in (1,2):
        A.i("s_waitcnt vmcnt(0)")
        A.i("buffer_wbl2 sc1")
    A.label(f"{name}_wb{_wb[0]}")

def gen_wot(A,name):
    A.i("s_mov_b64 exec, -1")
    A.i(f"s_load_dwordx2 s[12:13], s[0:1], {KA_AWO}")
    if WOTB: A.i(f"s_load_dwordx2 s[22:23], s[0:1], {KA_BWO}")
    A.i("s_sub_u32 s44, s2, 224")
    A.i("s_lshl_b32 s44, s44, 3")
    A.i("s_add_u32 s44, s44, s5")
    A.i(f"v_lshlrev_b32 v{T4}, 4, v{V_LANE}")
    for r in range(4): A.i(f"v_mov_b32 v{136+r}, 0")
    A.i(f"s_cmp_ge_u32 s44, {NZ if WOTB else 8}")
    A.i(f"s_cbranch_scc1 {name}_nozero")
    A.i("s_lshl_b32 s6, s44, 10")
    A.i(f"s_add_u32 s6, s6, {WS_FLAG}")
    A.i(f"buffer_store_dwordx4 v[136:139], v{T4}, s[16:19], s6 offen{' sc1' if MONO else ''}")
    A.label(f"{name}_nozero")
    A.i(f"v_and_b32 v{T0}, 15, v{V_LANE}")
    if W64:
        A.i(f"v_lshlrev_b32 v150, 1, v{T0}")
        A.i(f"v_lshrrev_b32 v151, 2, v{T0}")
        A.i(f"v_lshlrev_b32 v151, 4, v151")
        A.i(f"v_and_b32 v{T0}, 3, v{T0}")
        A.i(f"v_lshl_add_u32 v151, v{T0}, 1, v151")
        A.i(f"v_mov_b32 v{T0}, 0")
    else:
        A.i(f"v_lshlrev_b32 v{T0}, 1, v{T0}")
    A.i(f"v_lshrrev_b32 v{T1}, 4, v{V_LANE}")
    A.i(f"v_mul_u32_u24 v{T2}, {72*1152}, v{T1}")
    A.i(f"v_add_u32 v{T2}, {16*1152}, v{T2}")
    A.i(f"v_add_u32 v{T2}, v{T2}, v{T0}")
    A.i(f"v_lshrrev_b32 v{T3}, 1, v{T1}")
    A.i(f"v_mul_u32_u24 v{T3}, {18*1152}, v{T3}")
    A.i(f"v_add_u32 v{T3}, v{T3}, v{T0}")
    A.i(f"v_and_b32 v{T1}, 1, v{T1}")
    A.i(f"v_mul_u32_u24 v{T1}, {4*1152}, v{T1}")
    A.i(f"v_add_u32 v{T3}, v{T3}, v{T1}")
    A.i("s_waitcnt lgkmcnt(0)")
    A.i("s_and_b32 s13, s13, 0xffff")
    A.i(f"s_mov_b32 s14, {576*1152}")
    A.i("s_mov_b32 s15, 0x20000")
    if WOTB:
        A.i("s_mov_b32 s24, s22")
        A.i("s_and_b32 s25, s23, 0xffff")
        A.i(f"s_mov_b32 s26, {576*1152}")
        A.i("s_mov_b32 s27, 0x20000")
    mats=[(12,100,124,WS_WOT)]+([(24,16,40,WS_WOTB)] if WOTB else [])
    for it in range(3):
        A.i(f"s_add_u32 s45, s44, {256*it}")
        A.i("s_min_u32 s45, s45, 647")
        A.i(f"s_mov_b32 s{48+it}, s45")
        A.i("s_mul_i32 s46, s45, 3641")
        A.i("s_lshr_b32 s46, s46, 16")
        A.i("s_mul_i32 s47, s46, 18")
        A.i("s_sub_u32 s47, s45, s47")
        if W64:
            A.i("s_mul_i32 s6, s46, 7282")
            A.i("s_lshr_b32 s6, s6, 16")
            A.i("s_mul_i32 s7, s6, 9")
            A.i("s_sub_u32 s7, s46, s7")
            A.i("s_mul_i32 s46, s6, 288")
            A.i("s_and_b32 s6, s6, 1")
            A.i("s_lshl_b32 s52, s6, 5")
            A.i("s_lshr_b32 s53, s7, 1")
            A.i("s_lshl_b32 s53, s53, 6")
            A.i("s_add_u32 s52, s52, s53")
            A.i("s_and_b32 s53, s7, 1")
            A.i("s_lshl_b32 s53, s53, 3")
            A.i("s_add_u32 s52, s52, s53")
            A.i("s_cmp_eq_u32 s6, 0")
            A.i("s_cselect_b32 s53, 256, 0")
            A.i("s_cmp_eq_u32 s7, 8")
            A.i("s_cselect_b32 s52, s53, s52")
            A.i("s_cselect_b64 s[54:55], -1, 0")
            A.i("s_add_u32 s46, s46, s52")
        else:
            A.i("s_lshl_b32 s46, s46, 5")
        A.i(f"s_mul_i32 s6, s47, {36*1152}")
        A.i("s_sub_u32 s7, s47, 16")
        A.i(f"s_mul_i32 s7, s7, {288*1152}")
        A.i("s_cmp_lt_u32 s47, 16")
        A.i("s_cselect_b32 s6, s6, s7")
        A.i("s_cselect_b64 vcc, -1, 0")
        A.i("s_add_u32 s46, s46, s6")
        A.i("s_cmp_lt_u32 s47, 16")
        A.i(f"v_cndmask_b32 v{T0}, v{T2}, v{T3}, vcc")
        if W64:
            A.i(f"v_cndmask_b32 v152, v151, v150, s[54:55]")
            A.i(f"v_add_u32 v{T0}, v{T0}, v152")
        for e in range(8):
            c1=((e&3)+8*(e>>2))*1152; c2=((e>>1)*18+(e&1))*1152
            A.i(f"s_mov_b32 s6, {c2}")
            A.i(f"s_cselect_b32 s6, {c1}, s6")
            A.i("s_add_u32 s6, s6, s46")
            A.i("s_cmp_lt_u32 s47, 16")
            for (srd,lr,pr,dst) in mats:
                A.i(f"buffer_load_ushort v{lr+8*it+e}, v{T0}, s[{srd}:{srd+3}], s6 offen")
    nm=len(mats)
    for it in range(3):
        A.i(f"s_waitcnt vmcnt({8*nm*(2-it)+nm*it})")
        for (srd,lr,pr,dst) in mats:
            for q in range(4):
                A.i(f"v_lshl_or_b32 v{pr+4*it+q}, v{lr+8*it+2*q+1}, 16, v{lr+8*it+2*q}")
            A.i(f"s_lshl_b32 s6, s{48+it}, 10")
            A.i(f"s_add_u32 s6, s6, {dst}")
            A.i(f"buffer_store_dwordx4 {vr(pr+4*it,4)}, v{T4}, s[16:19], s6 offen {WOT_MOD}".rstrip())
    if DAF:
        for r in range(4): A.i(f"v_mov_b32 v{140+r}, -1")
        A.i("s_mul_i32 s6, s44, 9216")
        A.i(f"s_add_u32 s6, s6, {WS_OB}")
        for k in range(9):
            if k and k%4==0: A.i("s_add_u32 s6, s6, 4096")
            A.i(f"buffer_store_dwordx4 v[140:143], v{T4}, s[16:19], s6 offen offset:{(k%4)*1024} {DAF_MOD}".rstrip())

def gen_gate(A,name,prof):
    A.label(f"{name}_gate")
    A.i(f"s_load_dwordx2 s[12:13], s[0:1], {KA_GW}")
    A.i(f"s_load_dwordx2 s[22:23], s[0:1], {KA_AWQKV}")
    A.i(f"s_load_dwordx2 s[24:25], s[0:1], {KA_BWQKV}")
    A.i("s_and_b32 s3, s2, 7")
    A.i("s_sub_u32 s4, s2, 224")
    A.i("s_lshr_b32 s4, s4, 3")
    A.i("s_and_b32 s28, s3, 1")
    A.i("s_lshr_b32 s29, s3, 1")
    if PF==2:
        A.i("s_lshl_b32 s26, s4, 3")
        A.i("s_add_u32 s26, s26, s5")
        A.i("s_cmp_ge_u32 s26, 9")
        A.i(f"s_cbranch_scc1 {name}_nopf")
        A.i("s_lshl_b32 s6, s26, 6")
        A.i(f"v_add_u32 v{T1}, s6, v{V_LANE}")
        A.i(f"v_mul_u32_u24 v{T0}, 3456, v{T1}")
        A.i("s_and_b32 s6, s29, 1")
        A.i("s_mul_i32 s6, s6, 1792")
        A.i(f"v_add_u32 v{T0}, s6, v{T0}")
        A.i("s_waitcnt lgkmcnt(0)")
        A.i("s_cmp_ge_u32 s29, 2")
        A.i("s_cselect_b32 s32, s24, s22")
        A.i("s_cselect_b32 s33, s25, s23")
        A.i("s_and_b32 s33, s33, 0xffff")
        A.i(f"s_mov_b32 s34, {576*3456}")
        A.i("s_mov_b32 s35, 0x20000")
        A.i(f"buffer_load_dword v{100}, v{T0}, s[32:35], 0 offen")
        A.label(f"{name}_nopf")
    if PF==1:
        A.i("s_lshl_b32 s26, s4, 3")
        A.i("s_add_u32 s26, s26, s5")
        A.i("s_cmp_ge_u32 s26, 30")
        A.i(f"s_cbranch_scc1 {name}_nopf")
        A.i("s_cmp_ge_u32 s26, 16")
        A.i(f"s_cbranch_scc1 {name}_pfw")
        A.i("s_lshl_b32 s6, s28, 10")
        A.i("s_lshl_b32 s7, s26, 6")
        A.i("s_add_u32 s6, s6, s7")
        A.i(f"v_add_u32 v{T0}, s6, v{V_LANE}")
        A.i(f"v_mul_u32_u24 v{T0}, 1152, v{T0}")
        A.i("s_waitcnt lgkmcnt(0)")
        A.i("s_mov_b32 s32, s8")
        A.i("s_and_b32 s33, s9, 0xffff")
        A.i(f"s_mov_b32 s34, {2048*1152}")
        A.i("s_mov_b32 s36, 128")
        A.i(f"s_branch {name}_pfgo")
        A.label(f"{name}_pfw")
        A.i("s_sub_u32 s6, s26, 16")
        A.i("s_lshl_b32 s6, s6, 6")
        A.i(f"v_add_u32 v{T1}, s6, v{V_LANE}")
        A.i(f"v_mul_u32_u24 v{T2}, 4682, v{T1}")
        A.i(f"v_lshrrev_b32 v{T2}, 16, v{T2}")
        A.i(f"v_mul_u32_u24 v{T3}, 14, v{T2}")
        A.i(f"v_sub_u32 v{T1}, v{T1}, v{T3}")
        A.i(f"v_mul_u32_u24 v{T0}, 3456, v{T2}")
        A.i(f"v_lshl_add_u32 v{T0}, v{T1}, 7, v{T0}")
        A.i("s_and_b32 s6, s29, 1")
        A.i("s_mul_i32 s6, s6, 1792")
        A.i(f"v_add_u32 v{T0}, s6, v{T0}")
        A.i("s_waitcnt lgkmcnt(0)")
        A.i("s_cmp_ge_u32 s29, 2")
        A.i("s_cselect_b32 s32, s24, s22")
        A.i("s_cselect_b32 s33, s25, s23")
        A.i("s_and_b32 s33, s33, 0xffff")
        A.i(f"s_mov_b32 s34, {576*3456}")
        A.i(f"s_mov_b32 s36, {64*3456}")
        A.label(f"{name}_pfgo")
        A.i("s_mov_b32 s35, 0x20000")
        A.i(f"s_mul_i32 s37, s36, {PF0}")
        for c in range(PF0,9):
            A.i(f"buffer_load_dword v{100+c}, v{T0}, s[32:35], s37 offen")
            if c<8: A.i("s_add_u32 s37, s37, s36")
        A.label(f"{name}_nopf")
    A.i("s_lshl_b32 s6, s28, 10")
    A.i("s_lshl_b32 s7, s29, 8")
    A.i("s_add_u32 s6, s6, s7")
    A.i("s_lshl_b32 s7, s4, 6")
    A.i("s_add_u32 s6, s6, s7")
    A.i("s_lshl_b32 s7, s5, 3")
    A.i("s_add_u32 s6, s6, s7")
    A.i(f"v_lshrrev_b32 v{T0}, 3, v{V_LANE}")
    A.i(f"v_add_u32 v{T0}, s6, v{T0}")
    A.i(f"v_and_b32 v{T1}, 7, v{V_LANE}")
    A.i(f"v_lshlrev_b32 v{T1}, 4, v{T1}")
    A.i(f"v_mul_u32_u24 v{T2}, 1152, v{T0}")
    A.i(f"v_add_u32 v{T2}, v{T2}, v{T1}")
    A.i("s_waitcnt lgkmcnt(0)")
    A.i("s_and_b32 s9, s9, 0xffff")
    A.i(f"s_mov_b32 s10, {2048*1152}")
    A.i("s_mov_b32 s11, 0x20000")
    A.i("s_and_b32 s13, s13, 0xffff")
    A.i("s_mov_b32 s14, 1152")
    A.i("s_mov_b32 s15, 0x20000")
    for s in range(9):
        A.i(f"buffer_load_dwordx4 {vr(16+4*s,4)}, v{T2}, s[8:11], 0 offen offset:{128*s}")
        A.i(f"buffer_load_dwordx4 {vr(64+4*s,4)}, v{T1}, s[12:15], 0 offen offset:{128*s}")
    A.i("s_mov_b32 s16, s20")
    A.i("s_and_b32 s17, s21, 0xffff")
    A.i("s_mov_b32 s18, 0x2000000")
    A.i("s_mov_b32 s19, 0x20000")
    A.i(f"v_mov_b32 v{T3}, 0")
    A.i(f"v_mov_b32 v{T4}, 0")
    for s in range(9):
        A.i(f"s_waitcnt vmcnt({2*(8-s)})")
        for r in range(4):
            acc = T3 if r%2==0 else T4
            A.i(f"v_dot2_f32_bf16 v{acc}, v{16+4*s+r}, v{64+4*s+r}, v{acc}")
    A.i("s_nop 4")
    A.i(f"v_add_f32 v{T3}, v{T3}, v{T4}")
    A.i("s_nop 1")
    A.i(f"v_add_f32_dpp v{T3}, v{T3}, v{T3} quad_perm:[1,0,3,2] row_mask:0xf bank_mask:0xf")
    A.i("s_nop 1")
    A.i(f"v_add_f32_dpp v{T3}, v{T3}, v{T3} quad_perm:[2,3,0,1] row_mask:0xf bank_mask:0xf")
    A.i("s_nop 1")
    A.i(f"v_add_f32_dpp v{T3}, v{T3}, v{T3} row_half_mirror row_mask:0xf bank_mask:0xf")
    A.i("s_nop 1")
    A.i(f"v_mul_f32 v{T3}, {f32bits(-1.4426950408889634)}, v{T3}")
    A.i(f"v_exp_f32 v{T3}, v{T3}")
    A.i("s_nop 0")
    A.i(f"v_add_f32 v{T3}, 1.0, v{T3}")
    A.i(f"v_rcp_f32 v{T3}, v{T3}")
    A.i(f"v_lshlrev_b32 v{T0}, 2, v{T0}")
    A.i(f"v_add_u32 v{T0}, {WS_G}, v{T0}")
    A.i(f"v_and_b32 v{T1}, 7, v{V_LANE}")
    A.i(f"v_cmp_eq_u32 vcc, 0, v{T1}")
    A.i("s_and_saveexec_b64 s[30:31], vcc")
    A.i(f"buffer_store_dword v{T3}, v{T0}, s[16:19], 0 offen{' sc1' if MONO else ''}")
    if AG: gen_wot(A,name)
    if CPF2:
        A.i("s_mov_b64 exec, -1")
        code_touch(A,name+"_ct2","k2_attn_kernel","k2_attn_kernel_codeend",5,250 if False else 10,12,72,False)
        A.i("s_waitcnt vmcnt(0)")
    if MONO:
        A.i("s_mov_b64 exec, -1")
        A.i("s_mov_b32 s67, 3")
        A.i(f"v_mov_b32 v{FLV}, {OOB}")
        A.i("s_mov_b32 s96, 0")
        A.i(f"s_branch {name}_trans")
        A.label(f"{name}_idle")
        A.i("s_mov_b32 s67, 2")
        A.i(f"v_mov_b32 v{FLV}, {OOB}")
        A.i("s_mov_b32 s96, 0")
        A.i(f"s_branch {name}_trans")
    A.label(f"{name}_end")
    A.i("s_endpgm")

CPF2=0
R16=0
AG=0
LAUNCH=None
def gen_k1(A,name="k1_qkv_kernel",prof=False):
    if R16:
        import k1r
        return k1r.gen_k1(A,name,prof)
    kernel_header(A,name)
    A.i("s_cmp_ge_u32 s2, 256")
    A.i(f"s_cbranch_scc1 {name}_end")
    A.i(f"s_load_dwordx2 s[20:21], s[0:1], {KA_WS}")
    A.i(f"s_load_dwordx2 s[8:9], s[0:1], {KA_X}")
    if prof: A.i("s_memrealtime s[58:59]")
    stamp(A,0,prof)
    A.i(f"v_and_b32 v{V_LANE}, 63, v0")
    A.i(f"v_lshrrev_b32 v{T0}, 6, v0")
    A.i("s_nop 0")
    A.i(f"v_readfirstlane_b32 s5, v{T0}")
    A.i("s_cmp_ge_u32 s2, 224")
    A.i(f"s_cbranch_scc1 {name}_gate")
    A.i(f"s_load_dwordx2 s[12:13], s[0:1], {KA_AWQKV}")
    A.i(f"s_load_dwordx2 s[14:15], s[0:1], {KA_BWQKV}")
    A.i("s_mov_b32 s70, s5")
    A.i("s_and_b32 s6, s2, 7")
    A.i("s_lshr_b32 s7, s2, 3")
    A.i("s_and_b32 s3, s6, 1")
    A.i("s_lshl_b32 s3, s3, 2")
    A.i("s_and_b32 s30, s7, 3")
    A.i("s_add_u32 s3, s3, s30")
    A.i("s_lshr_b32 s6, s6, 1")
    A.i("s_mul_i32 s6, s6, 7")
    A.i("s_lshr_b32 s7, s7, 2")
    A.i("s_add_u32 s4, s6, s7")
    A.i("s_cmp_ge_u32 s4, 14")
    A.i("s_cselect_b32 s26, 1, 0")
    A.i("s_mul_i32 s6, s26, 14")
    A.i("s_sub_u32 s4, s4, s6")
    A.i("s_cmp_ge_u32 s4, 9")
    A.i("s_cselect_b32 s27, 1, 0")
    A.i("s_and_b32 s28, s5, 3")
    A.i("s_lshr_b32 s29, s5, 2")
    A.i(f"v_lshrrev_b32 v{T0}, 3, v{V_LANE}")
    A.i(f"v_mul_u32_u24 v{T0}, 1152, v{T0}")
    A.i(f"v_and_b32 v{T1}, 7, v{V_LANE}")
    A.i(f"v_lshrrev_b32 v{T2}, 4, v{V_LANE}")
    A.i(f"v_xor_b32 v{T1}, v{T1}, v{T2}")
    A.i(f"v_lshl_add_u32 v{DXE}, v{T1}, 4, v{T0}")
    A.i(f"v_xor_b32 v{DXO}, 64, v{DXE}")
    A.i(f"v_mul_u32_u24 v{T0}, 3456, v{T2}")
    A.i(f"v_and_b32 v{T1}, 15, v{V_LANE}")
    A.i(f"v_lshlrev_b32 v{T2}, 2, v{T2}")
    A.i(f"v_xor_b32 v{T1}, v{T1}, v{T2}")
    A.i(f"v_lshl_add_u32 v{DW}, v{T1}, 4, v{T0}")
    A.i("s_lshl_b32 s6, s3, 8")
    A.i("s_lshl_b32 s7, s5, 5")
    A.i("s_add_u32 s6, s6, s7")
    A.i("s_mul_i32 s22, s6, 1152")
    A.i(f"s_mul_i32 s23, s5, {8*3456}")
    A.i("s_lshl_b32 s6, s4, 8")
    A.i("s_add_u32 s23, s23, s6")
    A.i("s_lshl_b32 s24, s5, 12")
    A.i("s_lshl_b32 s25, s5, 11")
    A.i(f"s_add_u32 s25, s25, {WOFF}")
    A.i("s_waitcnt lgkmcnt(0)")
    A.i("s_and_b32 s9, s9, 0xffff")
    A.i(f"s_mov_b32 s10, {2048*1152}")
    A.i("s_mov_b32 s11, 0x20000")
    A.i("s_cmp_eq_u32 s26, 1")
    A.i("s_cselect_b32 s12, s14, s12")
    A.i("s_cselect_b32 s13, s15, s13")
    A.i("s_and_b32 s13, s13, 0xffff")
    A.i(f"s_mov_b32 s14, {576*3456}")
    A.i("s_mov_b32 s15, 0x20000")
    stamp(A,4,prof)
    dma_chunk(A,0)
    for g in dma_list(1)[:NPRE]:
        for l in g: A.i(l)
    if PF2:
        A.i("s_lshr_b32 s6, s2, 3")
        A.i("s_lshl_b32 s6, s6, 3")
        A.i("s_add_u32 s6, s6, s5")
        A.i("s_mul_i32 s7, s6, 2185")
        A.i("s_lshr_b32 s7, s7, 16")
        A.i("s_mul_i32 s30, s7, 30")
        A.i("s_sub_u32 s30, s6, s30")
        A.i(f"s_add_u32 s7, s7, {PF0}")
        A.i("s_and_b32 s31, s2, 1")
        A.i("s_cmp_ge_u32 s30, 16")
        A.i(f"s_cbranch_scc1 {name}_pf2w")
        A.i("s_lshl_b32 s31, s31, 10")
        A.i("s_lshl_b32 s30, s30, 6")
        A.i("s_add_u32 s30, s30, s31")
        A.i(f"v_add_u32 v{T0}, s30, v{V_LANE}")
        A.i(f"v_mul_u32_u24 v{T0}, 1152, v{T0}")
        A.i("s_lshl_b32 s6, s7, 7")
        A.i("s_cmp_ge_u32 s7, 9")
        A.i("s_cselect_b32 s6, 0x7fff0000, s6")
        A.i(f"buffer_load_dword v{EA}, v{T0}, s[8:11], s6 offen")
        A.i(f"s_branch {name}_pf2e")
        A.label(f"{name}_pf2w")
        A.i("s_sub_u32 s30, s30, 16")
        A.i("s_lshl_b32 s30, s30, 6")
        A.i(f"v_add_u32 v{T1}, s30, v{V_LANE}")
        A.i(f"v_mul_u32_u24 v{T2}, 4682, v{T1}")
        A.i(f"v_lshrrev_b32 v{T2}, 16, v{T2}")
        A.i(f"v_mul_u32_u24 v{T3}, 14, v{T2}")
        A.i(f"v_sub_u32 v{T1}, v{T1}, v{T3}")
        A.i(f"v_mul_u32_u24 v{T0}, 3456, v{T2}")
        A.i(f"v_lshl_add_u32 v{T0}, v{T1}, 7, v{T0}")
        A.i("s_bfe_u32 s30, s2, 0x10001")
        A.i("s_mul_i32 s30, s30, 1792")
        A.i(f"v_add_u32 v{T0}, s30, v{T0}")
        A.i(f"s_mul_i32 s6, s7, {64*3456}")
        A.i(f"buffer_load_dword v{EA}, v{T0}, s[12:15], s6 offen")
        A.label(f"{name}_pf2e")
    stamp(A,5,prof)
    A.i("s_mov_b32 s16, s20")
    A.i("s_and_b32 s17, s21, 0xffff")
    A.i("s_mov_b32 s18, 0x2000000")
    A.i("s_mov_b32 s19, 0x20000")
    A.i(f"v_and_b32 v{T0}, 31, v{V_LANE}")
    A.i(f"v_lshrrev_b32 v{T1}, 5, v{V_LANE}")
    A.i(f"v_bfe_u32 v{T2}, v{V_LANE}, 1, 3")
    A.i(f"v_xor_b32 v{T2}, v{T1}, v{T2}")
    A.i(f"v_lshlrev_b32 v{T2}, 4, v{T2}")
    A.i(f"v_lshl_add_u32 v{T2}, v{T0}, 7, v{T2}")
    A.i("s_lshl_b32 s6, s28, 13")
    A.i(f"v_add_u32 v{XA}, s6, v{T2}")
    for ks in range(1,4): A.i(f"v_xor_b32 v{XA+ks}, {ks<<5}, v{XA}")
    if DENSE:
        qk_setup(A,name)
    else:
        A.i("s_mov_b32 s72, 0x76543210")
        A.i("s_mov_b32 s73, 0xfedcba98")
    A.i(f"v_lshrrev_b32 v{T1}, 5, v{V_LANE}")
    A.i(f"v_bfe_u32 v{T0}, v{V_LANE}, 2, 2")
    A.i(f"v_lshl_add_u32 v{T2}, v{T1}, 3, v{T0}")
    A.i(f"v_lshlrev_b32 v{T2}, 8, v{T2}")
    A.i(f"v_add_u32 v{T2}, {WOFF}, v{T2}")
    A.i(f"v_bfe_u32 v{T1}, v{V_LANE}, 4, 1")
    A.i(f"v_and_b32 v{T3}, 3, v{V_LANE}")
    A.i(f"v_lshl_add_u32 v{T1}, v{T1}, 2, v{T3}")
    A.i(f"v_lshlrev_b32 v{T1}, 2, v{T1}")
    A.i("s_lshl_b32 s6, s29, 1")
    for ct in range(2):
        A.i(f"v_lshrrev_b32 v{T3}, v{T1}, s{72+ct}")
        A.i(f"v_bfe_u32 v{T4}, v{T3}, 3, 1")
        A.i(f"v_or_b32 v{T4}, s6, v{T4}")
        A.i(f"v_xor_b32 v{T4}, v{T4}, v{T0}")
        A.i(f"v_lshl_add_u32 v{T4}, v{T4}, 6, v{T2}")
        A.i(f"v_and_b32 v{T3}, 7, v{T3}")
        A.i(f"v_lshl_add_u32 v{WA+ct}, v{T3}, 3, v{T4}")
    A.i(f"s_waitcnt vmcnt({NPRE+(1 if PF2 else 0)})")
    A.i("s_barrier")
    stamp(A,1,prof)
    A.i("s_cmp_eq_u32 s27, 1")
    A.i(f"s_cbranch_scc1 {name}_vtype")
    mainloop(A,False,prof)
    stamp(A,2,prof)
    if DENSE:
        qk_epilogue(A,name,prof)
    if not DENSE: qk_scalars(A)
    A.i(f"v_and_b32 v{T0}, 31, v{V_LANE}")
    A.i(f"v_lshrrev_b32 v{T1}, 5, v{V_LANE}")
    A.i(f"v_add_u32 v{T1}, s32, v{T1}")
    A.i("s_nop 7")
    if FAKE:
        A.i("s_mov_b32 s36, s37")
        for r in range(0,64,2): A.i(f"v_pk_mul_f32 {vr(ACC+r,2)}, {vr(ACC+r,2)}, s[36:37]")
        for r in range(32): A.i(f"v_cvt_pk_bf16_f32 v{ACC+r}, v{ACC+2*r}, v{ACC+2*r+1}")
        A.i("s_lshl_b32 s6, s2, 3")
        A.i("s_add_u32 s6, s6, s5")
        A.i("s_lshl_b32 s6, s6, 13")
        A.i(f"v_lshlrev_b32 v{EA}, 4, v{V_LANE}")
        A.i(f"v_lshlrev_b32 v{EA+1}, 2, v{V_LANE}")
        for k in range(8):
            A.i(f"buffer_store_dwordx4 {vr(ACC+4*k,4)}, v{EA}, s[16:19], s6 offen {QK_MOD}")
            A.i("s_add_u32 s6, s6, 1024")
        A.i("s_sub_u32 s6, s6, 8192")
        for k in range(2):
            A.i(f"buffer_store_dword v{ACC+k}, v{EA+1}, s[16:19], s6 offen {QK_MOD}")
            A.i("s_add_u32 s6, s6, 256")
        if prof: A.i("s_waitcnt vmcnt(0)")
        stamp(A,3,prof)
        stamp_store(A,6,prof,name)
        A.i("s_endpgm")
    for r in range(64): A.i(f"v_mul_f32 v{ACC+r}, s37, v{ACC+r}")
    for r in range(32): A.i(f"v_cvt_pk_bf16_f32 v{ACC+r}, v{ACC+2*r}, v{ACC+2*r+1}")
    G_=EA; P_=EA+1; R_=EA+2; ODD=EA+3; AM=EA+4; AR=EA+5
    for ct in range(2):
        for g in range(4):
            A.i(f"v_add_u32 v{G_}, {8*ct+2*g}, v{T1}")
            A.i(f"v_mul_u32_u24 v{P_}, 7282, v{G_}")
            A.i(f"v_lshrrev_b32 v{P_}, 16, v{P_}")
            A.i(f"v_mul_u32_u24 v{R_}, 9, v{P_}")
            A.i(f"v_sub_u32 v{R_}, v{G_}, v{R_}")
            A.i(f"v_cmp_lt_u32 vcc, 4, v{R_}")
            A.i(f"v_cndmask_b32 v{ODD}, 0, 1, vcc")
            A.i(f"v_lshl_add_u32 v{AM}, v{P_}, 1, v{ODD}")
            A.i(f"v_mul_u32_u24 v{ODD}, 5, v{ODD}")
            A.i(f"v_sub_u32 v{ODD}, v{R_}, v{ODD}")
            A.i(f"v_mul_u32_u24 v{AM}, s34, v{AM}")
            A.i(f"v_lshl_add_u32 v{AM}, v{T0}, 4, v{AM}")
            A.i(f"v_lshrrev_b32 v{AR}, 1, v{ODD}")
            A.i(f"v_lshl_add_u32 v{AM}, v{AR}, 9, v{AM}")
            A.i(f"v_and_b32 v{AR}, 1, v{ODD}")
            A.i(f"v_lshl_add_u32 v{AM}, v{AR}, 3, v{AM}")
            A.i(f"v_add_u32 v{AM}, s33, v{AM}")
            A.i(f"v_cmp_eq_u32 vcc, 4, v{R_}")
            A.i(f"v_mov_b32 v{AR}, 0x7fff0000")
            A.i(f"v_cndmask_b32 v{AM}, v{AM}, v{AR}, vcc")
            for tt in range(2):
                b=ACC+(tt*2+ct)*8+2*g
                A.i(f"buffer_store_dwordx2 {vr(b,2)}, v{AM}, s[16:19], s{38+tt} offen {QK_MOD}")
            lab=f"{name}_norem_{ct}_{g}"
            A.i(f"s_cbranch_vccz {lab}")
            A.i("s_and_saveexec_b64 s[30:31], vcc")
            A.i(f"v_lshlrev_b32 v{P_}, 1, v{P_}")
            A.i(f"v_mul_u32_u24 v{AR}, s34, v{P_}")
            A.i(f"v_lshl_add_u32 v{AR}, v{T0}, 2, v{AR}")
            A.i(f"v_add_u32 v{AR}, s33, v{AR}")
            A.i(f"v_add_u32 v{AR}, s36, v{AR}")
            A.i(f"v_add_u32 v{P_}, s34, v{AR}")
            for tt in range(2):
                b=ACC+(tt*2+ct)*8+2*g
                A.i(f"buffer_store_dword v{b}, v{AR}, s[16:19], s{38+tt} offen {QK_MOD}")
                A.i(f"buffer_store_dword v{b+1}, v{P_}, s[16:19], s{38+tt} offen {QK_MOD}")
            A.i("s_mov_b64 exec, s[30:31]")
            A.label(lab)
    wb(A,name)
    if prof: A.i("s_waitcnt vmcnt(0)")
    stamp(A,3,prof)
    stamp_store(A,6,prof,name)
    A.i("s_endpgm")
    A.label(f"{name}_vtype")
    mainloop(A,True,prof)
    stamp(A,2,prof)
    A.i("s_lshl_b32 s6, s4, 7")
    A.i("s_lshl_b32 s7, s29, 6")
    A.i("s_add_u32 s6, s6, s7")
    A.i("s_sub_u32 s32, s6, 1152")
    A.i("s_cmp_ge_u32 s32, 576")
    A.i(f"s_cbranch_scc1 {name}_end")
    A.i("s_cmp_eq_u32 s26, 1")
    csel(A,33,WS_KVB+OFF_V,WS_KVA+OFF_V)
    A.i("s_lshl_b32 s6, s3, 3")
    A.i("s_lshl_b32 s7, s28, 1")
    A.i("s_add_u32 s6, s6, s7")
    A.i(f"s_mul_i32 s38, s6, {TILE_B}")
    A.i(f"s_add_u32 s39, s38, {TILE_B}")
    A.i(f"s_mov_b32 s34, {KV_HEAD}")
    A.i(f"v_and_b32 v{T0}, 31, v{V_LANE}")
    A.i(f"v_lshrrev_b32 v{T1}, 5, v{V_LANE}")
    A.i(f"v_mul_u32_u24 v{T1}, 304, v{T1}")
    A.i(f"v_add_u32 v{T1}, s33, v{T1}")
    A.i(f"v_add_u32 v{T0}, s32, v{T0}")
    for r in range(4): A.i(f"v_mov_b32 v{XF+r}, 0x3f803f80")
    A.i("s_nop 7")
    for r in range(32): A.i(f"v_cvt_pk_bf16_f32 v{ACC+r}, v{ACC+2*r}, v{ACC+2*r+1}")
    for ct in range(2):
        VC=EA; HD=EA+1; DM=EA+2; AD=EA+3
        A.i(f"v_add_u32 v{VC}, {32*ct}, v{T0}")
        A.i(f"v_mul_u32_u24 v{HD}, 3641, v{VC}")
        A.i(f"v_lshrrev_b32 v{HD}, 16, v{HD}")
        A.i(f"v_mul_u32_u24 v{DM}, 18, v{HD}")
        A.i(f"v_sub_u32 v{DM}, v{VC}, v{DM}")
        A.i(f"v_mul_u32_u24 v{AD}, s34, v{HD}")
        A.i(f"v_lshl_add_u32 v{AD}, v{DM}, 4, v{AD}")
        A.i(f"v_add_u32 v{AD}, v{T1}, v{AD}")
        for tt in range(2):
            b=ACC+(tt*2+ct)*8
            A.i(f"buffer_store_dwordx4 {vr(b,4)}, v{AD}, s[16:19], s{38+tt} offen {V_MOD}")
            A.i(f"buffer_store_dwordx4 {vr(b+4,4)}, v{AD}, s[16:19], s{38+tt} offen offset:608 {V_MOD}")
        A.i(f"v_cmp_eq_u32 vcc, 17, v{DM}")
        A.i("s_and_saveexec_b64 s[30:31], vcc")
        for tt in range(2):
            A.i(f"buffer_store_dwordx4 {vr(XF,4)}, v{AD}, s[16:19], s{38+tt} offen offset:16 {V_MOD}")
            A.i(f"buffer_store_dwordx4 {vr(XF,4)}, v{AD}, s[16:19], s{38+tt} offen offset:{608+16} {V_MOD}")
        A.i("s_mov_b64 exec, s[30:31]")
    wb(A,name)
    if prof: A.i("s_waitcnt vmcnt(0)")
    stamp(A,3,prof)
    stamp_store(A,6,prof,name)
    A.i("s_endpgm")
    gen_gate(A,name,prof)
    kernel_footer(A,name,160 if M16==4 else NV)
```

```python
from asmlib import *
import k1 as K
from k1 import csel,OOB,f32bits
V_LANE=1; T0=11; T1=12; T2=13; T3=14; T4=15
def daf_marks(A,r):
    for q in range(4): A.i(f"v_mov_b32 v{r+q}, -1")
    A.i(f"v_lshlrev_b32 v{r+4}, 4, v{V_LANE}")
    A.i(f"v_mov_b32 v{r+5}, {OOB}")
    A.i(f"v_cmp_gt_u32 vcc, 8, v{V_LANE}")
    A.i(f"v_cndmask_b32 v{r+5}, v{r+5}, v{r+4}, vcc")
    A.i("s_lshl_b32 s6, s2, 3")
    A.i("s_add_u32 s6, s6, s5")
    A.i("s_mul_i32 s6, s6, 1152")
    A.i(f"s_add_u32 s6, s6, {WS_OB}")
    A.i(f"buffer_store_dwordx4 {vr(r,4)}, v{r+4}, s[16:19], s6 offen {K.DAF_MOD}".rstrip())
    A.i(f"buffer_store_dwordx4 {vr(r,4)}, v{r+5}, s[16:19], s6 offen offset:1024 {K.DAF_MOD}".rstrip())
def aux16(A,name,prof,dafd):
    A.label(f"{name}_gate")
    A.i(f"s_load_dwordx2 s[12:13], s[0:1], {KA_GW}")
    A.i(f"s_load_dwordx2 s[22:23], s[0:1], {KA_AWO}")
    A.i(f"s_load_dwordx2 s[24:25], s[0:1], {KA_BWO}")
    A.i("s_sub_u32 s44, s2, 240")
    A.i("s_lshl_b32 s44, s44, 3")
    A.i("s_add_u32 s44, s44, s5")
    A.i("s_lshl_b32 s6, s44, 4")
    A.i(f"v_lshrrev_b32 v{T0}, 3, v{V_LANE}")
    A.i(f"v_add_u32 v{T0}, s6, v{T0}")
    A.i(f"v_and_b32 v{T1}, 7, v{V_LANE}")
    A.i(f"v_lshlrev_b32 v{T1}, 4, v{T1}")
    A.i(f"v_mul_u32_u24 v{T2}, 1152, v{T0}")
    A.i(f"v_add_u32 v{T2}, v{T2}, v{T1}")
    AB=[2,4]; A0=[6,8]
    for r in range(2):
        U=48+4*r
        A.i(f"s_add_u32 s{U}, s44, {128*r}")
        A.i(f"s_cmp_ge_u32 s{U}, 90")
        A.i(f"s_cselect_b32 s{U+1}, 1, 0")
        A.i(f"s_mul_i32 s6, s{U+1}, 90")
        A.i(f"s_sub_u32 s6, s{U}, s6")
        A.i("s_mul_i32 s7, s6, 13108")
        A.i(f"s_lshr_b32 s{U+2}, s7, 16")
        A.i(f"s_mul_i32 s7, s{U+2}, 5")
        A.i(f"s_sub_u32 s{U+3}, s6, s7")
        A.i(f"s_lshl_b32 s6, s{U+3}, 4")
        A.i(f"v_and_b32 v{T3}, 15, v{V_LANE}")
        A.i(f"v_add_u32 v{T3}, s6, v{T3}")
        A.i(f"v_lshrrev_b32 v{T4}, 4, v{V_LANE}")
        A.i(f"v_mul_u32_u24 v16, {72*1152}, v{T4}")
        A.i(f"v_add_u32 v16, {16*1152}, v16")
        A.i(f"v_lshrrev_b32 v17, 1, v{T4}")
        A.i(f"v_mul_u32_u24 v17, {18*1152}, v17")
        A.i(f"v_and_b32 v18, 1, v{T4}")
        A.i(f"v_mul_u32_u24 v18, {4*1152}, v18")
        A.i("v_add_u32 v17, v17, v18")
        A.i(f"s_cmp_lt_u32 s{U+2}, 16")
        A.i("s_cselect_b64 vcc, -1, 0")
        A.i("v_cndmask_b32 v16, v16, v17, vcc")
        A.i(f"v_lshl_add_u32 v16, v{T3}, 4, v16")
        A.i(f"v_mul_u32_u24 v17, 3641, v{T3}")
        A.i("v_lshrrev_b32 v17, 16, v17")
        A.i("v_mul_u32_u24 v18, 18, v17")
        A.i(f"v_sub_u32 v18, v{T3}, v18")
        A.i("v_and_b32 v19, 1, v17")
        A.i("v_lshlrev_b32 v19, 1, v19")
        A.i("v_sub_u32 v19, v18, v19")
        A.i("v_mul_u32_u24 v17, 9, v17")
        A.i("v_lshrrev_b32 v20, 2, v19")
        A.i("v_lshl_add_u32 v20, v20, 1, v17")
        A.i("v_add_u32 v17, 8, v17")
        A.i("v_and_b32 v21, 3, v19")
        A.i("v_lshlrev_b32 v21, 2, v21")
        A.i("v_and_b32 v18, 1, v18")
        A.i("v_lshlrev_b32 v18, 3, v18")
        A.i("v_cmp_le_u32 vcc, 16, v19")
        A.i("v_cndmask_b32 v20, v20, v17, vcc")
        A.i("v_cndmask_b32 v21, v21, v18, vcc")
        A.i("v_mov_b32 v17, 18432")
        A.i("v_mov_b32 v18, 64")
        A.i("v_cndmask_b32 v17, v17, v18, vcc")
        A.i("v_mul_u32_u24 v20, 18432, v20")
        A.i(f"v_lshl_add_u32 v21, v{T4}, 4, v21")
        A.i("v_lshl_add_u32 v20, v21, 4, v20")
        A.i("v_add_u32 v17, v20, v17")
        A.i(f"v_mov_b32 v18, {OOB}")
        A.i(f"s_cmp_lt_u32 s{U}, 180")
        A.i("s_cselect_b32 s6, 72, 0")
        A.i(f"v_cmp_gt_u32 vcc, s6, v{T3}")
        A.i(f"v_cndmask_b32 v{AB[r]}, v18, v16, vcc")
        A.i(f"v_cndmask_b32 v{A0[r]}, v18, v20, vcc")
        A.i(f"v_cndmask_b32 v{A0[r]+1}, v18, v17, vcc")
        A.i(f"s_mul_i32 s6, s{U+2}, {36*1152}")
        A.i(f"s_sub_u32 s7, s{U+2}, 16")
        A.i(f"s_mul_i32 s7, s7, {288*1152}")
        A.i(f"s_cmp_lt_u32 s{U+2}, 16")
        A.i(f"s_cselect_b32 s{U+3}, s6, s7")
        A.i(f"s_cselect_b32 s{60+r}, 1, 0")
        A.i(f"s_lshl_b32 s6, s{U+2}, 10")
        A.i(f"s_cmp_eq_u32 s{U+1}, 1")
        csel(A,U,WS_WOTB,WS_WOT)
        A.i(f"s_add_u32 s{U}, s{U}, s6")
    A.i("s_waitcnt lgkmcnt(0)")
    A.i("s_and_b32 s9, s9, 0xffff")
    A.i(f"s_mov_b32 s10, {2048*1152}")
    A.i("s_mov_b32 s11, 0x20000")
    A.i("s_and_b32 s13, s13, 0xffff")
    A.i("s_mov_b32 s14, 1152")
    A.i("s_mov_b32 s15, 0x20000")
    A.i("s_mov_b32 s16, s20")
    A.i("s_and_b32 s17, s21, 0xffff")
    A.i("s_mov_b32 s18, 0x2000000")
    A.i("s_mov_b32 s19, 0x20000")
    X0=16; GW=64; X1=100
    A.i(f"s_mov_b32 s62, {8*1152}")
    LR=[136,168]
    nld=0
    for r in range(2):
        U=48+4*r
        A.i(f"s_cmp_eq_u32 s{U+1}, 1")
        A.i("s_cselect_b32 s28, s24, s22")
        A.i("s_cselect_b32 s29, s25, s23")
        A.i("s_and_b32 s29, s29, 0xffff")
        A.i(f"s_mov_b32 s30, {576*1152}")
        A.i("s_mov_b32 s31, 0x20000")
        for e in range(8):
            c1=((e&3)+8*(e>>2))*1152; c2=((e>>1)*18+(e&1))*1152
            A.i(f"s_cmp_eq_u32 s{60+r}, 1")
            csel(A,6,c1,c2)
            A.i(f"s_add_u32 s6, s6, s{U+3}")
            A.i(f"buffer_load_dwordx4 {vr(LR[r]+4*e,4)}, v{AB[r]}, s[28:31], s6 offen")
    for q in range(9):
        A.i(f"buffer_load_dwordx4 {vr(GW+4*q,4)}, v{T1}, s[12:15], 0 offen offset:{128*q}")
        A.i(f"buffer_load_dwordx4 {vr(X0+4*q,4)}, v{T2}, s[8:11], 0 offen offset:{128*q}")
        A.i(f"buffer_load_dwordx4 {vr(X1+4*q,4)}, v{T2}, s[8:11], s62 offen offset:{128*q}")
    A.i(f"v_lshlrev_b32 v10, 4, v{V_LANE}")
    for q in range(4): A.i(f"v_mov_b32 v{200+q}, 0")
    A.i(f"s_cmp_lt_u32 s44, {K.NZ}")
    A.i(f"s_cselect_b32 s7, 0, {OOB}")
    A.i("s_lshl_b32 s6, s44, 10")
    A.i("s_add_u32 s6, s6, s7")
    A.i(f"v_add_u32 v10, s6, v10")
    A.i(f"s_mov_b32 s6, {WS_FLAG}")
    A.i(f"buffer_store_dwordx4 v[200:203], v10, s[16:19], s6 offen")
    nst=1
    if dafd:
        daf_marks(A,204); nst+=2
    else:
        for q in range(4): A.i(f"v_mov_b32 v{204+q}, -1")
        A.i(f"v_lshlrev_b32 v208, 4, v{V_LANE}")
        A.i("s_mul_i32 s6, s44, 18432")
        A.i(f"s_add_u32 s6, s6, {WS_OB}")
        for k in range(18):
            if k and k%4==0: A.i("s_add_u32 s6, s6, 4096")
            A.i(f"buffer_store_dwordx4 v[204:207], v208, s[16:19], s6 offen offset:{(k%4)*1024} {K.DAF_MOD}".rstrip())
        nst+=18
    OUT=210
    A.i("s_mov_b32 s32, 0x05040100")
    A.i("s_mov_b32 s33, 0x07060302")
    for r in range(2):
        U=48+4*r
        left=(8 if r==0 else 0)+27+nst+(8 if r==1 else 0)
        A.i(f"s_waitcnt vmcnt({min(left,63)})")
        for j in range(8):
            for w in range(4):
                A.i(f"v_perm_b32 v{OUT+4*j+w}, v{LR[r]+4*(2*w+1)+(j>>1)}, v{LR[r]+4*(2*w)+(j>>1)}, s{32+(j&1)}")
        for j in range(8):
            A.i(f"buffer_store_dwordx4 {vr(OUT+4*j,4)}, v{A0[r]+(j>>2)}, s[16:19], s{U} offen offset:{16*(j&3)} {K.WOT_MOD}".rstrip())
        if r==0: A.i("s_nop 1")
    A.i(f"v_mov_b32 v2, 0")
    A.i(f"v_mov_b32 v3, 0")
    A.i(f"v_mov_b32 v4, 0")
    A.i(f"v_mov_b32 v5, 0")
    for q in range(9):
        A.i(f"s_waitcnt vmcnt({min(3*(8-q)+nst+16,63)})")
        for x in range(4):
            A.i(f"v_dot2_f32_bf16 v{2+(x&1)}, v{X0+4*q+x}, v{GW+4*q+x}, v{2+(x&1)}")
            A.i(f"v_dot2_f32_bf16 v{4+(x&1)}, v{X1+4*q+x}, v{GW+4*q+x}, v{4+(x&1)}")
    A.i("s_nop 4")
    A.i("v_add_f32 v2, v2, v3")
    A.i("v_add_f32 v4, v4, v5")
    for dpp in ("quad_perm:[1,0,3,2]","quad_perm:[2,3,0,1]","row_half_mirror"):
        A.i("s_nop 1")
        A.i(f"v_add_f32_dpp v2, v2, v2 {dpp} row_mask:0xf bank_mask:0xf")
        A.i(f"v_add_f32_dpp v4, v4, v4 {dpp} row_mask:0xf bank_mask:0xf")
    A.i(f"v_and_b32 v6, 7, v{V_LANE}")
    A.i("v_cmp_eq_u32 vcc, 1, v6")
    A.i("s_nop 1")
    A.i("v_cndmask_b32 v2, v2, v4, vcc")
    A.i(f"v_mul_f32 v2, {f32bits(-1.4426950408889634)}, v2")
    A.i("v_exp_f32 v2, v2")
    A.i("s_nop 0")
    A.i("v_add_f32 v2, 1.0, v2")
    A.i("v_rcp_f32 v2, v2")
    A.i(f"v_lshl_add_u32 v{T0}, v6, 3, v{T0}")
    A.i(f"v_lshlrev_b32 v{T0}, 2, v{T0}")
    A.i(f"v_add_u32 v{T0}, {WS_G}, v{T0}")
    A.i(f"v_mov_b32 v7, {OOB}")
    A.i("v_cmp_gt_u32 vcc, 2, v6")
    A.i("s_nop 1")
    A.i(f"v_cndmask_b32 v{T0}, v7, v{T0}, vcc")
    A.i(f"buffer_store_dword v2, v{T0}, s[16:19], 0 offen")
    A.label(f"{name}_end")
    A.i("s_endpgm")
```

```python
from asmlib import *
from k2 import stamp, stamp_store
import k1 as K
import qkperm16
import qkperm112
import k1aux
from k1 import C_SCALE,f32bits,csel,STAGE,WOFF,OOB
V_LANE=1; XA=2; WA=4; DXE=8; DXO=9; DW=10; T0=11; T1=12; T2=13; T3=14; T4=15
XB=[16,32]; WB=[64+64,64+64+16]
DX1=48; DX2=49; AM=50; L16=52; L4=53; AD=50; AO=54; ONE=56
ACC=64
NV=160
RPOS=[0,1,2,3,4,5,6,7,8,9,10,11]
RORD=[0,1,2,3,4,5,6,7,8,9,10,11]
DPOS=[4,9,14]
DPOS0=[2,7,12]
SKIPPAD=1
CGMAP=None
CBTAB=None
SPLITD=0
PRIO=0
EPI=0
ORD=0
FAKEV=0
NOA=0
EPRIO=0
QKI=None; VI=None
NOS=0
W112=0
CPF1=0
KRG=0
WAL=0
DAFD=1
NARROW=0
XLB=[160,164]; XLA=60; AL=62; SL=96
DPOSN=[3,7,11]; DPOS0N=[1,5,9]; RPOSN=[0,0,1,1,2,2,3,3,4,5,6,7,8]
LOADERS=0; LPRE=1; DW1=60
def ldma(c):
    sb=(c%3)*STAGE
    L=[]
    for i in range(4):
        L.append([f"s_add_u32 s30, s23, {(c*64+4*i)*3456}",f"s_add_u32 m0, s25, {sb+i*1024}","s_nop 0",
                  f"buffer_load_dwordx4 v{DW1 if i>>1 else DW}, s[12:15], s30 offen {K.W_MOD} lds"])
    X=[]
    for i in range(8):
        X.append([f"s_add_u32 s30, s22, {8*i*1152+c*128}",f"s_add_u32 m0, s24, {sb+i*1024}","s_nop 0",
                  f"buffer_load_dwordx4 v{[DXE,DX1,DX2,DXO][i&3]}, s[8:11], s30 offen {K.X_MOD} lds"])
    return [X[0],L[0],X[1],X[2],L[1],X[3],X[4],L[2],X[5],X[6],L[3],X[7]]
def loader(A,name,prof):
    A.i("s_sub_u32 s6, s5, 8")
    A.i(f"v_lshrrev_b32 v{T0}, 3, v{V_LANE}")
    A.i(f"v_mul_u32_u24 v{T0}, 1152, v{T0}")
    A.i(f"v_and_b32 v{T1}, 7, v{V_LANE}")
    A.i(f"v_lshrrev_b32 v{T2}, 4, v{V_LANE}")
    A.i(f"v_xor_b32 v{T1}, v{T1}, v{T2}")
    A.i(f"v_lshl_add_u32 v{DXE}, v{T1}, 4, v{T0}")
    A.i(f"v_xor_b32 v{DXO}, 64, v{DXE}")
    A.i(f"v_xor_b32 v{DX1}, s30, v{DXE}")
    A.i(f"v_xor_b32 v{DX2}, s31, v{DXE}")
    A.i(f"v_mul_u32_u24 v{T0}, 3456, v{T2}")
    A.i(f"v_and_b32 v{T1}, 15, v{V_LANE}")
    A.i(f"v_lshlrev_b32 v{T2}, 2, v{T2}")
    A.i(f"v_xor_b32 v{T1}, v{T1}, v{T2}")
    A.i(f"v_lshl_add_u32 v{DW}, v{T1}, 4, v{T0}")
    A.i(f"v_xor_b32 v{DW1}, 32, v{DW}")
    A.i("s_lshl_b32 s7, s3, 8")
    A.i("s_lshl_b32 s31, s6, 6")
    A.i("s_add_u32 s7, s7, s31")
    A.i("s_mul_i32 s22, s7, 1152")
    A.i(f"s_mul_i32 s23, s6, {16*3456}")
    A.i("s_lshl_b32 s7, s4, 8")
    A.i("s_add_u32 s23, s23, s7")
    A.i("s_lshl_b32 s24, s6, 13")
    A.i("s_lshl_b32 s25, s6, 12")
    A.i(f"s_add_u32 s25, s25, {WOFF}")
    A.i("s_waitcnt lgkmcnt(0)")
    A.i("s_and_b32 s9, s9, 0xffff")
    A.i(f"s_mov_b32 s10, {2048*1152}")
    A.i("s_mov_b32 s11, 0x20000")
    A.i("s_cmp_eq_u32 s26, 1")
    A.i("s_cselect_b32 s12, s14, s12")
    A.i("s_cselect_b32 s13, s15, s13")
    A.i("s_and_b32 s13, s13, 0xffff")
    A.i(f"s_mov_b32 s14, {576*3456}")
    A.i("s_mov_b32 s15, 0x20000")
    for c in range(LPRE+1):
        for g in ldma(c):
            for l in g: A.i(l)
    A.i(f"s_waitcnt vmcnt({12*LPRE})")
    A.i("s_barrier")
    for c in range(LPRE+1,3):
        for g in ldma(c):
            for l in g: A.i(l)
    for c in range(8):
        A.i(f"s_waitcnt vmcnt({12 if c<7 else 0})")
        A.i("s_barrier")
        if c+3<9:
            for g in ldma(c+3):
                for l in g: A.i(l)
    A.i("s_endpgm")
NODMA=0; NORD=0; NOBAR=0; OLDDMA=0
FIXW=0; FIXX=0
W4=0; XST=32768; WBASE=98304; WST=16384
def woff(): return WBASE if W4 else WOFF
def wdma(c):
    sb=(c%4)*WST
    return [[f"s_add_u32 s30, s23, {(c*64+4*i)*3456}",f"s_add_u32 m0, s25, {sb+i*1024}","s_nop 0",
             f"buffer_load_dwordx4 v{DW}, s[12:15], s30 offen {K.W_MOD} lds"] for i in range(2)]
def xdma(c):
    sb=(c%3)*XST
    return [[f"s_add_u32 s30, s22, {8*i*1152+c*128}",f"s_add_u32 m0, s24, {sb+i*1024}","s_nop 0",
             f"buffer_load_dwordx4 v{[DXE,DX1,DX2,DXO][i]}, s[8:11], s30 offen {K.X_MOD} lds"] for i in range(4)]
def batch(c):
    return (xdma(c+3) if c+3<9 else [])+(wdma(c+4) if c+4<9 else [])
PFW=0
PFV=61
WP=60
PFL=0
def prefetch_w(A,issue=True):
    rows=576-64*PFW
    per=(rows*2+31)//32
    assert per<=64
    A.i("s_and_b32 s6, s3, 3")
    A.i("s_lshl_b32 s6, s6, 3")
    A.i("s_add_u32 s6, s6, s5")
    A.i(f"s_mul_i32 s6, s6, {per}")
    A.i(f"v_add_u32 v{T0}, s6, v{V_LANE}")
    A.i(f"v_lshrrev_b32 v{T1}, 1, v{T0}")
    A.i(f"v_mul_u32_u24 v{T1}, 3456, v{T1}")
    A.i(f"v_and_b32 v{T0}, 1, v{T0}")
    A.i(f"v_lshl_add_u32 v{T1}, v{T0}, 7, v{T1}")
    A.i(f"v_mov_b32 v{T2}, {OOB}")
    A.i(f"v_cmp_gt_u32 vcc, {per}, v{V_LANE}")
    A.i("s_lshl_b32 s6, s4, 8")
    A.i(f"s_add_u32 s6, s6, {64*PFW*3456}")
    if PFL:
        A.i(f"v_cndmask_b32 v{PFV}, v{T2}, v{T1}, vcc")
        A.i("s_mov_b32 s96, s6")
        return
    A.i(f"v_cndmask_b32 v{T1}, v{T2}, v{T1}, vcc")
    A.i(f"buffer_load_dword v{PFV}, v{T1}, s[12:15], s6 offen")
def dma_list(c):
    sb=(c%3)*STAGE
    L=[]
    cw=0 if FIXW else c
    cx=0 if FIXX else c
    for i in range(2):
        if K.MIX:
            a=WP+2*i
            L.append([f"s_add_u32 m0, s25, {sb+i*1024}","s_nop 0","s_nop 0",
                      f"global_load_lds_dwordx4 v[{a}:{a+1}], off {K.W_MOD}".rstrip()]+
                     ([f"v_add_co_u32 v{a}, vcc, {64*3456}, v{a}",f"v_addc_co_u32 v{a+1}, vcc, 0, v{a+1}, vcc"] if c<8 else []))
            continue
        L.append([f"s_add_u32 s30, s23, {(cw*64+4*i)*3456}",f"s_add_u32 m0, s25, {sb+i*1024}","s_nop 0",
                  f"buffer_load_dwordx4 v{DW}, s[12:15], s30 offen {K.W_MOD} lds"])
    for i in range(4):
        L.append([f"s_add_u32 s30, s22, {8*i*1152+cx*128}",f"s_add_u32 m0, s24, {sb+i*1024}","s_nop 0",
                  f"buffer_load_dwordx4 v{[DXE,DX1,DX2,DXO][i]}, s[8:11], s30 offen {K.X_MOD} lds"])
    return L
def accn(vtype,i,ct):
    return (((i>>1)*4+ct)*2+(i&1)) if vtype else (4*i+ct)
def epi_qk(i,scale):
    L=[]
    if scale:
        for ct in range(4):
            for q in range(2):
                r=ACC+4*(4*i+ct)+2*q
                L.append(f"v_pk_mul_f32 {vr(r,2)}, {vr(r,2)}, s[36:37]")
    for ct in range(4):
        n=4*i+ct
        for q in range(2): L.append(f"v_cvt_pk_bf16_f32 v{ACC+2*n+q}, v{ACC+4*n+2*q}, v{ACC+4*n+2*q+1}")
    for p in range(2):
        L.append(f"buffer_store_dwordx4 {vr(ACC+8*i+4*p,4)}, v{AM+p}, s[16:19], s{38+(i>>1)} offen offset:{(i&1)*256} {K.QK_MOD}")
    return L
def epi_v(tp):
    L=[]
    for ct in range(4):
        n=(tp*4+ct)*2
        for q in range(4): L.append(f"v_cvt_pk_bf16_f32 v{ACC+2*n+q}, v{ACC+4*n+2*q}, v{ACC+4*n+2*q+1}")
        md=K.V_MOD if not VI else ('sc1' if VI[1+4*tp+ct]=='1' else '')
        L.append(f"buffer_store_dwordx4 {vr(ACC+2*n,4)}, v{AD+ct}, s[16:19], s{38+tp} offen {md}")
    return L
def last_step(A,vtype,par,scale):
    def M(i,j):
        ct=j if i%2==0 else 3-j
        xf=XB[par]+4*i; wf=WB[par]+4*ct
        d=ACC+accn(vtype,i,ct)*4
        a,b=(xf,wf) if vtype else (wf,xf)
        A.i(f"v_mfma_f32_16x16x32_bf16 {vr(d,4)}, {vr(a,4)}, {vr(b,4)}, {vr(d,4)}")
    if vtype:
        for i in range(2):
            for j in range(4): M(i,j)
        for j in range(4): M(2,j)
        e=epi_v(0)
        A.i("s_nop 3")
        q=(len(e)+3)//4
        for j in range(4):
            M(3,j)
            for l in e[j*q:(j+1)*q]: A.i(l)
        A.i("s_nop 7")
        for l in epi_v(1): A.i(l)
        return
    for i in range(2):
        for j in range(4): M(i,j)
    for i in (2,3):
        e=epi_qk(i-2,scale)
        q=(len(e)+3)//4
        if i==2: A.i("s_nop 3")
        for j in range(4):
            M(i,j)
            for l in e[j*q:(j+1)*q]: A.i(l)
    for l in epi_qk(2,scale): A.i(l)
    A.i("s_nop 3")
    for l in epi_qk(3,scale): A.i(l)

def mainloop(A,vtype,nomfma=False,name=None,narrow=False):
    def rds(s2,par):
        xs=[f"ds_read_b128 {vr(XB[par]+4*i,4)}, v{XA+s2} offset:{((i>>1)*4096+(i&1)*1024) if vtype else i*2048}" for i in range(4)]
        ws=[f"ds_read_b64_tr_b16 {vr(WB[par]+ct*4+2*u,2)}, v{WA+ct} offset:{s2*8192+u*1024}" for ct in range(4) for u in range(2)]
        r=[ws[0],ws[1],xs[0]]+ws[2:]+xs[1:]
        r=[r[q] for q in RORD]
        if narrow: r.append(f"ds_read_b128 {vr(XLB[par],4)}, v{XLA+s2}")
        return r
    if not nomfma:
        for l in rds(0,0): A.i(l)
    A0=A
    class F:
        def i(self,x):
            if NODMA and ('lds' in x and x.startswith('buffer') or x.startswith('s_add_u32 s30') or x.startswith('s_add_u32 m0') or x=='s_nop 0'): return
            if NORD and x.startswith('ds_read') : return
            if NOBAR and x.startswith('s_barrier'): return
            A0.i(x)
    A=F()
    pend=[] if LOADERS else dma_list(1)[K.NPRE:]+dma_list(2)
    if W4: pend=(wdma(1)+xdma(1)+wdma(2))[K.NPRE:]+batch(-1)
    step=0
    for c in range(9):
        for s2 in range(2):
            par=step&1
            last=(c==8 and s2==1)
            if not nomfma: A.i("s_waitcnt lgkmcnt(0)")
            if s2==1 and c<8:
                while pend:
                    for l in pend.pop(0): A.i(l)
                if PFW and PFL and c==PFL-1:
                    A.i(f"buffer_load_dword v{PFV}, v{PFV}, s[12:15], s96 offen")
                if W4: A.i(f"s_waitcnt vmcnt({8 if c<6 else (6 if c==6 else 0)})")
                elif not LOADERS: A.i(f"s_waitcnt vmcnt({(6 if c<7 else 0)+(1 if (PFW and PFL and PFL-1<=c<=PFL) else 0)+(2 if (W112 and DAFD and c==0) else 0)})")
                A.i("s_barrier")
                if c+3<9 and not LOADERS: pend=dma_list(c+3)
                if W4: pend=batch(c)
                d = STAGE if (c+1)%3!=0 else -2*STAGE
                if not nomfma:
                    for r in [XA,XA+1]+list(range(WA,WA+4))+([XLA,XLA+1] if narrow else []):
                        if W4:
                            if r<WA: d = XST if (c+1)%3!=0 else -2*XST
                            else: d = WST if (c+1)%4!=0 else -3*WST
                        if d>0: A.i(f"v_add_u32 v{r}, {d}, v{r}")
                        else: A.i(f"v_subrev_u32 v{r}, {-d}, v{r}")
            if nomfma:
                k=3
                while pend and k:
                    for l in pend.pop(0): A.i(l)
                    k-=1
                step+=1
                continue
            if last and EPI:
                if vtype:
                    A0.i(f"buffer_store_dwordx4 {vr(ONE,4)}, v{AO}, s[16:19], s38 offen {K.V_MOD}")
                    last_step(A0,True,par,False)
                else:
                    A0.i("s_mov_b32 s36, s37")
                    A0.i("s_cmp_eq_u32 s78, 1")
                    A0.i(f"s_cbranch_scc1 {name}_last_k")
                    last_step(A0,False,par,True)
                    A0.i(f"s_branch {name}_last_done")
                    A0.label(f"{name}_last_k")
                    last_step(A0,False,par,False)
                    A0.label(f"{name}_last_done")
                return
            rd=[] if last else rds((s2+1)%2,par^1)
            n=0
            if narrow:
                seq=[(i,(j if i%2==0 else 2-j)) for i in range(4) for j in range(3)]+[(4,3)]
                for i,ct in seq:
                    xf=XB[par]+4*i if i<4 else XLB[par]; wf=WB[par]+4*ct
                    d=ACC+accn(vtype,i&3,ct)*4
                    a,b=(xf,wf) if vtype else (wf,xf)
                    isd = bool(pend) and (n in DPOSN or (c==0 and n in DPOS0N))
                    if isd and SPLITD:
                        g=pend.pop(0)
                        for l in g[:2]:
                            if l!="s_nop 0": A.i(l)
                    A.i(f"v_mfma_f32_16x16x32_bf16 {vr(d,4)}, {vr(a,4)}, {vr(b,4)}, {vr(d,4) if step else 0}")
                    for q,p in enumerate(RPOSN):
                        if p==n and rd: A.i(rd[q])
                    if isd and SPLITD==1:
                        for l in g[3:]: A.i(l)
                    if isd and not SPLITD:
                        for l in pend.pop(0): A.i(l)
                    n+=1
                step+=1
                continue
            for i in range(4):
                for j in range(4):
                    ct=j if i%2==0 else 3-j
                    xf=XB[par]+4*i; wf=WB[par]+4*ct
                    d=ACC+accn(vtype,i,ct)*4
                    a,b=(xf,wf) if vtype else (wf,xf)
                    if PRIO==1 and n==0: A.i(f"s_setprio {1 if s2==1 else 0}")
                    if PRIO==2 and n in (0,8): A.i(f"s_setprio {(3 if n==0 else 2) if s2==1 else (1 if n==0 else 0)}")
                    if PRIO==3 and ((s2==1 and n==0) or (s2==0 and n==8)): A.i(f"s_setprio {1 if s2==1 else 0}")
                    if PRIO==4 and ((s2==1 and n in (0,12)) or (s2==0 and n==8)): A.i(f"s_setprio {(2 if n==0 else 1) if s2==1 else 0}")
                    isd = bool(pend) and (n in DPOS or (c==0 and n in DPOS0))
                    if isd and SPLITD:
                        g=pend.pop(0)
                        for l in g[:2]:
                            if l!="s_nop 0": A.i(l)
                    A.i(f"v_mfma_f32_16x16x32_bf16 {vr(d,4)}, {vr(a,4)}, {vr(b,4)}, {vr(d,4) if step else 0}")
                    if isd and SPLITD==2: A.i(g[3])
                    for q,p in enumerate(RPOS):
                        if p==n and rd: A.i(rd[q])
                    if isd and SPLITD==1:
                        for l in g[3:]: A.i(l)
                    if isd and not SPLITD:
                        for l in pend.pop(0): A.i(l)
                    n+=1
            step+=1

_pl={}
def getplan(m):
    if m not in _pl:
        if W112: _pl[m]=qkperm112.plan(m>>1,m&1)
        else: _pl[m]=qkperm16.plan(m)[:3]+([],)
    return _pl[m]
def NPAT(): return 10 if W112 else 9
def singles(m):
    info,tab,slots,extra=getplan(m)
    out=[]
    for (p,c),it in slots.items():
        if it[0]=='S':
            assert c>=2
            for j in range(2): out.append((2*p+j,c,info[it[1][j]]))
    return out+list(extra)
def qk_scalars112(A):
    A.i("s_cmp_eq_u32 s98, 1")
    csel(A,33,WS_KVA,WS_QA)
    csel(A,38,WS_KVB,WS_QB)
    csel(A,34,KV_HEAD,64*QT_B)
    csel(A,35,TILE_B,QT_B)
    csel(A,36,OFF_KR,1024)
    A.i(f"s_cselect_b32 s37, 1.0, {f32bits(C_SCALE)}")
    A.i("s_cselect_b32 s78, 1, 0")
    A.i("s_cmp_eq_u32 s26, 1")
    A.i("s_cselect_b32 s33, s38, s33")
    A.i("s_lshl_b32 s6, s3, 3")
    A.i("s_lshl_b32 s7, s28, 1")
    A.i("s_add_u32 s6, s6, s7")
    A.i("s_mul_i32 s38, s6, s35")
    A.i("s_add_u32 s39, s38, s35")
    A.i("s_lshl_b32 s79, s4, 1")
    A.i("s_add_u32 s79, s79, s29")
SS=84
def qk_setup(A,name):
    A.i("s_mov_b32 s72, 0x76543210")
    A.i("s_mov_b32 s73, 0xfedcba98")
    A.i("s_cmp_eq_u32 s27, 1")
    A.i(f"s_cbranch_scc1 {name}_vsetup")
    if W112:
        qk_scalars112(A)
        A.i(f"v_mov_b32 v{AM+1}, {OOB}")
        A.i(f"v_mov_b32 v{AL}, {OOB}")
    else:
        K.qk_scalars(A)
        A.i("s_lshr_b32 s79, s32, 4")
    if KRG:
        A.i("s_and_b32 s99, s78, s26")
        A.i("s_lshl_b32 s6, s3, 1")
        A.i("s_lshr_b32 s7, s28, 1")
        A.i("s_add_u32 s6, s6, s7")
        A.i(f"s_mul_i32 s6, s6, {4*TILE_B}")
        A.i("s_and_b32 s7, s28, 1")
        A.i("s_lshl_b32 s30, s7, 3")
        A.i("s_add_u32 s30, s30, s6")
        A.i("s_mul_i32 s7, s7, 4480")
        A.i("s_add_u32 s6, s6, s7")
        A.i("s_add_u32 s6, s6, 512")
        A.i("s_add_u32 s31, s38, s36")
        A.i("s_cmp_eq_u32 s99, 1")
        A.i("s_cselect_b32 s38, s6, s38")
        A.i("s_cselect_b32 s35, 2240, s35")
        A.i("s_cselect_b32 s100, s30, s31")
        A.i("s_add_u32 s39, s38, s35")
    A.i("s_mov_b32 s74, 0xffff0000")
    A.i("s_mov_b32 s75, 0")
    A.i("s_mov_b32 s92, 0")
    A.i("s_mov_b32 s93, 0xffff")
    A.i("s_mov_b32 s94, 0")
    A.i("s_mov_b32 s95, 0xffff0000")
    A.i(f"v_and_b32 v{T0}, 15, v{V_LANE}")
    A.i(f"v_lshlrev_b32 v{T1}, 4, v{T0}")
    A.i(f"v_lshrrev_b32 v{T2}, 5, v{V_LANE}")
    A.i(f"v_mul_lo_u32 v{T2}, v{T2}, s35")
    A.i(f"v_and_b32 v{T0}, 31, v{V_LANE}")
    A.i(f"v_lshl_add_u32 v{L16}, v{T0}, 4, v{T2}")
    A.i(f"v_lshl_add_u32 v{L4}, v{T0}, 2, v{T2}")
    if KRG:
        A.i(f"v_lshrrev_b32 v{T2}, 5, v{V_LANE}")
        A.i(f"v_lshlrev_b32 v{T2}, 2, v{T2}")
        A.i(f"v_lshl_add_u32 v{T2}, v{T0}, 4, v{T2}")
        A.i("s_cmp_eq_u32 s99, 1")
        A.i("s_cselect_b64 vcc, -1, 0")
        A.i(f"v_cndmask_b32 v{L4}, v{L4}, v{T2}, vcc")
    for m in range(NPAT()):
        if m<NPAT()-1:
            A.i(f"s_cmp_lg_u32 s79, {m}")
            A.i(f"s_cbranch_scc1 {name}_setup{m+1}")
        info,tab,slots,extra=getplan(m)
        for h in range(2):
            v=0
            for q in range(2):
                for c in range(4): v|=tab[2*h+q][c]<<(4*(4*q+c))
            A.i(f"s_mov_b32 s{72+h}, {hex(v)}")
        for p in range(2):
            if (p,0) not in slots: continue
            for c in range(4):
                it=slots[(p,c)]; r=80+c
                if it[0]=='G':
                    _,head,sl=info[it[1][0]]
                    A.i(f"s_mul_i32 s{r}, s34, {head}")
                    A.i(f"s_add_u32 s{r}, s{r}, s33")
                    if sl>>1: A.i(f"s_add_u32 s{r}, s{r}, {(sl>>1)*512}")
                else: A.i(f"s_mov_b32 s{r}, {OOB}")
            A.i(f"v_mov_b32 v{T3}, s80")
            A.i(f"v_mov_b32 v{T4}, s81")
            A.i(f"v_cndmask_b32 v{T3}, v{T3}, v{T4}, s[74:75]")
            A.i(f"v_mov_b32 v{T4}, s82")
            A.i(f"v_cndmask_b32 v{T3}, v{T3}, v{T4}, s[92:93]")
            A.i(f"v_mov_b32 v{T4}, s83")
            A.i(f"v_cndmask_b32 v{T3}, v{T3}, v{T4}, s[94:95]")
            A.i(f"v_add_u32 v{AM+p}, v{T3}, v{T1}")
        k=SS
        for (ct,c,inf) in singles(m):
            if inf[0]=='M':
                A.i(f"s_mul_i32 s{k}, s34, {inf[1]}")
                A.i(f"s_add_u32 s{k}, s{k}, s33")
                A.i(f"s_add_u32 s{k}, s{k}, s38")
                cst=(inf[2]>>1)*512+(inf[2]&1)*8
                if cst: A.i(f"s_add_u32 s{k}, s{k}, {cst}")
                k+=1
            else:
                A.i(f"s_mul_i32 s{k}, s34, {2*inf[1]}")
                A.i(f"s_add_u32 s{k}, s{k}, s33")
                if KRG: A.i(f"s_add_u32 s{k}, s{k}, s100")
                else:
                    A.i(f"s_add_u32 s{k}, s{k}, s38")
                    A.i(f"s_add_u32 s{k}, s{k}, s36")
                A.i(f"s_add_u32 s{k+1}, s{k}, s34")
                k+=2
        assert k<=92
        if W112 and (m&1) and (m>>1)<4:
            i=m>>1
            A.i(f"v_lshrrev_b32 v{T3}, 5, v{V_LANE}")
            A.i(f"v_lshlrev_b32 v{T3}, 9, v{T3}")
            A.i(f"v_bfe_u32 v{T4}, v{V_LANE}, 4, 1")
            A.i(f"v_lshl_add_u32 v{T3}, v{T4}, 3, v{T3}")
            A.i(f"v_add_u32 v{AL}, v{T3}, v{T1}")
            A.i(f"s_mul_i32 s{SL}, s34, 31")
            A.i(f"s_add_u32 s{SL}, s{SL}, s33")
            A.i(f"s_add_u32 s{SL}, s{SL}, s{38+(i>>1)}")
            if i&1: A.i(f"s_add_u32 s{SL}, s{SL}, 256")
        A.i(f"s_branch {name}_setup_done")
        if m<NPAT()-1: A.label(f"{name}_setup{m+1}")
    A.label(f"{name}_vsetup")
    if W112:
        A.i("s_mul_i32 s6, s4, 112")
        A.i("s_lshl_b32 s7, s29, 6")
        A.i("s_add_u32 s32, s6, s7")
    else:
        A.i("s_lshl_b32 s6, s4, 7")
        A.i(f"s_lshl_b32 s7, s{97 if K.MIX else 29}, 6")
        A.i("s_add_u32 s6, s6, s7")
        A.i("s_sub_u32 s32, s6, 1152")
    A.i("s_cmp_eq_u32 s26, 1")
    csel(A,33,WS_KVB+OFF_V,WS_KVA+OFF_V)
    A.i("s_lshl_b32 s6, s3, 3")
    A.i("s_lshl_b32 s7, s28, 1")
    A.i("s_add_u32 s6, s6, s7")
    A.i(f"s_mul_i32 s38, s6, {TILE_B}")
    if KRG:
        A.i("s_lshr_b32 s7, s6, 2")
        A.i(f"s_mul_i32 s7, s7, {4*TILE_B}")
        A.i("s_and_b32 s6, s6, 3")
        A.i("s_mul_i32 s6, s6, 2240")
        A.i("s_add_u32 s6, s6, s7")
        A.i("s_add_u32 s6, s6, 512")
        A.i("s_cmp_eq_u32 s26, 1")
        A.i("s_cselect_b32 s38, s6, s38")
        A.i(f"s_mov_b32 s35, {TILE_B}")
        A.i("s_cselect_b32 s35, 2240, s35")
        A.i("s_add_u32 s39, s38, s35")
    else: A.i(f"s_add_u32 s39, s38, {TILE_B}")
    A.i(f"s_mov_b32 s34, {KV_HEAD}")
    A.i(f"v_lshrrev_b32 v{T1}, 5, v{V_LANE}")
    A.i(f"v_mul_u32_u24 v{T1}, 608, v{T1}")
    A.i(f"v_bfe_u32 v{T2}, v{V_LANE}, 4, 1")
    A.i(f"v_mul_u32_u24 v{T2}, 304, v{T2}")
    A.i(f"v_add3_u32 v{T1}, v{T1}, v{T2}, s33")
    A.i(f"v_and_b32 v{T0}, 15, v{V_LANE}")
    A.i(f"v_add_u32 v{T0}, s32, v{T0}")
    for ct in range(4):
        A.i(f"v_add_u32 v{T2}, {16*ct}, v{T0}")
        if W112 and ct==3:
            A.i("s_add_u32 s6, s32, 48")
            A.i("s_cmp_eq_u32 s29, 1")
            A.i("s_cselect_b32 s6, 560, s6")
            A.i(f"v_and_b32 v{T2}, 15, v{V_LANE}")
            A.i(f"v_add_u32 v{T2}, s6, v{T2}")
        A.i(f"v_mul_u32_u24 v{T3}, 3641, v{T2}")
        A.i(f"v_lshrrev_b32 v{T3}, 16, v{T3}")
        A.i(f"v_mul_u32_u24 v{T4}, 18, v{T3}")
        A.i(f"v_sub_u32 v{T4}, v{T2}, v{T4}")
        A.i(f"v_mul_lo_u32 v{T3}, v{T3}, s34")
        A.i(f"v_lshl_add_u32 v{T3}, v{T4}, 4, v{T3}")
        A.i(f"v_add_u32 v{AD+ct}, v{T1}, v{T3}")
    if W112:
        A.i("s_and_b32 s6, s4, 1")
        A.i("s_lshl_b32 s6, s6, 3")
        A.i("s_cmp_eq_u32 s4, 4")
        A.i(f"s_cselect_b32 s6, {OOB}, s6")
        A.i("s_cmp_eq_u32 s29, 1")
        A.i("s_cselect_b32 s6, s6, 0")
        A.i(f"v_add_u32 v{AD+3}, s6, v{AD+3}")
        A.i("s_bfe_u32 s6, s4, 0x10001")
        A.i(f"s_mul_i32 s6, s6, {TILE_B}")
        A.i(f"s_add_u32 s{SL}, s38, s6")
    if FAKEV:
        if K.MIX:
            A.i("s_lshl_b32 s6, s4, 1")
            A.i("s_add_u32 s6, s6, s97")
            A.i("s_sub_u32 s6, s6, 18")
        else:
            A.i("s_mul_i32 s6, s26, 5")
            A.i("s_add_u32 s6, s6, s4")
            A.i("s_sub_u32 s6, s6, 9")
        A.i("s_lshl_b32 s6, s6, 3")
        A.i("s_add_u32 s6, s6, s3")
        A.i("s_lshl_b32 s6, s6, 3")
        A.i("s_add_u32 s6, s6, s5")
        A.i("s_lshl_b32 s6, s6, 13")
        A.i("s_add_u32 s6, s6, 0x1900000")
        for ct in range(4):
            A.i(f"v_lshlrev_b32 v{T2}, 4, v{V_LANE}")
            A.i(f"v_add_u32 v{T2}, {1024*ct}, v{T2}")
            A.i(f"v_add_u32 v{AD+ct}, s6, v{T2}")
        A.i("s_mov_b32 s38, 0")
        A.i("s_mov_b32 s39, 4096")
    A.i("s_mul_i32 s6, s32, 3641")
    A.i("s_lshr_b32 s6, s6, 16")
    A.i(f"v_lshrrev_b32 v{T0}, 3, v{V_LANE}")
    A.i(f"v_add_u32 v{T0}, s6, v{T0}")
    A.i(f"v_mul_u32_u24 v{T1}, 18, v{T0}")
    A.i(f"v_add_u32 v{T1}, 17, v{T1}")
    A.i(f"v_mul_lo_u32 v{T0}, v{T0}, s34")
    A.i(f"v_bfe_u32 v{T2}, v{V_LANE}, 2, 1")
    if KRG: A.i(f"v_mul_lo_u32 v{T2}, v{T2}, s35")
    else: A.i(f"v_mul_u32_u24 v{T2}, {TILE_B}, v{T2}")
    A.i(f"v_add_u32 v{T0}, v{T0}, v{T2}")
    A.i(f"v_bfe_u32 v{T2}, v{V_LANE}, 1, 1")
    A.i(f"v_mul_u32_u24 v{T2}, 608, v{T2}")
    A.i(f"v_add_u32 v{T0}, v{T0}, v{T2}")
    A.i(f"v_and_b32 v{T2}, 1, v{V_LANE}")
    A.i(f"v_mul_u32_u24 v{T2}, 304, v{T2}")
    A.i(f"v_add3_u32 v{T0}, v{T0}, v{T2}, s33")
    A.i(f"v_add_u32 v{T0}, {18*16}, v{T0}")
    if W112:
        A.i("s_cmp_eq_u32 s4, 4")
        A.i("s_cselect_b32 s7, 64, 48")
        A.i("s_cmp_eq_u32 s29, 1")
        A.i("s_cselect_b32 s7, s7, 64")
        A.i("s_add_u32 s6, s32, s7")
    else: A.i("s_add_u32 s6, s32, 64")
    A.i(f"v_mov_b32 v{T2}, {OOB}")
    A.i(f"v_cmp_gt_u32 vcc, s6, v{T1}")
    for r in range(4): A.i(f"v_mov_b32 v{ONE+r}, 0x3f803f80")
    A.i(f"v_cndmask_b32 v{AO}, v{T2}, v{T0}, vcc")
    A.label(f"{name}_setup_done")

def qk_epilogue(A,name,prof):
    if not EPI: qk_epilogue_main(A,name)
    qk_epilogue_singles(A,name,prof)
def qk_epilogue_narrow(A,name):
    A.i("s_nop 7")
    valid=[4*i+ct for i in range(4) for ct in range(4) if ct<3 or i==0]
    A.i("s_cmp_eq_u32 s78, 1")
    A.i(f"s_cbranch_scc1 {name}_noscale_n")
    A.i("s_mov_b32 s36, s37")
    for n in valid:
        for q in range(2): A.i(f"v_pk_mul_f32 {vr(ACC+4*n+2*q,2)}, {vr(ACC+4*n+2*q,2)}, s[36:37]")
    A.label(f"{name}_noscale_n")
    for i in range(4):
        for ct in range(4):
            n=4*i+ct
            if n not in valid: continue
            for q in range(2): A.i(f"v_cvt_pk_bf16_f32 v{ACC+2*n+q}, v{ACC+4*n+2*q}, v{ACC+4*n+2*q+1}")
        A.i(f"buffer_store_dwordx4 {vr(ACC+8*i,4)}, v{AM}, s[16:19], s{38+(i>>1)} offen offset:{(i&1)*256} {K.QK_MOD}".rstrip())
def qk_epilogue_main(A,name):
    A.i("s_nop 7")
    mods=K.TMOD
    def body(mod):
        for i in range(4):
            for ct in range(4):
                n=4*i+ct
                for q in range(2): A.i(f"v_cvt_pk_bf16_f32 v{ACC+2*n+q}, v{ACC+4*n+2*q}, v{ACC+4*n+2*q+1}")
            for p in range(2):
                md=mod if not QKI else ('sc1' if QKI[1+2*i+p]=='1' else '')
                A.i(f"buffer_store_dwordx4 {vr(ACC+8*i+4*p,4)}, v{AM+p}, s[16:19], s{38+(i>>1)} offen offset:{(i&1)*256} {md}".rstrip())
    A.i("s_cmp_eq_u32 s78, 1")
    A.i(f"s_cbranch_scc1 {name}_noscale")
    A.i("s_mov_b32 s36, s37")
    for r in range(0,64,2): A.i(f"v_pk_mul_f32 {vr(ACC+r,2)}, {vr(ACC+r,2)}, s[36:37]")
    if mods:
        m=[x.replace('-','') for x in mods]
        A.i("s_cmp_eq_u32 s26, 1")
        A.i(f"s_cbranch_scc1 {name}_qb")
        body(m[0]); A.i(f"s_branch {name}_qkdone")
        A.label(f"{name}_qb")
        body(m[1]); A.i(f"s_branch {name}_qkdone")
        A.label(f"{name}_noscale")
        A.i("s_cmp_eq_u32 s26, 1")
        A.i(f"s_cbranch_scc1 {name}_kb")
        body(m[2]); A.i(f"s_branch {name}_qkdone")
        A.label(f"{name}_kb")
        body(m[3])
        A.label(f"{name}_qkdone")
        return
    A.label(f"{name}_noscale")
    body(K.QK_MOD)
def qk_epilogue_singles(A,name,prof):
    for m in range(NPAT()):
        if m<NPAT()-1:
            A.i(f"s_cmp_lg_u32 s79, {m}")
            A.i(f"s_cbranch_scc1 {name}_epi{m+1}")
        if W112 and (m&1) and (m>>1)<4:
            A.i(f"buffer_store_dwordx2 {vr(ACC+6,2)}, v{AL}, s[16:19], s{SL} offen {K.SM_MOD}".rstrip())
        S=singles(m)
        cts=sorted(set(x[0] for x in S))
        X=lambda i,ct,d: ACC+2*(4*i+ct)+d
        A.i("s_nop 1")
        for ct in cts:
            for d in range(2):
                A.i(f"v_permlane32_swap_b32 v{X(0,ct,d)}, v{X(2,ct,d)}")
                A.i(f"v_permlane32_swap_b32 v{X(1,ct,d)}, v{X(3,ct,d)}")
        A.i("s_nop 1")
        for ct in cts:
            for d in range(2):
                A.i(f"v_permlane16_swap_b32 v{X(2,ct,d)}, v{X(3,ct,d)}")
                if any(x[0]==ct and x[1]<2 for x in S): A.i(f"v_permlane16_swap_b32 v{X(0,ct,d)}, v{X(1,ct,d)}")
        A.i("s_nop 1")
        k=SS
        for (ct,c,inf) in ([] if NOS else S):
            b=X(c,ct,0)
            if inf[0]=='M':
                A.i(f"buffer_store_dwordx2 {vr(b,2)}, v{L16}, s[16:19], s{k} offen {K.SM_MOD}"); k+=1
            else:
                A.i(f"buffer_store_dword v{b}, v{L4}, s[16:19], s{k} offen {K.SR_MOD}")
                A.i(f"buffer_store_dword v{b+1}, v{L4}, s[16:19], s{k+1} offen {K.SR_MOD}"); k+=2
        if K.MONO: A.i(f"s_mov_b32 s97, {8+sum(1 if x[2][0]=='M' else 2 for x in S)}")
        if m<NPAT()-1:
            A.i(f"s_branch {name}_epi_done")
            A.label(f"{name}_epi{m+1}")
    A.label(f"{name}_epi_done")
    if K.MONO:
        mono_next(A,name)
        return
    if prof: A.i("s_waitcnt vmcnt(0)")
    stamp(A,3,prof)
    stamp_store(A,6,prof,name)
    A.i("s_endpgm")

def mono_next(A,name):
    A.i("s_cmp_eq_u32 s96, 0")
    A.i(f"s_cbranch_scc1 {name}_trans")
    A.i(f"s_branch {name}_cont")
def mono_defer(A,name,kind):
    A.i(f"s_mov_b32 s96, {kind}")
    A.i("s_cmp_eq_u32 s26, 0")
    A.i(f"s_cbranch_scc1 {name}_trans")
    A.i("s_mov_b32 s96, 0")
    A.label(f"{name}_epi_{'qk' if kind==1 else 'v'}")
def v_epilogue_narrow(A,name,prof):
    A.i(f"buffer_store_dwordx4 {vr(ONE,4)}, v{AO}, s[16:19], s38 offen {K.V_MOD}".rstrip())
    A.i("s_nop 7")
    for tp in range(2):
        for ct in range(3):
            n=(tp*4+ct)*2
            for q in range(4): A.i(f"v_cvt_pk_bf16_f32 v{ACC+2*n+q}, v{ACC+4*n+2*q}, v{ACC+4*n+2*q+1}")
            A.i(f"buffer_store_dwordx4 {vr(ACC+2*n,4)}, v{AD+ct}, s[16:19], s{38+tp} offen {K.V_MOD}".rstrip())
        if tp==0:
            for q in range(2): A.i(f"v_cvt_pk_bf16_f32 v{ACC+12+q}, v{ACC+24+2*q}, v{ACC+24+2*q+1}")
            A.i(f"buffer_store_dwordx2 {vr(ACC+12,2)}, v{AD+3}, s[16:19], s{SL} offen {K.V_MOD}".rstrip())
    if prof: A.i("s_waitcnt vmcnt(0)")
    stamp(A,3,prof)
    stamp_store(A,6,prof,name+"_vn")
    A.i("s_endpgm")
def v_epilogue(A,name,prof):
    if not EPI:
        A.i(f"buffer_store_dwordx4 {vr(ONE,4)}, v{AO}, s[16:19], s38 offen {K.V_MOD}")
        A.i("s_nop 7")
        for tp in range(2):
            for l in epi_v(tp): A.i(l)
    if K.MONO:
        A.i("s_mov_b32 s97, 9")
        mono_next(A,name)
        return
    if prof: A.i("s_waitcnt vmcnt(0)")
    stamp(A,3,prof)
    stamp_store(A,6,prof,name)
    A.i("s_endpgm")

def gen_k1(A,name="k1_qkv_kernel",prof=False):
    if LOADERS: K.LAUNCH=[(name,256,768,147456)]
    if W4: K.LAUNCH=[(name,256,512,163840)]
    kernel_header(A,name)
    A.i("s_cmp_ge_u32 s2, 256")
    A.i(f"s_cbranch_scc1 {name}_end")
    A.i(f"s_load_dwordx2 s[20:21], s[0:1], {KA_WS}")
    A.i(f"s_load_dwordx2 s[8:9], s[0:1], {KA_X}")
    if prof: A.i("s_memrealtime s[58:59]")
    stamp(A,0,prof)
    A.i(f"v_and_b32 v{V_LANE}, 63, v0")
    A.i(f"v_lshrrev_b32 v{T0}, 6, v0")
    A.i("s_nop 0")
    A.i(f"v_readfirstlane_b32 s5, v{T0}")
    if CPF1:
        A.i("s_nop 3")
        code_touch(A,name+"_ct1",name,name+"_gate0",5,62,60,72,True)
    A.i(f"s_cmp_ge_u32 s2, {240 if W112 else 224}")
    A.i(f"s_cbranch_scc1 {name}_gate0")
    A.i(f"s_load_dwordx2 s[12:13], s[0:1], {KA_AWQKV}")
    A.i(f"s_load_dwordx2 s[14:15], s[0:1], {KA_BWQKV}")
    if EPRIO: A.i("s_setprio 1")
    A.i("s_mov_b32 s70, s5")
    if W112:
        A.i("s_and_b32 s6, s2, 7")
        A.i("s_lshr_b32 s7, s2, 3")
        A.i("s_lshr_b32 s26, s6, 2")
        A.i("s_and_b32 s3, s6, 1")
        A.i("s_lshl_b32 s3, s3, 2")
        A.i("s_bfe_u32 s31, s6, 0x10001")
        A.i("s_lshl_b32 s4, s31, 3")
        A.i("s_lshr_b32 s30, s7, 2")
        A.i("s_add_u32 s4, s4, s30")
        A.i("s_and_b32 s30, s7, 3")
        A.i("s_lshl_b32 s31, s31, 1")
        A.i("s_cmp_ge_u32 s7, 28")
        A.i("s_cselect_b32 s4, 7, s4")
        A.i("s_cselect_b32 s31, s31, 0")
        A.i("s_add_u32 s30, s30, s31")
        A.i("s_add_u32 s3, s3, s30")
        A.i("s_mul_i32 s6, s4, 52")
        A.i("s_lshr_b32 s98, s6, 8")
        A.i("s_mul_i32 s6, s98, 5")
        A.i("s_sub_u32 s4, s4, s6")
        A.i("s_cmp_eq_u32 s98, 2")
    else:
        A.i("s_and_b32 s6, s2, 7")
        A.i("s_lshr_b32 s7, s2, 3")
        A.i("s_and_b32 s3, s6, 1")
        A.i("s_lshl_b32 s3, s3, 2")
        A.i("s_and_b32 s30, s7, 3")
        A.i("s_add_u32 s3, s3, s30")
        A.i("s_lshr_b32 s6, s6, 1")
        if CGMAP:
            A.i("s_lshl_b32 s6, s6, 2")
            A.i(f"s_lshr_b32 s6, {hex(sum(c<<(4*k) for k,c in enumerate(CGMAP)))}, s6")
            A.i("s_and_b32 s6, s6, 3")
        if CBTAB:
            assert sorted(x for g in CBTAB for x in g)==list(range(28))
            A.i("s_lshr_b32 s7, s7, 2")
            A.i("s_lshl_b32 s7, s7, 3")
            for p in range(4):
                v=sum(c<<(8*k) for k,c in enumerate(CBTAB[p]))
                if p: A.i(f"s_cmp_eq_u32 s6, {p}")
                for h in range(2):
                    w=(v>>(32*h))&0xffffffff
                    if p==0: A.i(f"s_mov_b32 s{80+h}, {hex(w)}")
                    else: A.i(f"s_cselect_b32 s{80+h}, {hex(w)}, s{80+h}")
            A.i("s_lshr_b64 s[80:81], s[80:81], s7")
            A.i("s_and_b32 s4, s80, 0xff")
        else:
            A.i("s_mul_i32 s6, s6, 7")
            A.i("s_lshr_b32 s7, s7, 2")
            A.i("s_add_u32 s4, s6, s7")
        if K.MIX:
            A.i("s_cmp_ge_u32 s4, 27")
            A.i(f"s_cbranch_scc1 {name}_idle")
            A.i("s_cmp_lt_u32 s5, 4")
            A.i("s_cselect_b32 s26, 1, 0")
            if K.MONO: A.i("s_mov_b32 s67, 1")
            A.i("s_lshl_b32 s96, s4, 7")
            A.i("s_and_b32 s97, s4, 1")
            A.i("s_lshr_b32 s4, s4, 1")
        else:
            A.i("s_cmp_ge_u32 s4, 14")
            A.i("s_cselect_b32 s26, 1, 0")
            A.i("s_mul_i32 s6, s26, 14")
            A.i("s_sub_u32 s4, s4, s6")
        A.i("s_cmp_ge_u32 s4, 9")
    A.i("s_cselect_b32 s27, 1, 0")
    A.i("s_cselect_b32 s30, 0, 64")
    A.i("s_cselect_b32 s31, 64, 0")
    A.i("s_and_b32 s28, s5, 3")
    A.i("s_lshr_b32 s29, s5, 2")
    if LOADERS:
        A.i("s_cmp_ge_u32 s5, 8")
        A.i(f"s_cbranch_scc1 {name}_loader")
    else: startup_dma(A,prof)
    startup_rest(A,name,prof)
    if LOADERS:
        A.label(f"{name}_loader")
        loader(A,name,prof)
    if K.MIX and not K.MONO:
        A.label(f"{name}_idle")
        A.i("s_endpgm")
    A.label(f"{name}_gate0")
    if LOADERS:
        A.i("s_cmp_ge_u32 s5, 8")
        A.i(f"s_cbranch_scc1 {name}_end")
    if W112: k1aux.aux16(A,name,prof,DAFD)
    else: K.gen_gate(A,name,prof)
    if not K.MONO: kernel_footer(A,name,244 if W112 else (168 if NARROW else NV))

def ws_srd(A):
    A.i("s_mov_b32 s16, s20")
    A.i("s_and_b32 s17, s21, 0xffff")
    A.i("s_mov_b32 s18, 0x2000000")
    A.i("s_mov_b32 s19, 0x20000")
def startup_dma(A,prof):
    A.i(f"v_lshrrev_b32 v{T0}, 3, v{V_LANE}")
    A.i(f"v_mul_u32_u24 v{T0}, 1152, v{T0}")
    A.i(f"v_and_b32 v{T1}, 7, v{V_LANE}")
    A.i(f"v_lshrrev_b32 v{T2}, 4, v{V_LANE}")
    A.i(f"v_xor_b32 v{T1}, v{T1}, v{T2}")
    A.i(f"v_lshl_add_u32 v{DXE}, v{T1}, 4, v{T0}")
    A.i(f"v_xor_b32 v{DXO}, 64, v{DXE}")
    A.i(f"v_xor_b32 v{DX1}, s30, v{DXE}")
    A.i(f"v_xor_b32 v{DX2}, s31, v{DXE}")
    A.i(f"v_mul_u32_u24 v{T0}, 3456, v{T2}")
    A.i(f"v_and_b32 v{T1}, 15, v{V_LANE}")
    A.i(f"v_lshlrev_b32 v{T2}, 2, v{T2}")
    A.i(f"v_xor_b32 v{T1}, v{T1}, v{T2}")
    A.i("s_and_b32 s6, s5, 1")
    A.i("s_lshl_b32 s6, s6, 1")
    A.i(f"v_xor_b32 v{T1}, s6, v{T1}")
    if K.MIX:
        A.i(f"v_cmp_gt_u32 vcc, 8, v{T1}")
        A.i(f"v_and_b32 v{T1}, 7, v{T1}")
    A.i(f"v_lshl_add_u32 v{DW}, v{T1}, 4, v{T0}")
    if W112:
        A.i("s_mul_i32 s6, s4, 224")
        A.i("s_sub_u32 s7, 896, s6")
        A.i(f"v_mov_b32 v{T0}, s7")
        A.i(f"v_cmp_le_u32 vcc, 14, v{T1}")
        A.i(f"v_cndmask_b32 v{T0}, 0, v{T0}, vcc")
        if not WAL: A.i(f"v_add_u32 v{DW}, v{DW}, v{T0}")
        if WAL==1:
            A.i("s_lshl_b32 s6, s4, 8")
            A.i("s_min_u32 s6, s6, 896")
        A.i("s_mul_i32 s7, s98, 1152")
        A.i("s_add_u32 s96, s6, s7")
    A.i("s_lshl_b32 s6, s3, 8")
    A.i("s_lshl_b32 s7, s5, 5")
    A.i("s_add_u32 s6, s6, s7")
    A.i("s_mul_i32 s22, s6, 1152")
    A.i(f"s_mul_i32 s23, s5, {8*3456}")
    if K.MIX:
        A.i("s_add_u32 s23, s23, s96")
        A.i(f"v_add_u32 v{DW}, s23, v{DW}")
    elif W112:
        A.i("s_add_u32 s23, s23, s96")
    else:
        A.i("s_lshl_b32 s6, s4, 8")
        A.i("s_add_u32 s23, s23, s6")
    A.i("s_lshl_b32 s24, s5, 12")
    A.i("s_lshl_b32 s25, s5, 11")
    A.i(f"s_add_u32 s25, s25, {woff()}")
    A.i("s_waitcnt lgkmcnt(0)")
    A.i("s_and_b32 s9, s9, 0xffff")
    A.i(f"s_mov_b32 s10, {2048*1152}")
    A.i("s_mov_b32 s11, 0x20000")
    if K.MIX:
        A.i(f"v_mov_b32 v{T0}, s12")
        A.i(f"v_mov_b32 v{T1}, s14")
        A.i(f"v_mov_b32 v{T2}, s13")
        A.i(f"v_mov_b32 v{T3}, s15")
        A.i(f"v_cndmask_b32 v{T0}, v{T0}, v{T1}, vcc")
        A.i(f"v_cndmask_b32 v{T2}, v{T2}, v{T3}, vcc")
        A.i(f"v_add_co_u32 v{WP}, vcc, v{T0}, v{DW}")
        A.i(f"v_addc_co_u32 v{WP+1}, vcc, 0, v{T2}, vcc")
        A.i(f"v_add_co_u32 v{WP+2}, vcc, {4*3456}, v{WP}")
        A.i(f"v_addc_co_u32 v{WP+3}, vcc, 0, v{WP+1}, vcc")
    else:
        A.i("s_cmp_eq_u32 s26, 1")
        A.i("s_cselect_b32 s12, s14, s12")
        A.i("s_cselect_b32 s13, s15, s13")
        A.i("s_and_b32 s13, s13, 0xffff")
        A.i(f"s_mov_b32 s14, {576*3456}")
        A.i("s_mov_b32 s15, 0x20000")
    stamp(A,4,prof)
    for n,g in enumerate((xdma(0)+wdma(0)+(wdma(1)+xdma(1)+wdma(2))[:K.NPRE]) if W4 else dma_list(0)+dma_list(1)[:K.NPRE]):
        if ORD and n==6: A.i("s_barrier")
        if EPRIO and n==6: A.i("s_setprio 0")
        for l in g: A.i(l)
    if PFW: prefetch_w(A)
    if W112 and DAFD:
        ws_srd(A)
        k1aux.daf_marks(A,64)
    stamp(A,5,prof)

def startup_rest(A,name,prof):
    if LOADERS:
        stamp(A,4,prof);
    else: ws_srd(A)
    A.i(f"v_and_b32 v{T0}, 15, v{V_LANE}")
    A.i(f"v_and_b32 v{T3}, 8, v{V_LANE}")
    A.i(f"v_mul_u32_u24 v{T3}, s27, v{T3}")
    A.i(f"v_add_u32 v{T0}, v{T0}, v{T3}")
    A.i(f"v_lshrrev_b32 v{T1}, 4, v{V_LANE}")
    A.i(f"v_bfe_u32 v{T2}, v{V_LANE}, 1, 3")
    A.i(f"v_xor_b32 v{T2}, v{T1}, v{T2}")
    A.i(f"v_lshlrev_b32 v{T2}, 4, v{T2}")
    A.i(f"v_lshl_add_u32 v{T2}, v{T0}, 7, v{T2}")
    A.i("s_lshl_b32 s6, s28, 13")
    A.i(f"v_add_u32 v{XA}, s6, v{T2}")
    A.i(f"v_xor_b32 v{XA+1}, 64, v{XA}")
    if W112 or NARROW:
        A.i("s_and_b32 s6, s4, 3")
        A.i("s_lshl_b32 s7, s6, 11")
        A.i("s_lshr_b32 s30, s6, 1")
        A.i("s_lshl_b32 s30, s30, 12")
        A.i("s_and_b32 s6, s6, 1")
        A.i("s_lshl_b32 s6, s6, 10")
        A.i("s_add_u32 s6, s6, s30")
        A.i("s_cmp_eq_u32 s27, 1")
        A.i("s_cselect_b32 s6, s6, s7")
        A.i(f"v_add_u32 v{XLA}, s6, v{XA}")
        A.i(f"v_add_u32 v{XLA+1}, s6, v{XA+1}")
    qk_setup(A,name)
    A.i(f"v_lshrrev_b32 v{T1}, 4, v{V_LANE}")
    A.i(f"v_bfe_u32 v{T0}, v{V_LANE}, 2, 2")
    A.i(f"v_lshl_add_u32 v{T2}, v{T1}, 3, v{T0}")
    A.i(f"v_lshlrev_b32 v{T2}, 8, v{T2}")
    A.i(f"v_add_u32 v{T2}, {woff()}, v{T2}")
    A.i(f"v_and_b32 v{T1}, 1, v{T1}")
    A.i(f"v_lshlrev_b32 v{T1}, 2, v{T1}")
    A.i(f"v_lshl_or_b32 v{T0}, v{T0}, 3, v{T1}")
    A.i("s_lshl_b32 s6, s29, 4")
    A.i(f"v_xor_b32 v{T0}, s6, v{T0}")
    A.i(f"v_and_b32 v{T1}, 3, v{V_LANE}")
    A.i(f"v_lshlrev_b32 v{T1}, 2, v{T1}")
    for ct in range(4):
        A.i(f"v_add_u32 v{T3}, {16*(ct&1)}, v{T1}")
        A.i(f"v_lshrrev_b32 v{T3}, v{T3}, s{72+(ct>>1)}")
        A.i(f"v_and_b32 v{T3}, 15, v{T3}")
        A.i(f"v_xor_b32 v{T3}, v{T3}, v{T0}")
        A.i(f"v_lshl_add_u32 v{WA+ct}, v{T3}, 3, v{T2}")
    if K.MONO:
        A.i("s_lshr_b32 s6, s96, 7")
        A.i("s_mul_i32 s7, s6, 57")
        A.i("s_lshr_b32 s7, s7, 9")
        A.i("s_mul_i32 s30, s7, 9")
        A.i("s_sub_u32 s6, s6, s30")
        A.i("s_lshl_b32 s7, s7, 4")
        A.i("s_add_u32 s7, s7, s3")
        A.i(f"s_add_u32 s7, s7, {WS_FLAGB}")
        A.i(f"s_mul_i32 s30, s6, {64*3641}")
        A.i("s_lshr_b32 s30, s30, 16")
        A.i(f"v_add_u32 v{T0}, s30, v{V_LANE}")
        A.i(f"v_mul_u32_u24 v{T1}, 18, v{T0}")
        A.i(f"v_lshrrev_b32 v{T2}, 6, v{T1}")
        A.i(f"v_cmp_ne_u32 vcc, s6, v{T2}")
        A.i(f"v_cndmask_b32 v{T2}, 0, 8, vcc")
        A.i(f"v_lshl_add_u32 v{T2}, v{T0}, 7, v{T2}")
        A.i(f"v_add_u32 v{T2}, s7, v{T2}")
        A.i("s_add_u32 s6, s6, 1")
        A.i("s_lshl_b32 s6, s6, 6")
        A.i("s_min_u32 s6, s6, 576")
        A.i(f"v_cmp_gt_u32 vcc, s6, v{T1}")
        A.i(f"v_mov_b32 v{T3}, {OOB}")
        A.i(f"v_cndmask_b32 v{K.FLV}, v{T3}, v{T2}, vcc")
    if LOADERS:
        A.i("s_waitcnt lgkmcnt(0)")
        ws_srd(A)
        stamp(A,5,prof)
    else: A.i(f"s_waitcnt vmcnt({K.NPRE+(1 if (PFW and not PFL) else 0)+(2 if (W112 and DAFD) else 0)})")
    A.i("s_barrier")
    stamp(A,1,prof)
    A.i("s_cmp_eq_u32 s27, 1")
    A.i(f"s_cbranch_scc1 {name}_vtype")
    if W112 or NARROW:
        A.i("s_cmp_eq_u32 s29, 1" if NARROW!=2 else "s_cmp_eq_u32 s29, s29")
        A.i(f"s_cbranch_scc1 {name}_qkn")
        mainloop(A,False,name=name)
        stamp(A,2,prof)
        qk_epilogue_main(A,name)
        A.i(f"s_branch {name}_qks")
        A.label(f"{name}_qkn")
        mainloop(A,False,name=name,narrow=True)
        stamp(A,2,prof)
        qk_epilogue_narrow(A,name)
        A.label(f"{name}_qks")
        qk_epilogue_singles(A,name,prof)
        A.label(f"{name}_vtype")
        A.i("s_cmp_eq_u32 s29, 1" if NARROW!=2 else "s_cmp_eq_u32 s29, s29")
        A.i(f"s_cbranch_scc1 {name}_vn")
        mainloop(A,True,name=name)
        stamp(A,2,prof)
        v_epilogue(A,name,prof)
        A.label(f"{name}_vn")
        mainloop(A,True,name=name,narrow=True)
        stamp(A,2,prof)
        v_epilogue_narrow(A,name,prof)
        return
    mainloop(A,False,name=name)
    if PRIO: A.i("s_setprio 0")
    stamp(A,2,prof)
    if NOA:
        A.i("s_cmp_eq_u32 s26, 0" if NOA==1 else "s_cmp_eq_u32 s29, 1")
        A.i(f"s_cbranch_scc1 {name}_noa")
    if K.MONO: mono_defer(A,name,1)
    qk_epilogue(A,name,prof)
    A.label(f"{name}_vtype")
    if SKIPPAD and not K.MIX:
        A.i("s_cmp_ge_u32 s32, 576")
        A.i(f"s_cbranch_scc1 {name}_pad")
    mainloop(A,True,name=name)
    if PRIO: A.i("s_setprio 0")
    stamp(A,2,prof)
    if not SKIPPAD and not K.MIX:
        A.i("s_cmp_ge_u32 s32, 576")
        A.i(f"s_cbranch_scc1 {name}_end")
    if NOA:
        A.i("s_cmp_eq_u32 s26, 0" if NOA==1 else "s_cmp_eq_u32 s29, 1")
        A.i(f"s_cbranch_scc1 {name}_noa")
    if K.MONO: mono_defer(A,name,2)
    v_epilogue(A,name,prof)
    if NOA:
        A.label(f"{name}_noa")
        stamp(A,3,prof)
        stamp_store(A,6,prof,name+"_x")
        A.i("s_endpgm")
    if SKIPPAD and not K.MIX:
        A.label(f"{name}_pad")
        mainloop(A,True,nomfma=True)
        A.i("s_endpgm")
```

```python
from asmlib import *

V_LANE=1; A_KM=2; A_KR=3; A_V=4; T0=5; T1=6; T2=7
QM=8; QR=12; QR0=14
KM=16; KR=20; V0=24; V1=28; P=32; O=40; S0=56; S1=72
X0=88
NV=104

def mfma16(A,d,a,b,c):
    cs = "0" if c is None else vr(c,16)
    A.i(f"v_mfma_f32_32x32x16_bf16 {vr(d,16)}, {vr(a,4)}, {vr(b,4)}, {cs}")
def mfma8(A,d,a,b,c):
    cs = "0" if c is None else vr(c,16)
    A.i(f"v_mfma_f32_32x32x8_bf16 {vr(d,16)}, {vr(a,2)}, {vr(b,2)}, {cs}")

def exps(A,s,lo,p):
    A.i(f"v_exp_f32 v{s+lo}, v{s+lo}")
    A.i(f"v_exp_f32 v{s+lo+1}, v{s+lo+1}")
    A.i(f"v_exp_f32 v{s+lo+2}, v{s+lo+2}")
    A.i(f"v_cvt_pk_bf16_f32 v{P+p}, v{s+lo}, v{s+lo+1}")
    A.i(f"v_exp_f32 v{s+lo+3}, v{s+lo+3}")
    return f"v_cvt_pk_bf16_f32 v{P+p+1}, v{s+lo+2}, v{s+lo+3}"

OPT={}
GRP_B=4*TILE_B; KG=[20,96]; QRO=118
def toff(t):
    if OPT.get('krg'): return (t>>2)*GRP_B+512+(t&3)*2240
    return t*TILE_B
_it=[0]
KMB=192; KRB=196; V0B=198; V1B=202
def step(A0,tau,cur,nxt,dma=None,ins=None):
    class F:
        def i(self,x):
            if OPT.get('nods') and x.startswith('ds_'): return
            if OPT.get('nowait') and x.startswith('s_waitcnt'): return
            if OPT.get('nomfma') and x.startswith('v_mfma'): return
            if OPT.get('nopv') and x.startswith('v_mfma') and f'v[{O}:' in x.split(',')[0]: return
            if OPT.get('nocvt') and x.startswith('v_cvt'): return
            if OPT.get('nov') and x.startswith('ds_read_b64_tr'): return
            A0.i(x)
    A=F()
    def cv(p,a):
        if OPT.get('perm'): return f"v_perm_b32 v{P+p}, v{a+1}, v{a}, s71"
        return f"v_cvt_pk_bf16_f32 v{P+p}, v{a}, v{a+1}"
    def ex(i): return f"v_exp_f32 v{cur+i}, v{cur+i}"
    M1=lambda: mfma16(A,nxt,KM,QM,None)
    M2=lambda: mfma16(A,O,V1,P+4,O)
    M3=lambda: mfma8(A,nxt,KR,QR,nxt)
    M4=lambda: mfma16(A,O,V0,P,O)
    R1=f"ds_read_b128 {vr(KM,4)}, v{A_KM} offset:{(tau+2)*TILE_B}"
    R2=f"ds_read_b128 {vr(V1,4)}, v{A_V} offset:{tau*TILE_B+608}"
    R3=f"ds_read_b32 v{KR}, v{A_KR} offset:{(tau+2)*TILE_B}"
    R4=f"ds_read_b128 {vr(V0,4)}, v{A_V} offset:{(tau+1)*TILE_B}"
    W="s_waitcnt lgkmcnt(3)"
    order=OPT.get('order',0)
    if order==0:
        A.i(W); M1(); A.i(R1)
        for x in (ex(0),ex(1),ex(2),cv(0,cur),ex(3),W,cv(1,cur+2)): A.i(x)
        M2(); A.i(R2)
        for x in (ex(4),ex(5),ex(6),cv(2,cur+4),ex(7),W,cv(3,cur+6)): A.i(x)
        M3(); A.i(R3)
        for x in (ex(8),ex(9),ex(10),cv(4,cur+8),ex(11),W,cv(5,cur+10)): A.i(x)
        M4(); A.i(R4)
        if dma:
            for l in dma: A.i(l)
        for x in (ex(12),ex(13),ex(14),cv(6,cur+12),ex(15),"s_nop 0",cv(7,cur+14)): A.i(x)
    elif order==1:
        A.i(W); M1(); A.i(R1)
        for x in (ex(0),ex(1),ex(2),ex(3),W): A.i(x)
        M2(); A.i(R2)
        for x in (cv(0,cur),cv(1,cur+2),ex(4),ex(5),ex(6),ex(7),W): A.i(x)
        M3(); A.i(R3)
        for x in (cv(2,cur+4),cv(3,cur+6),ex(8),ex(9),ex(10),ex(11),W): A.i(x)
        M4(); A.i(R4)
        if dma:
            for l in dma: A.i(l)
        for x in (cv(4,cur+8),cv(5,cur+10),ex(12),ex(13),ex(14),ex(15),cv(6,cur+12),cv(7,cur+14)): A.i(x)
    elif order==2:
        A.i(W); M1(); A.i(R1)
        for x in (ex(0),ex(1),ex(2),ex(3),W): A.i(x)
        M2(); A.i(R2)
        for x in (ex(4),cv(0,cur),ex(5),cv(1,cur+2),ex(6),ex(7),W): A.i(x)
        M3(); A.i(R3)
        for x in (ex(8),cv(2,cur+4),ex(9),cv(3,cur+6),ex(10),ex(11),W): A.i(x)
        M4(); A.i(R4)
        if dma:
            for l in dma: A.i(l)
        for x in (ex(12),cv(4,cur+8),ex(13),cv(5,cur+10),ex(14),ex(15),cv(6,cur+12),cv(7,cur+14)): A.i(x)
    elif order in (4,5,6):
        par=tau&1
        KMa=[KM,KMB][par]; KRa=[KR,KRB][par]; V0a=[V0,V0B][par]; V1a=[V1,V1B][par]
        KMn=[KM,KMB][par^1]; KRn=[KR,KRB][par^1]; V0n=[V0,V0B][par^1]; V1n=[V1,V1B][par^1]
        rd=[f"ds_read_b128 {vr(KMn,4)}, v{A_KM} offset:{toff(tau+2)}",
            f"ds_read_b128 {vr(V1n,4)}, v{A_V} offset:{toff(tau)+608}",
            f"ds_read_b32 v{KRn}, v{A_KR} offset:{(tau+2)*TILE_B}",
            f"ds_read_b128 {vr(V0n,4)}, v{A_V} offset:{toff(tau+1)}"]
        QRa=QR
        if OPT.get('krg'):
            rd[2]=f"ds_read_b128 {vr(KG[((tau+2)>>2)&1],4)}, v{A_KR} offset:{((tau+2)>>2)*GRP_B}" if tau%4==2 else None
            KRa=KG[((tau+1)>>2)&1]+2*(((tau+1)>>1)&1); QRa=QRO if (tau+1)&1 else QR
        if OPT.get('halfds') and _it[0]>1 and (tau%2==1 or OPT['halfds']==2): rd=["s_nop 0"]*4 if OPT.get('dsnop') else [None]*4
        class G:
            def i(self,x,A=A):
                if x is not None: A.i(x)
        A=G()
        def seg(L,k):
            h=ins[k] if ins else []
            pos=OPT.get('tpos',[3,5,5,5])[k]
            for n,x in enumerate(L):
                if n==pos:
                    for y in h: A.i(y)
                A.i(x)
            if pos>=len(L):
                for y in h: A.i(y)
        if order!=6: A.i("s_waitcnt lgkmcnt(0)")
        mfma16(A,nxt,KMa,QM,None)
        if order==4:
            for x in rd: A.i(x)
        else:
            A.i(rd[0]); A.i(rd[1])
        seg((ex(0),ex(1),ex(2),ex(3)),0)
        mfma16(A,O,V1a,P+4,O)
        if order>=5:
            A.i(rd[2]); A.i(rd[3])
        seg((cv(0,cur),cv(1,cur+2),ex(4),ex(5),ex(6),ex(7)),1)
        mfma8(A,nxt,KRa,QRa,nxt)
        seg((cv(2,cur+4),cv(3,cur+6),ex(8),ex(9),ex(10),ex(11)),2)
        mfma16(A,O,V0a,P,O)
        if dma:
            for l in dma: A.i(l)
        if order==6:
            for x in (cv(4,cur+8),cv(5,cur+10),ex(12),ex(13),ex(14),"s_waitcnt lgkmcnt(0)",ex(15),cv(6,cur+12),cv(7,cur+14)): A.i(x)
        else:
            seg((cv(4,cur+8),cv(5,cur+10),ex(12),ex(13),ex(14),ex(15),cv(6,cur+12),cv(7,cur+14)),3)
    elif order==3:
        A.i("s_waitcnt lgkmcnt(0)"); M1()
        for x in (ex(0),ex(1),ex(2),ex(3)): A.i(x)
        M2(); A.i(R1); A.i(R2)
        for x in (cv(0,cur),cv(1,cur+2),ex(4),ex(5),ex(6),ex(7)): A.i(x)
        M3(); A.i(R3)
        for x in (cv(2,cur+4),cv(3,cur+6),ex(8),ex(9),ex(10),ex(11)): A.i(x)
        M4(); A.i(R4)
        if dma:
            for l in dma: A.i(l)
        for x in (cv(4,cur+8),cv(5,cur+10),ex(12),ex(13),ex(14),ex(15),cv(6,cur+12),cv(7,cur+14)): A.i(x)

def set_bias(A,m,tmp):
    a,b,c=tmp,tmp+1,tmp+2
    A.i(f"v_sub_f32 v{a}, 0, v{m}")
    A.i(f"v_and_b32 v{b}, 0xffff0000, v{a}")
    A.i(f"v_sub_f32 v{a}, v{a}, v{b}")
    A.i(f"v_and_b32 v{c}, 0xffff0000, v{a}")
    A.i(f"v_sub_f32 v{a}, v{a}, v{c}")
    A.i(f"v_lshrrev_b32 v{b}, 16, v{b}")
    A.i(f"v_or_b32 v{b}, v{b}, v{c}")
    A.i(f"v_lshrrev_b32 v{a}, 16, v{a}")
    A.i(f"v_cmp_gt_u32 vcc, 32, v{V_LANE}")
    if OPT.get('krg'):
        A.i(f"v_mov_b32 v{c}, 0")
        A.i("s_nop 0")
        A.i(f"v_cndmask_b32 v{QR}, v{b}, v{QR0}, vcc")
        A.i(f"v_cndmask_b32 v{QR+1}, v{a}, v{c}, vcc")
        A.i(f"v_cndmask_b32 v{QRO}, v{b}, v{c}, vcc")
        A.i(f"v_cndmask_b32 v{QRO+1}, v{a}, v{QR0}, vcc")
        return
    A.i("s_nop 1")
    A.i(f"v_cndmask_b32 v{QR+1}, v{a}, v{b}, vcc")

def xhalf_max(A,m,t):
    A.i(f"v_mov_b32 v{t}, v{m}")
    A.i("s_nop 1")
    A.i(f"v_permlane32_swap_b32 v{m}, v{t}")
    A.i("s_nop 1")
    A.i(f"v_max_f32 v{m}, v{m}, v{t}")

def max16(A,dst,s,first):
    if first:
        A.i(f"v_max3_f32 v{dst}, v{s}, v{s+1}, v{s+2}")
        k=3
        A.i(f"v_max_f32 v{dst}, v{dst}, v{s+3}")
        k=4
    else:
        k=0
    while k<16:
        A.i(f"v_max3_f32 v{dst}, v{dst}, v{s+k}, v{s+k+1}")
        k+=2

def stamp(A,i,prof):
    if prof:
        A.i(f"s_memtime s[{40+2*i}:{41+2*i}]")
        A.i("s_waitcnt lgkmcnt(0)")
XR=[86,88,90,92,94,96,52]
def xp(A,k):
    if OPT.get('xst')==2:
        A.i(f"s_memtime s[{XR[k]}:{XR[k]+1}]")
def xs(A,k):
    if OPT.get('xst')==1:
        A.i(f"s_memtime s[{XR[k]}:{XR[k]+1}]")
def stamp_store(A,n,prof,name,base=0):
    if prof:
        A.i("s_memrealtime s[60:61]")
        A.i("s_waitcnt lgkmcnt(0)")
        A.i("s_lshl_b32 s6, s2, 4")
        A.i("s_add_u32 s6, s6, s70")
        A.i("s_lshl_b32 s6, s6, 6")
        A.i(f"s_add_u32 s6, s6, {WS_PROF+base}")
        A.i("s_add_u32 s64, s20, s6")
        A.i("s_addc_u32 s65, s21, 0")
        A.i(f"v_mov_b32 v{X0+8}, 0")
        for i in range(n):
            A.i(f"v_mov_b32 v{X0+9}, s{40+2*i if i<7 else (XR[i-7] if OPT.get('xst') else 84+2*(i-7))}")
            A.i(f"global_store_dword v{X0+8}, v{X0+9}, s[64:65] offset:{4*i}")
        if OPT.get('daf') and name.startswith('k2'):
            for k,r in ((11,99),(12,100)):
                A.i(f"v_mov_b32 v{X0+9}, s{r}")
                A.i(f"global_store_dword v{X0+8}, v{X0+9}, s[64:65] offset:{4*k}")
        A.i("s_getreg_b32 s6, hwreg(HW_REG_XCC_ID, 0, 4)")
        A.i(f"v_mov_b32 v{X0+9}, s6")
        A.i(f"global_store_dword v{X0+8}, v{X0+9}, s[64:65] offset:{52}")
        A.i(f"v_mov_b32 v{X0+9}, s58")
        A.i(f"global_store_dword v{X0+8}, v{X0+9}, s[64:65] offset:{56}")
        A.i(f"v_mov_b32 v{X0+9}, s60")
        A.i(f"global_store_dword v{X0+8}, v{X0+9}, s[64:65] offset:{60}")
def lane_mask(f):
    m=0
    for l in range(64):
        if f(l): m|=1<<l
    return m
class LSet:
    def __init__(s,b):
        s.Q=b; s.QR=b+4; s.KM0=b+6; s.KM1=b+10; s.KR0=b+14; s.KR1=b+16; s.V0=b+18; s.V1=b+22; s.V2=b+26
LA=LSet(104); LB=LSet(134)
DMAV=100; LNEG=101; PFJ=164
BIAS0=168; BIAS1=184
NV=208

def finish_store(A,srd,PK,qt_s,h_s,O_MOD=''):
    A.i(f"v_rcp_f32 v{X0}, v{X0}")
    A.i("s_nop 0")
    if OPT.get('pk'):
        for r in range(0,10,2): A.i(f"v_pk_mul_f32 {vr(O+r,2)}, {vr(O+r,2)}, {vr(X0,2)} op_sel_hi:[1,0]")
    else:
        for r in range(10):
            A.i(f"v_mul_f32 v{O+r}, v{O+r}, v{X0}")
    for r in range(5):
        A.i(f"v_cvt_pk_bf16_f32 v{PK+r}, v{O+2*r}, v{O+2*r+1}")
    A.i(f"v_and_b32 v{T0}, 31, v{V_LANE}")
    A.i(f"s_lshl_b32 s6, s{qt_s}, 5")
    A.i(f"v_add_u32 v{T0}, s6, v{T0}")
    A.i(f"v_mul_u32_u24 v{T0}, 1152, v{T0}")
    A.i(f"s_mul_i32 s6, s{h_s}, 36")
    A.i(f"v_lshrrev_b32 v{T1}, 5, v{V_LANE}")
    A.i(f"v_lshlrev_b32 v{T1}, 3, v{T1}")
    A.i(f"v_add3_u32 v{T0}, v{T0}, v{T1}, s6")
    A.i(f"buffer_store_dwordx2 {vr(PK,2)}, v{T0}, {sr(srd,4)}, 0 offen {O_MOD}")
    A.i(f"buffer_store_dwordx2 {vr(PK+2,2)}, v{T0}, {sr(srd,4)}, 0 offen offset:16 {O_MOD}")
    A.i(f"v_cmp_gt_u32 vcc, 32, v{V_LANE}")
    A.i("s_and_saveexec_b64 s[24:25], vcc")
    A.i(f"buffer_store_dword v{PK+4}, v{T0}, {sr(srd,4)}, 0 offen offset:32 {O_MOD}")
    A.i("s_mov_b64 exec, s[24:25]")

def make_bias(A):
    A.i(f"v_mov_b32 v{LNEG}, 0xf149f2ca")
    A.i(f"v_mov_b32 v{T2}, 0")
    def msk(reg,m):
        A.i(f"s_mov_b32 s32, {m&0xffffffff}")
        A.i(f"s_mov_b32 s33, {m>>32}")
        A.i(f"v_cndmask_b32 v{reg}, v{LNEG}, v{T2}, s[32:33]")
    for i in range(16):
        def ok(l,i=i):
            key=8*(i//4)+4*(l//32)+i%4; d=(l%32)-key
            return d>=0 and d<=14 and d%2==0
        msk(BIAS0+i,lane_mask(ok))
    for i in range(8,16):
        def ok(l,i=i):
            key=8*(i//4)+4*(l//32)+i%4; d=(l%32)+32-key
            return d>=0 and d<=14 and d%2==0
        msk(BIAS1+i-8,lane_mask(ok))

def local_loads(A,L,qt_s,t):
    A.i(f"s_lshl_b32 s30, s3, 6")
    A.i(f"s_add_u32 s30, s30, s{qt_s}")
    A.i(f"s_mul_i32 s30, s30, {QT_B}")
    A.i(f"s_add_u32 s30, s30, {WS_QA-WS_KVA}")
    A.i(f"s_mul_i32 s6, s3, {KV_HEAD}")
    A.i(f"s_mul_i32 s31, s{qt_s}, {TILE_B}")
    A.i(f"s_add_u32 s31, s31, s6")
    A.i(f"s_sub_u32 s35, s31, {TILE_B}")
    A.i(f"s_cmp_eq_u32 s{qt_s}, 0")
    A.i(f"s_cselect_b32 s35, s31, s35")
    A.i(f"buffer_load_dwordx4 {vr(L.Q,4)}, v{DMAV}, s[24:27], s30 offen")
    A.i(f"buffer_load_dword v{L.QR}, v{LAQ}, s[24:27], s30 offen offset:1024")
    A.i(f"buffer_load_dwordx4 {vr(L.KM0,4)}, v{DMAV}, s[24:27], s31 offen")
    A.i(f"buffer_load_dword v{L.KR0}, v{LAR}, s[24:27], s31 offen")
    A.i(f"buffer_load_dwordx4 {vr(L.KM1,4)}, v{DMAV}, s[24:27], s35 offen")
    A.i(f"buffer_load_dword v{L.KR1}, v{LAR}, s[24:27], s35 offen")
    A.i(f"buffer_load_dwordx4 {vr(L.V0,4)}, v{LAV}, s[24:27], s31 offen")
    A.i(f"buffer_load_dwordx4 {vr(L.V1,4)}, v{LAV}, s[24:27], s31 offen offset:608")
    A.i(f"buffer_load_dwordx4 {vr(L.V2,4)}, v{LAV}, s[24:27], s35 offen offset:608")
def local_loads_l(L,qt_s,sq,sk,sp):
    pre=["s_lshl_b32 s30, s3, 6", f"s_add_u32 s30, s30, s{qt_s}", f"s_mul_i32 s30, s30, {QT_B}", f"s_add_u32 s{sq}, s30, {WS_QA-WS_KVA}",
         f"s_mul_i32 s6, s3, {KV_HEAD}", f"s_mul_i32 s30, s{qt_s}, {TILE_B}", f"s_add_u32 s{sk}, s30, s6", f"s_sub_u32 s{sp}, s{sk}, {TILE_B}",
         f"s_cmp_eq_u32 s{qt_s}, 0", f"s_cselect_b32 s{sp}, s{sk}, s{sp}"]
    ld=[f"buffer_load_dwordx4 {vr(L.Q,4)}, v{DMAV}, s[24:27], s{sq} offen",
        f"buffer_load_dword v{L.QR}, v{LAQ}, s[24:27], s{sq} offen offset:1024",
        f"buffer_load_dwordx4 {vr(L.KM0,4)}, v{DMAV}, s[24:27], s{sk} offen",
        f"buffer_load_dword v{L.KR0}, v{LAR}, s[24:27], s{sk} offen",
        f"buffer_load_dwordx4 {vr(L.KM1,4)}, v{DMAV}, s[24:27], s{sp} offen",
        f"buffer_load_dword v{L.KR1}, v{LAR}, s[24:27], s{sp} offen",
        f"buffer_load_dwordx4 {vr(L.V0,4)}, v{LAV}, s[24:27], s{sk} offen",
        f"buffer_load_dwordx4 {vr(L.V1,4)}, v{LAV}, s[24:27], s{sk} offen offset:608",
        f"buffer_load_dwordx4 {vr(L.V2,4)}, v{LAV}, s[24:27], s{sp} offen offset:608"]
    return pre,ld
def local_attn_mid(A,L,qt_s):
    global S0,S1,P,O
    sv=(S0,S1,P,O)
    S0,S1,P,O=sv[1],208,240,224
    local_attn(A,L,qt_s)
    S0,S1,P,O=sv
LAQ=102; LAR=103; LAV=165

def local_attn(A,L,qt_s,mid=None):
    A.i(f"v_cmp_gt_u32 vcc, 32, v{V_LANE}")
    A.i(f"v_mov_b32 v{L.QR+1}, 0")
    A.i(f"v_mov_b32 v{L.KR0+1}, 0")
    A.i(f"v_mov_b32 v{L.KR1+1}, 0")
    A.i(f"v_cndmask_b32 v{L.QR}, 0, v{L.QR}, vcc")
    mfma16(A,S0,L.KM0,L.Q,BIAS0)
    mfma16(A,S1,L.KM1,L.Q,BIAS1-8)
    A.i("s_nop 9")
    mfma8(A,S0,L.KR0,L.QR,S0)
    mfma8(A,S1,L.KR1,L.QR,S1)
    A.i("s_nop 11")
    max16(A,X0,S0,True)
    for k in range(8,16,2):
        A.i(f"v_max3_f32 v{X0}, v{X0}, v{S1+k}, v{S1+k+1}")
    xhalf_max(A,X0,X0+1)
    regs=[S0+i for i in range(16)]+[S1+i for i in range(8,16)]
    if OPT.get('pk'):
        for r in regs[::2]: A.i(f"v_pk_add_f32 {vr(r,2)}, {vr(r,2)}, {vr(X0,2)} op_sel_hi:[1,0] neg_lo:[0,1] neg_hi:[0,1]")
    else:
        for r in regs: A.i(f"v_sub_f32 v{r}, v{r}, v{X0}")
    for r in regs: A.i(f"v_exp_f32 v{r}, v{r}")
    A.i("s_nop 0")
    for r in range(8): A.i(f"v_cvt_pk_bf16_f32 v{P+r}, v{S0+2*r}, v{S0+2*r+1}")
    for r in range(4): A.i(f"v_cvt_pk_bf16_f32 v{X0+4+r}, v{S1+8+2*r}, v{S1+8+2*r+1}")
    if mid: mid()
    A.i("s_nop 1")
    mfma16(A,O,L.V0,P,None)
    mfma16(A,O,L.V1,P+4,O)
    mfma16(A,O,L.V2,X0+4,O)
    A.i("s_nop 11")
    A.i("s_nop 7")
    A.i(f"v_mov_b32 v{X0}, v{O+10}")
    A.i(f"v_mov_b32 v{X0+1}, v{O+10}")
    A.i("s_nop 1")
    A.i(f"v_permlane32_swap_b32 v{X0}, v{X0+1}")
    A.i("s_nop 1")
    if OPT.get('ag'): finish_frag(A,L.Q,qt_s)
    else: finish_store(A,36,L.Q,qt_s,3,OPT.get('omod',''))

VOA=206; POLL=207; GB0=120; GB1=16; GACC=232; GV=220; GV8=221; GONE=222; GJ=223
def ag_regs():
    global KMB,KRB,V0B,V1B,LA,LB,BIAS0,BIAS1,PFJ,LAV,NV
    KMB=104; KRB=108; V0B=110; V1B=114
    LA=LSet(120); LB=LSet(150); BIAS0=180; BIAS1=196; PFJ=204; LAV=205; NV=256

def finish_frag(A,PK,qt_s):
    A.i(f"v_rcp_f32 v{X0}, v{X0}")
    A.i("s_nop 0")
    for r in range(0,10,2): A.i(f"v_pk_mul_f32 {vr(O+r,2)}, {vr(O+r,2)}, {vr(X0,2)} op_sel_hi:[1,0]")
    for r in range(5):
        A.i(f"v_cvt_pk_bf16_f32 v{PK+r}, v{O+2*r}, v{O+2*r+1}")
    A.i(f"s_lshl_b32 s6, s{qt_s}, 15")
    A.i("s_lshl_b32 s30, s3, 9")
    A.i("s_add_u32 s6, s6, s30")
    A.i(f"s_add_u32 s6, s6, {WS_OA}")
    A.i(f"s_lshl_b32 s31, s{qt_s}, 12")
    A.i("s_lshl_b32 s30, s3, 7")
    A.i("s_add_u32 s31, s31, s30")
    A.i(f"s_add_u32 s31, s31, {WS_OAR-OFF_KR}")
    A.i(f"buffer_store_dwordx4 {vr(PK,4)}, v{VOA}, s[36:39], s6 offen {OPT.get('oamod','sc1')}")
    A.i(f"v_cmp_gt_u32 vcc, 32, v{V_LANE}")
    A.i("s_and_saveexec_b64 s[32:33], vcc")
    A.i(f"buffer_store_dword v{PK+4}, v{LAR}, s[36:39], s31 offen {OPT.get('oamod','sc1')}")
    A.i("s_mov_b64 exec, s[32:33]")

def ag_loads(steps,base):
    L=[]; r=base; M=[]
    for st in steps:
        o=[]
        for tt in range(2):
            if st<16:
                L.append([f"s_add_u32 s30, s68, {tt*16384+st*1024}",f"buffer_load_dwordx4 {vr(r,4)}, v{GV}, s[36:39], s30 offen {OPT.get('oamod','sc1')}"])
            else:
                for i in range(4):
                    L.append([f"s_add_u32 s30, s67, {(st-16)*2048}",f"buffer_load_dword v{r+i}, v{GJ}, s[36:39], s30 offen offset:{i*128+tt*64} {OPT.get('oamod','sc1')}"])
            o.append(r); r+=4
        w=[]
        for ct in range(3):
            L.append([f"s_add_u32 s30, s69, {(ct*18+st)*1024}",f"buffer_load_dwordx4 {vr(r,4)}, v{GV}, s[36:39], s30 offen"])
            w.append(r); r+=4
        for tt in range(2):
            for ct in range(3):
                d=GACC+4*(3*tt+ct)
                M.append(f"v_mfma_f32_16x16x32_bf16 {vr(d,4)}, {vr(w[ct],4)}, {vr(o[tt],4)}, {vr(d,4) if st else 0}")
    if OPT.get('agnoload'): L=[[g[0]] for g in L]
    if OPT.get('agnomfma'): M=M[:1]
    if OPT.get('agsp'): M=[x for m in M for x in (m,f"s_nop {OPT['agsp']}")]
    return L,M
AGB=[list(range(0,5)),list(range(5,10)),list(range(10,15)),[15,16,17]]
def ag_step(st):
    r=GB0+20*(st%5); L=[]; M=[]
    mod=OPT.get('oaldmod',OPT.get('oamod','sc1')).replace('-','')
    pre=[]
    if st%4==0 and st>0: pre=[f"s_add_u32 s{80+q}, s{80+q}, 4096" for q in range(5)]
    for tt in range(2):
        if st<16: L.append([f"buffer_load_dwordx4 {vr(r+4*tt,4)}, v{GV}, s[36:39], s{80+tt} offen offset:{(st%4)*1024} {mod}"])
        else:
            for i in range(4): L.append([f"buffer_load_dword v{r+4*tt+i}, v{GJ}, s[36:39], s67 offen offset:{(st-16)*2048+i*128+tt*64} {mod}"])
    for ct in range(3):
        L.append([f"buffer_load_dwordx4 {vr(r+8+4*ct,4)}, v{GV}, s[36:39], s{82+ct} offen offset:{(st%4)*1024}"])
    L[0]=pre+L[0]
    for tt in range(2):
        for ct in range(3):
            d=GACC+4*(3*tt+ct)
            M.append(f"v_mfma_f32_16x16x32_bf16 {vr(d,4)}, {vr(r+8+4*ct,4)}, {vr(r+4*tt,4)}, {vr(d,4) if st else 0}")
    return L,M
def ag_sched(ntiles=32):
    D=OPT.get('agd',5); NPT=OPT.get('agn',4)
    steps=[ag_step(st) for st in range(18)]
    pre=[g for st in range(5) for g in steps[st][0]]
    issued=[st for st in range(5) for g in steps[st][0]]
    slots=[(t,k) for t in range(D,ntiles) for k in ([0,1,2,3] if NPT==4 else [0,1,3])]
    hooks=[[[] for k in range(4)] for t in range(ntiles)]
    tail=[]
    pend=[]
    for u in range(108):
        st,j=divmod(u,6)
        dst = hooks[slots[u][0]][slots[u][1]] if u<len(slots) else tail
        if j==0:
            while any(p[0]==st for p in pend):
                p=pend.pop(0); dst.extend(p[1]); issued.append(p[0])
            last=max(i for i,x in enumerate(issued) if x==st)
            dst.append(f"s_waitcnt vmcnt({len(issued)-1-last})")
        dst.append(steps[st][1][j])
        if u>=len(slots) and OPT.get('agsp'): dst.append(f"s_nop {OPT['agsp']}")
        if j==5 and st+5<18: pend+=[(st+5,g) for g in steps[st+5][0]]
        n=2 if (pend and pend[0][0]>=16) else 1
        for _ in range(n):
            if pend:
                p=pend.pop(0); dst.extend(p[1]); issued.append(p[0])
    assert not pend
    return pre,hooks,tail
def ag_bases(A):
    A.i("s_mov_b32 s80, s68")
    A.i("s_add_u32 s81, s68, 16384")
    A.i("s_mov_b32 s82, s69")
    A.i(f"s_add_u32 s83, s69, {18*1024}")
    A.i(f"s_add_u32 s84, s69, {36*1024}")
def emit(A,L):
    for g in L:
        for l in (g if isinstance(g,list) else [g]): A.i(l)
def ag_setup(A):
    A.i("s_and_b32 s6, s2, 7")
    A.i("s_lshl_b32 s6, s6, 3")
    if OPT.get('amap'):
        A.i("s_lshr_b32 s30, s2, 3")
        A.i("s_mul_i32 s30, s30, 3")
        A.i("s_add_u32 s30, s30, s98")
        A.i("s_lshr_b32 s63, s30, 3")
        A.i("s_and_b32 s30, s30, 7")
        A.i("s_add_u32 s62, s6, s30")
    else:
        A.i("s_lshr_b32 s30, s2, 5")
        A.i("s_add_u32 s62, s6, s30")
        A.i("s_lshr_b32 s30, s2, 3")
        A.i("s_and_b32 s30, s30, 3")
        A.i("s_mul_i32 s30, s30, 3")
        A.i("s_add_u32 s63, s30, s98")
    A.i("s_lshl_b32 s68, s62, 15")
    A.i(f"s_add_u32 s68, s68, {WS_OA}")
    A.i(f"s_mul_i32 s69, s63, {3*18*1024}")
    A.i(f"s_add_u32 s69, s69, {WS_WOT}")
    A.i("s_lshl_b32 s67, s62, 12")
    A.i(f"s_add_u32 s67, s67, {WS_OAR}")
    A.i(f"v_lshlrev_b32 v{GV}, 4, v{V_LANE}")
    A.i(f"v_lshlrev_b32 v{GV8}, 3, v{V_LANE}")
    A.i(f"v_lshrrev_b32 v{GJ}, 4, v{V_LANE}")
    A.i(f"v_lshlrev_b32 v{GJ}, 9, v{GJ}")
    A.i(f"v_and_b32 v{GONE}, 15, v{V_LANE}")
    A.i(f"v_lshl_add_u32 v{GJ}, v{GONE}, 2, v{GJ}")
    A.i(f"v_mov_b32 v{GONE}, 1")
def ag_task(A,name,newer):
    Ls=[];Ms=[]
    for b in range(4):
        L,M=ag_loads(AGB[b],GB0 if b%2==0 else GB1); Ls.append(L); Ms.append(M)
    emit(A,Ls[1])
    A.i(f"s_waitcnt vmcnt({len(Ls[1])+newer})")
    emit(A,Ms[0]); emit(A,Ls[2])
    A.i(f"s_waitcnt vmcnt({len(Ls[2])})")
    emit(A,Ms[1]); emit(A,Ls[3])
    A.i(f"s_waitcnt vmcnt({len(Ls[3])})")
    emit(A,Ms[2])
    A.i("s_waitcnt vmcnt(0)")
    emit(A,Ms[3])
    ag_epi(A)
ABASE=151552
def ag_epi_lds(A):
    A.i("s_mul_i32 s6, s98, 1536")
    A.i(f"s_add_u32 s6, s6, {ABASE}")
    A.i(f"v_add_u32 v{GV8}, s6, v{GV8}")
    A.i("s_nop 3")
    for tt in range(2):
        for ct in range(3):
            d=GACC+4*(3*tt+ct); p=GB0+2*(3*tt+ct)
            A.i(f"v_cvt_pk_bf16_f32 v{p}, v{d}, v{d+1}")
            A.i(f"v_cvt_pk_bf16_f32 v{p+1}, v{d+2}, v{d+3}")
            A.i(f"ds_write_b64 v{GV8}, {vr(p,2)} offset:{(tt*9+ct)*512}")
def ag_epi(A):
    if OPT.get('fuse'): return ag_epi_lds(A)
    A.i("s_lshl_b32 s6, s62, 1")
    A.i("s_mul_i32 s6, s6, 36")
    A.i("s_mul_i32 s30, s63, 3")
    A.i("s_add_u32 s6, s6, s30")
    A.i("s_lshl_b32 s6, s6, 9")
    A.i(f"s_add_u32 s6, s6, {WS_AT}")
    A.i(f"s_add_u32 s30, s6, {36*512}")
    A.i("s_lshl_b32 s31, s62, 4")
    A.i("s_add_u32 s31, s31, s63")
    A.i("s_lshl_b32 s31, s31, 2")
    A.i(f"s_add_u32 s31, s31, {WS_FLAG+0x1000}")
    A.i("s_nop 3")
    for tt in range(2):
        for ct in range(3):
            d=GACC+4*(3*tt+ct); p=GB0+2*(3*tt+ct)
            A.i(f"v_cvt_pk_bf16_f32 v{p}, v{d}, v{d+1}")
            A.i(f"v_cvt_pk_bf16_f32 v{p+1}, v{d+2}, v{d+3}")
            A.i(f"buffer_store_dwordx2 {vr(p,2)}, v{GV8}, s[36:39], s{30 if tt else 6} offen offset:{ct*512} {OPT.get('atmod','')}")
    A.i("s_mov_b64 exec, 1")
    A.i(f"buffer_store_dword v{GONE}, off, s[36:39], s31")
    A.i("s_mov_b64 exec, -1")
def touch(A,srd,base,dst):
    A.i("s_lshr_b32 s6, s2, 3")
    A.i("s_lshl_b32 s6, s6, 2")
    A.i("s_add_u32 s6, s6, s98")
    A.i(f"s_mul_i32 s6, s6, {41*128}")
    if base: A.i(f"s_add_u32 s6, s6, {base}")
    A.i(f"v_lshlrev_b32 v{T0}, 7, v{V_LANE}")
    A.i(f"v_cmp_gt_u32 vcc, 41, v{V_LANE}")
    A.i("s_and_saveexec_b64 s[32:33], vcc")
    A.i(f"buffer_load_dword v{dst}, v{T0}, {sr(srd,4)}, s6 offen")
    A.i("s_mov_b64 exec, s[32:33]")

def prefetch_wo(A):
    A.i("s_lshr_b32 s6, s2, 3")
    A.i("s_lshl_b32 s6, s6, 2")
    A.i("s_add_u32 s6, s6, s5")
    A.i("s_cmp_ge_u32 s6, 64")
    A.i("s_cselect_b32 s72, s78, s76")
    A.i("s_cselect_b32 s73, s79, s77")
    A.i("s_and_b32 s73, s73, 0xffff")
    A.i(f"s_mov_b32 s74, {576*1152}")
    A.i("s_mov_b32 s75, 0x20000")
    A.i("s_and_b32 s6, s6, 63")
    A.i(f"s_mul_i32 s6, s6, {81*128}")
    A.i(f"v_lshlrev_b32 v{PFJ}, 7, v{V_LANE}")
    A.i(f"s_add_u32 s7, s6, 8192")
    A.i(f"buffer_load_dword v{PFJ+0}, v{PFJ}, s[72:75], s6 offen")
    A.i(f"v_lshlrev_b32 v{T0}, 7, v{V_LANE}")
    A.i(f"v_cmp_gt_u32 s[82:83], 17, v{V_LANE}")
    A.i("s_nop 3")
    A.i("s_and_saveexec_b64 s[80:81], s[82:83]")
    A.i(f"buffer_load_dword v{T1}, v{T0}, s[72:75], s7 offen")
    A.i("s_mov_b64 exec, s[80:81]")

LCNT2=163836
SPIN=60000
def xt(A,k,prof):
    if prof and not OPT.get('xst'):
        A.i(f"s_memtime s[{84+2*k}:{85+2*k}]")
        A.i("s_waitcnt lgkmcnt(0)")
def finish_frag_b(A,PK):
    A.i(f"v_rcp_f32 v{X0}, v{X0}")
    A.i(f"v_bfe_u32 v{T0}, v{V_LANE}, 4, 1")
    A.i(f"v_lshlrev_b32 v{T0}, 14, v{T0}")
    A.i(f"v_lshrrev_b32 v{T2}, 5, v{V_LANE}")
    A.i(f"v_lshl_add_u32 v{T0}, v{T2}, 8, v{T0}")
    A.i(f"v_and_b32 v{T2}, 15, v{V_LANE}")
    A.i(f"v_lshl_add_u32 v{T0}, v{T2}, 4, v{T0}")
    for r in range(0,10,2): A.i(f"v_pk_mul_f32 {vr(O+r,2)}, {vr(O+r,2)}, {vr(X0,2)} op_sel_hi:[1,0]")
    for r in range(5):
        A.i(f"v_cvt_pk_bf16_f32 v{PK+r}, v{O+2*r}, v{O+2*r+1}")
    if OPT.get('daf'):
        for r in range(5): A.i(f"v_min_u32 v{PK+r}, -2, v{PK+r}")
    A.i("s_lshl_b32 s6, s7, 15")
    A.i("s_lshl_b32 s30, s3, 9")
    A.i("s_add_u32 s6, s6, s30")
    A.i(f"s_add_u32 s6, s6, {WS_OB}")
    A.i("s_lshl_b32 s31, s7, 12")
    A.i("s_lshl_b32 s30, s3, 7")
    A.i("s_add_u32 s31, s31, s30")
    A.i(f"s_add_u32 s31, s31, {WS_OBR-OFF_KR}")
    A.i(f"buffer_store_dwordx4 {vr(PK,4)}, v{T0}, s[36:39], s6 offen sc1")
    A.i(f"v_cmp_gt_u32 vcc, 32, v{V_LANE}")
    A.i("s_and_saveexec_b64 s[32:33], vcc")
    A.i(f"buffer_store_dword v{PK+4}, v{LAR}, s[36:39], s31 offen sc1")
    A.i("s_mov_b64 exec, s[32:33]")
def spin(A,lab,reg,flagreg,tmp):
    A.i(f"s_mov_b32 s{tmp}, {SPIN}")
    A.label(lab)
    A.i("s_cmp_eq_u32 s6, 32")
    A.i(f"s_cbranch_scc1 {lab}_go")
    A.i(f"s_sub_u32 s{tmp}, s{tmp}, 1")
    A.i(f"s_cbranch_scc1 {lab}_go")
    A.i(f"buffer_load_dword v{reg}, off, s[36:39], s{flagreg} sc1")
    A.i("s_waitcnt vmcnt(0)")
    A.i(f"v_readfirstlane_b32 s6, v{reg}")
    A.i(f"s_branch {lab}")
    A.label(lab+"_go")
EW=120; EG=200; EX=160; PFJ_O=22
TL16=8; TG=9; TOM=11; TOUT=13; TRM=14; TAA=15; TX=16; TACC=40; TW=64; TGA=208; TAP=224; TTMP=56; TDY=60
EGO=118
def WPRE(ci,st):
    return 120+4*(17*ci+st) if st<17 else 104+4*ci
def gen_tail(A,name,prof):
    global TGA,TAP
    sw2=OPT.get('sw2')
    if sw2: TGA,TAP=64,80
    WS_=(lambda ci,st: WPRE(ci,st)) if sw2 else (lambda ci,st: TW+72*ci+4*st)
    WY_=(lambda ci,st: 120+4*st) if sw2 else (lambda ci,st: TW+4*st)
    ptc=OPT.get('ptc')
    daf=OPT.get('daf')
    if daf:
        assert OPT.get('wlate') and not OPT.get('tb') and not sw2
    elif ptc:
        A.i(f"v_mov_b32 v{TTMP+3}, 1")
        A.i("s_lshl_b32 s30, s7, 7")
        A.i(f"s_add_u32 s30, s30, {WS_FLAG+0x2000}")
        A.i("s_waitcnt vmcnt(0) lgkmcnt(0)")
        A.i("s_mov_b64 exec, 1")
        A.i(f"buffer_atomic_add v{TTMP+3}, off, s[36:39], s30 sc1")
        A.i("s_mov_b64 exec, -1")
    else:
      R=OPT.get('prep',1)
      if R>1: A.i(f"v_lshlrev_b32 v{TTMP+1}, 7, v{V_LANE}")
      for l in ["s_waitcnt vmcnt(0) lgkmcnt(0)",
        f"v_mov_b32 v{TTMP}, {LCNT2}",
        f"v_mov_b32 v{TTMP+3}, 1",
        "s_mov_b64 exec, 1",
        f"ds_add_rtn_u32 v{TTMP+2}, v{TTMP}, v{TTMP+3}",
        f"s_mul_i32 s30, s4, {R*128 if R>1 else 256}",
        f"s_add_u32 s30, s30, {WS_FLAG+0x1000}",
        "s_waitcnt lgkmcnt(0)",
        f"v_readfirstlane_b32 s6, v{TTMP+2}",
        "s_mov_b32 s73, s6",
        "s_cmp_eq_u32 s6, 7",
        f"s_cbranch_scc0 {name}_tnosig"]+([f"buffer_atomic_add v{TTMP+3}, off, s[36:39], s30 sc1"] if R==1 else
        [f"s_mov_b32 exec_lo, {hex((1<<R)-1)}", "s_mov_b32 exec_hi, 0", f"buffer_atomic_add v{TTMP+3}, v{TTMP+1}, s[36:39], s30 offen sc1"]): A.i(l)
      A.label(f"{name}_tnosig")
      A.i("s_mov_b64 exec, -1")
    xt(A,0,prof)
    def common_setup():
        A.i("s_and_b32 s74, s2, 7")
        A.i("s_lshl_b32 s74, s74, 3")
        A.i("s_lshr_b32 s6, s2, 5")
        A.i("s_add_u32 s74, s74, s6")
        A.i("s_lshr_b32 s75, s2, 3")
        A.i("s_and_b32 s75, s75, 3")
        A.i(f"v_lshlrev_b32 v{TL16}, 4, v{V_LANE}")
        A.i(f"v_and_b32 v{TTMP}, 15, v{V_LANE}")
        A.i(f"v_lshrrev_b32 v{TTMP+1}, 4, v{V_LANE}")
        A.i(f"v_lshlrev_b32 v{TRM}, 9, v{TTMP+1}")
        A.i(f"v_lshl_add_u32 v{TRM}, v{TTMP}, 2, v{TRM}")
        A.i(f"v_lshlrev_b32 v{TAA}, 3, v{V_LANE}")
        A.i(f"v_add_u32 v{TAA}, {ABASE}, v{TAA}")
        A.i("s_lshl_b32 s6, s74, 5")
        A.i(f"v_add_u32 v{TTMP}, s6, v{TTMP}")
        A.i(f"v_mul_u32_u24 v{TOUT}, 1152, v{TTMP}")
        A.i(f"v_lshl_add_u32 v{TOUT}, v{TTMP+1}, 3, v{TOUT}")
        A.i(f"v_lshlrev_b32 v{TTMP}, 2, v{TTMP}")
    def xload6(p,md,ar=TL16):
        if p<4:
            for k in range(2): A.i(f"buffer_load_dwordx4 {vr(16+8*p+4*k,4)}, v{ar}, s[36:39], s{80+p} offen offset:{k*1024} {md}")
        else: A.i(f"buffer_load_dwordx4 {vr(16+32,4)}, v{ar}, s[36:39], s67 offen {md}")
    if daf==6:
        md6=OPT.get('xmod','sc1').replace('-','')
        A.i("s_cmp_ge_u32 s5, 4")
        A.i(f"s_cbranch_scc0 {name}_tcom")
        A.i(f"s_setprio {OPT.get('dprio',2)}")
        A.i("s_cmp_eq_u32 s5, 7")
        A.i(f"s_cbranch_scc1 {name}_tcom")
        A.i("s_barrier")
        if prof:
            A.i("s_memtime s[100:101]")
            A.i("s_waitcnt lgkmcnt(0)")
            A.i("s_mov_b32 s99, 1")
        for p in range(5): xload6(p,md6,DMAV)
        common_setup()
        A.i(f"s_branch {name}_tl1")
        A.label(f"{name}_tcom")
    common_setup()
    wlate=OPT.get('wlate')
    def gw_loads(two,steps=None,g=True):
        if sw2 and two:
            A.i(f"v_mov_b32 v{TG}, v{EGO}")
            A.i(f"v_mov_b32 v{TG+1}, v{EGO+1}")
        elif g:
            A.i(f"s_mov_b32 s30, {WS_G}")
            A.i(f"buffer_load_dword v{TG}, v{TTMP}, s[36:39], s30 offen")
            A.i(f"buffer_load_dword v{TG+1}, v{TTMP}, s[36:39], s30 offen offset:64")
        A.i("s_lshl_b32 s72, s5, 1")
        A.i("s_min_u32 s72, s72, 8")
        A.i("s_mul_i32 s6, s75, 9")
        A.i("s_add_u32 s6, s6, s72")
        if OPT.get('w64'):
            A.i("s_mul_i32 s31, s75, 288")
            A.i("s_and_b32 s30, s75, 1")
            if two:
                A.i("s_lshl_b32 s30, s30, 5")
                A.i("s_add_u32 s31, s31, s30")
                A.i("s_lshl_b32 s30, s5, 6")
                A.i("s_add_u32 s31, s31, s30")
                A.i(f"v_lshrrev_b32 v{TDY+3}, 4, v{V_LANE}")
                A.i(f"v_lshl_add_u32 v{TOUT}, v{TDY+3}, 3, v{TOUT}")
            else:
                A.i("s_cmp_eq_u32 s30, 0")
                A.i("s_cselect_b32 s30, 256, 0")
                A.i("s_add_u32 s31, s31, s30")
        else: A.i("s_lshl_b32 s31, s6, 5")
        A.i(f"v_add_u32 v{TOUT}, s31, v{TOUT}")
        A.i(f"s_mul_i32 s30, s6, {18*1024}")
        if steps:
            A.i(f"s_add_u32 s30, s30, {WS_WOTB+steps[0]*1024}")
            for k,st in enumerate(steps):
                if k and k%4==0: A.i("s_add_u32 s30, s30, 4096")
                A.i(f"buffer_load_dwordx4 {vr(TW+4*st,4)}, v{TL16}, s[36:39], s30 offen offset:{(k%4)*1024}")
            return
        if sw2 and two:
            A.i(f"s_add_u32 s30, s30, {WS_WOTB+17*1024}")
            A.i(f"buffer_load_dwordx4 {vr(WS_(0,17),4)}, v{TL16}, s[36:39], s30 offen")
            A.i(f"s_add_u32 s30, s30, {18*1024}")
            A.i(f"buffer_load_dwordx4 {vr(WS_(1,17),4)}, v{TL16}, s[36:39], s30 offen")
            return
        A.i(f"s_add_u32 s30, s30, {WS_WOTB}")
        for st in range(18):
            if st and st%4==0: A.i("s_add_u32 s30, s30, 4096")
            A.i(f"buffer_load_dwordx4 {vr(WY_(0,st) if not two else TW+4*st,4)}, v{TL16}, s[36:39], s30 offen offset:{(st%4)*1024}")
        if two=='w':
            A.i("s_cmp_ge_u32 s5, 4")
            A.i(f"s_cbranch_scc1 {name}_tnow")
        if two:
            A.i("s_add_u32 s30, s30, 2048")
            for st in range(18):
                if st and st%4==0: A.i("s_add_u32 s30, s30, 4096")
                A.i(f"buffer_load_dwordx4 {vr(TW+72+4*st,4)}, v{TL16}, s[36:39], s30 offen offset:{(st%4)*1024}")
    def xrd(slot,tt,st):
        r=TX+8*slot
        if st<16: return lambda o: [f"ds_read_b128 {vr(r+o,4)}, v{TL16} offset:{(tt*16+st)*1024}"]
        return lambda o: [f"ds_read_b32 v{r+o+i}, v{TRM} offset:{32768+(st-16)*2048+i*128+tt*64}" for i in range(4)]
    def mix_setup(units,npieces):
        for n,(tt,ct) in enumerate(units):
            if tt=='w': A.i(f"ds_read_b64 {vr(TAP+2*n,2)}, v{TAA}")
            else: A.i(f"ds_read_b64 {vr(TAP+2*n,2)}, v{TAA} offset:{(tt*9+ct)*512}")
        A.i(f"s_waitcnt vmcnt({npieces}) lgkmcnt(0)")
        for n,(tt,ct) in enumerate(units):
            g=TG+(0 if tt=='w' else tt)
            for h in range(2):
                A.i(f"v_lshlrev_b32 v{TGA+4*n+2*h}, 16, v{TAP+2*n+h}")
                A.i(f"v_and_b32 v{TGA+4*n+2*h+1}, 0xffff0000, v{TAP+2*n+h}")
            for r in range(4): A.i(f"v_mul_f32 v{TGA+4*n+r}, v{g}, v{TGA+4*n+r}")
        A.i(f"v_sub_f32 v{TOM}, 1.0, v{TG}")
        A.i(f"v_sub_f32 v{TOM+1}, 1.0, v{TG+1}")
    def gemm(tts,cts,dyn,steps=None,bar=None):
        q=[]
        steps=steps or list(range(18))
        def issue(st):
            for k,tt in enumerate(tts):
                if dyn:
                    r=TX+8*(st%3)
                    if st<16: L=[f"ds_read_b128 {vr(r,4)}, v{TDY} offset:{st*1024}"]
                    else: L=[f"ds_read_b32 v{r+i}, v{TDY+1} offset:{32768+(st-16)*2048+i*128}" for i in range(4)]
                else: L=xrd(st%3,tt,st)(4*k)
                for l in L: A.i(l); q.append(st)
        issue(steps[0]); issue(steps[1])
        for st in steps:
            late=bar is not None and st==bar
            if st+2<=steps[-1] and not late: issue(st+2)
            newer=sum(1 for x in q if x>st)
            A.i(f"s_waitcnt lgkmcnt({min(newer,15)})")
            for ci in range(cts):
                for k,tt in enumerate(tts):
                    d=TACC+4*(ci*len(tts)+k)
                    A.i(f"v_mfma_f32_16x16x32_bf16 {vr(d,4)}, {vr(WY_(0,st) if dyn else WS_(ci,st),4)}, {vr(TX+8*(st%3)+4*k,4)}, {vr(d,4) if st!=steps[0] else 0}")
            if late:
                A.i("s_waitcnt vmcnt(0)")
                A.i("s_barrier")
                issue(st+2)
    def epi(units,pre=()):
        A.i("s_nop 7")
        for l in pre: A.i(l)
        if OPT.get('w64') and len(units)==4:
            for tt in range(2):
                for ci in range(2):
                    n=2*ci+tt; d=TACC+4*n; p=TAP+4*tt+2*ci
                    for r in range(4): A.i(f"v_fma_f32 v{d+r}, v{TOM+tt}, v{d+r}, v{TGA+4*n+r}")
                    A.i(f"v_cvt_pk_bf16_f32 v{p}, v{d}, v{d+1}")
                    A.i(f"v_cvt_pk_bf16_f32 v{p+1}, v{d+2}, v{d+3}")
                A.i(f"buffer_store_dwordx4 {vr(TAP+4*tt,4)}, v{TOUT}, s[16:19], s{72+tt} offen {OPT.get('outmod','')}".rstrip())
            return
        for n,(tt,off) in enumerate(units):
            d=TACC+4*n
            for r in range(4): A.i(f"v_fma_f32 v{d+r}, v{TOM+tt}, v{d+r}, v{TGA+4*n+r}")
            A.i(f"v_cvt_pk_bf16_f32 v{TAP+2*n}, v{d}, v{d+1}")
            A.i(f"v_cvt_pk_bf16_f32 v{TAP+2*n+1}, v{d+2}, v{d+3}")
            if OPT.get('epix') and off: continue
            A.i(f"buffer_store_dwordx2 {vr(TAP+2*n,2)}, v{TOUT}, s[16:19], s{72+tt} offen offset:{off} {OPT.get('outmod','')}".rstrip())
    A.i(f"s_cmp_ge_u32 s5, {4 if wlate else 6}")
    A.i(f"s_cbranch_scc1 {name}_tnow")
    if OPT.get('otouch'):
        A.i("s_mul_i32 s30, s75, 288")
        A.i(f"buffer_load_dword v{TDY+3}, v{TOUT}, s[16:19], s30 offen")
    assert wlate or OPT.get('tb')!=2
    if OPT.get('now'):
        A.i(f"s_mov_b32 s30, {WS_G}")
        A.i(f"buffer_load_dword v{TG}, v{TTMP}, s[36:39], s30 offen")
        A.i(f"buffer_load_dword v{TG+1}, v{TTMP}, s[36:39], s30 offen offset:64")
    else: gw_loads(True if wlate else 'w')
    A.label(f"{name}_tnow")
    if daf==6:
        XS=16; XL=52; XR=53; XM=54; XM2=55
        RING=[16,24,32,232]; FA=TDY; FV=TDY+1; VN=TDY+2
        ALL=0x44444
        A.i("s_cmp_ge_u32 s5, 4")
        A.i(f"s_cbranch_scc1 {name}_tyoung")
        A.i("s_lshl_b32 s6, s5, 10")
        A.i(f"v_add_u32 v{TAA}, s6, v{TAA}")
        A.i(f"v_mov_b32 v{FA}, {LCNT2}")
        for r in range(16): A.i(f"v_mov_b32 v{TACC+r}, 0")
        A.i("s_mov_b32 s72, 0")
        A.i(f"s_mov_b32 s73, {16*1152}")
        A.i(f"s_mov_b32 s31, {ALL}")
        A.i("s_waitcnt lgkmcnt(0)")
        A.i("s_barrier")
        xt(A,1,prof)
        mix_setup([(0,0),(1,0),(0,1),(1,1)],0)
        def rdset(j): return [f"ds_read_b128 {vr(RING[j]+4*tt,4)}, v{VN} offset:{tt*4096+j*1024}" for tt in range(2)]
        rdflag=[f"ds_read_b32 v{FV}, v{FA}"]
        def mm(st,slot,gaps=None):
            k=0
            for ci in range(2):
                for tt in range(2):
                    d=TACC+4*(2*ci+tt)
                    A.i(f"v_mfma_f32_16x16x32_bf16 {vr(d,4)}, {vr(WS_(ci,st),4)}, {vr(RING[slot]+4*tt,4)}, {vr(d,4)}")
                    if gaps:
                        for l in gaps[k]: A.i(l)
                    k+=1
        decide=[["s_waitcnt lgkmcnt(4)",f"v_readfirstlane_b32 s6, v{FV}"],
                ["s_and_b32 s6, s6, s31","s_ff1_i32_b32 s30, s6"],
                ["s_bitset0_b32 s31, s30","s_ashr_i32 s30, s30, 2","s_max_i32 s6, s30, 0"],
                ["s_lshl_b32 s6, s6, 13",f"v_add_u32 v{VN}, s6, v{TL16}"]]
        def dispatch(neg):
            A.i(f"s_cbranch_scc1 {name}_td{neg}")
            A.i("s_cmp_eq_u32 s30, 2")
            A.i(f"s_cbranch_scc1 {name}_tb2")
            A.i("s_cmp_eq_u32 s30, 3")
            A.i(f"s_cbranch_scc1 {name}_tb3")
            A.i(f"s_branch {name}_tb4")
            A.label(f"{name}_td{neg}")
            A.i("s_cmp_eq_u32 s30, 0")
            A.i(f"s_cbranch_scc1 {name}_tb0")
            A.i("s_cmp_eq_u32 s30, 1")
            A.i(f"s_cbranch_scc1 {name}_tb1")
            A.i(f"s_branch {name}_tnone")
        A.label(f"{name}_tnone")
        A.i("s_cmp_eq_u32 s31, 0")
        A.i(f"s_cbranch_scc1 {name}_tfin")
        A.label(f"{name}_tpick")
        for l in rdflag: A.i(l)
        A.i("s_waitcnt lgkmcnt(0)")
        A.i(f"v_readfirstlane_b32 s6, v{FV}")
        A.i("s_and_b32 s6, s6, s31")
        A.i(f"s_cbranch_scc0 {name}_tpick")
        A.i("s_ff1_i32_b32 s30, s6")
        A.i("s_bitset0_b32 s31, s30")
        A.i("s_ashr_i32 s30, s30, 2")
        A.i("s_lshl_b32 s6, s30, 13")
        A.i(f"v_add_u32 v{VN}, s6, v{TL16}")
        for l in rdset(0)+rdset(1)+rdflag+rdset(2)+rdset(3): A.i(l)
        A.i("s_cmp_lt_i32 s30, 2")
        dispatch('p')
        for q in range(5):
            A.label(f"{name}_tb{q}")
            A.i("s_waitcnt lgkmcnt(7)")
            mm(4*q,0,decide)
            if q<4:
                mm(4*q+1,1,[rdset(0),[],[],rdset(1)+rdflag])
                A.i("s_waitcnt lgkmcnt(7)")
                mm(4*q+2,2,[[],[],[],rdset(2)])
                A.i("s_waitcnt lgkmcnt(7)")
                mm(4*q+3,3,[[],["s_cmp_lt_i32 s30, 2"],[],rdset(3)])
            else:
                mm(17,1,[rdset(0),["s_cmp_lt_i32 s30, 2"],[],rdset(1)+rdflag+rdset(2)+rdset(3)])
            dispatch(q)
        A.label(f"{name}_tfin")
        xt(A,2,prof)
        xt(A,3,prof)
        epi([(0,0),(1,0),(0,32),(1,32)])
        A.i(f"s_branch {name}_done")
        A.label(f"{name}_tyoung")
        gw_loads(False)
        A.i("s_barrier")
        if prof:
            A.i("s_memtime s[100:101]")
            A.i("s_waitcnt lgkmcnt(0)")
            A.i("s_mov_b32 s99, 1")
        for p in range(5): xload6(p,md6)
        A.label(f"{name}_tl1")
        A.i("s_lshr_b32 s6, s98, 1")
        A.i("s_and_b32 s30, s98, 1")
        A.i("s_lshl_b32 s31, s6, 12")
        A.i("s_lshl_b32 s72, s30, 11")
        A.i("s_add_u32 s31, s31, s72")
        A.i(f"v_add_u32 v{XL}, s31, v{TL16}")
        A.i(f"v_and_b32 v{XR}, 3, v{V_LANE}")
        A.i(f"v_lshlrev_b32 v{XR}, 6, v{XR}")
        A.i(f"v_bfe_u32 v{XM}, v{V_LANE}, 2, 1")
        A.i(f"v_lshl_add_u32 v{XR}, v{XM}, 12, v{XR}")
        A.i(f"v_bfe_u32 v{XM}, v{V_LANE}, 3, 2")
        A.i(f"v_lshl_add_u32 v{XR}, v{XM}, 2, v{XR}")
        A.i(f"v_lshrrev_b32 v{XM}, 5, v{V_LANE}")
        A.i(f"v_lshl_add_u32 v{XR}, v{XM}, 8, v{XR}")
        A.i("s_lshl_b32 s6, s6, 10")
        A.i("s_lshl_b32 s30, s30, 9")
        A.i("s_add_u32 s6, s6, s30")
        A.i(f"v_add_u32 v{XR}, s6, v{XR}")
        A.i("s_mov_b32 s68, 31")
        A.i(f"s_mov_b32 s69, {SPIN}")
        FAD=TDY+2; FDT=TDY+3
        A.i(f"v_mov_b32 v{FAD}, {LCNT2}")
        A.i("s_cmp_ge_u32 s5, 6")
        A.i(f"s_cbranch_scc0 {name}_tl0")
        A.i("s_sub_u32 s6, s5, 6")
        A.i("s_mul_i32 s30, s6, 4608")
        A.i("s_add_u32 s30, s30, 4096")
        A.i(f"v_add_u32 v{TAA}, s30, v{TAA}")
        A.i("s_lshl_b32 s30, s6, 12")
        A.i(f"v_add_u32 v{TDY}, s30, v{TL16}")
        A.label(f"{name}_tl0")
        def part(p,wait,lab,force):
            r=XS+8*p
            if wait is not None: A.i(f"s_waitcnt vmcnt({wait})")
            if p<4:
                A.i(f"v_max3_u32 v{XM}, v{r}, v{r+1}, v{r+2}")
                A.i(f"v_max3_u32 v{XM2}, v{r+3}, v{r+4}, v{r+5}")
                A.i(f"v_max3_u32 v{XM}, v{XM}, v{r+6}, v{r+7}")
                A.i(f"v_max_u32 v{XM}, v{XM}, v{XM2}")
            else:
                A.i(f"v_max3_u32 v{XM}, v{r}, v{r+1}, v{r+2}")
                A.i(f"v_max_u32 v{XM}, v{XM}, v{r+3}")
            A.i(f"v_mov_b32 v{FDT}, {1<<(4*p)}")
            A.i(f"v_cmp_eq_u32 vcc, -1, v{XM}")
            if force:
                A.i("s_and_b64 vcc, vcc, s[62:63]")
                A.i(f"s_cbranch_scc1 {lab}")
            else: A.i(f"s_cbranch_vccnz {lab}")
            if p<4:
                for k in range(2): A.i(f"ds_write_b128 v{XL}, {vr(r+4*k,4)} offset:{p*8192+k*1024}")
            else:
                for k in range(4): A.i(f"ds_write_b32 v{XR}, v{r+k} offset:{32768+16*k}")
            A.i("s_mov_b64 exec, 1")
            A.i(f"ds_add_u32 v{FAD}, v{FDT}")
            A.i("s_mov_b64 exec, -1")
            A.i(f"s_bitset0_b32 s68, {p}")
            A.label(lab)
        A.i("s_cmp_eq_u32 s5, 6")
        A.i(f"s_cbranch_scc0 {name}_txa")
        wp=OPT.get('dwp',0)
        for p in range(5):
            part(p,[7,5,3,1,0][p]+(20 if p>wp else 0),f"{name}_txb{p}",False)
            if p==wp: gw_loads(False)
        A.i(f"s_branch {name}_txr")
        A.label(f"{name}_txa")
        for p in range(5): part(p,[7,5,3,1,0][p],f"{name}_txa{p}",False)
        A.label(f"{name}_txr")
        A.i("s_mov_b64 s[62:63], -1")
        A.label(f"{name}_txl")
        A.i("s_cmp_eq_u32 s68, 0")
        A.i(f"s_cbranch_scc1 {name}_txok")
        A.i("s_sub_u32 s69, s69, 1")
        A.i(f"s_cbranch_scc0 {name}_txn")
        A.i("s_mov_b64 s[62:63], 0")
        A.label(f"{name}_txn")
        if prof: A.i("s_add_u32 s99, s99, 1")
        for p in range(5):
            A.i(f"s_bitcmp1_b32 s68, {p}")
            A.i(f"s_cbranch_scc0 {name}_txl{p}")
            xload6(p,md6)
            A.label(f"{name}_txl{p}")
        A.i("s_waitcnt vmcnt(0)")
        for p in range(5):
            A.i(f"s_bitcmp1_b32 s68, {p}")
            A.i(f"s_cbranch_scc0 {name}_txc{p}")
            part(p,None,f"{name}_txc{p}",True)
        A.i(f"s_branch {name}_txl")
        A.label(f"{name}_txok")
        if OPT.get('dprio2',0)!=OPT.get('dprio',2): A.i(f"s_setprio {OPT.get('dprio2',0)}")
        xt(A,1,prof)
        xt(A,2,prof)
        A.i("s_cmp_ge_u32 s5, 6")
        A.i(f"s_cbranch_scc0 {name}_tidle")
        A.i("s_waitcnt vmcnt(0)")
        A.i("s_cmp_eq_u32 s5, 7")
        A.i(f"s_cselect_b32 s72, {16*1152}, 0")
        A.i(f"s_cbranch_scc0 {name}_tg0")
        A.i(f"v_mov_b32 v{TG}, v{TG+1}")
        A.label(f"{name}_tg0")
        mix_setup([('w',0)],0)
        A.label(f"{name}_tall")
        A.i(f"ds_read_b32 v{XM2}, v{FAD}")
        A.i("s_waitcnt lgkmcnt(0)")
        A.i(f"v_readfirstlane_b32 s6, v{XM2}")
        A.i(f"s_cmp_eq_u32 s6, {ALL}")
        A.i(f"s_cbranch_scc0 {name}_tall")
        DR=136; q=[]
        def rd(st):
            A.i(f"ds_read_b128 {vr(DR+4*st,4)}, v{TDY} offset:{(st>>2)*8192+(st&3)*1024}"); q.append(st)
        AH=12
        for st in range(AH): rd(st)
        for st in range(18):
            newer=sum(1 for x in q if x>st)
            A.i(f"s_waitcnt lgkmcnt({min(newer,15)})")
            d=TACC+4*(st&1)
            A.i(f"v_mfma_f32_16x16x32_bf16 {vr(d,4)}, {vr(WY_(0,st),4)}, {vr(DR+4*st,4)}, {vr(d,4) if st>1 else 0}")
            if st+AH<18: rd(st+AH)
        xt(A,3,prof)
        epi([(0,0)],[f"v_add_f32 v{TACC+r}, v{TACC+r}, v{TACC+4+r}" for r in range(4)])
        A.i(f"s_branch {name}_done")
        A.label(f"{name}_tidle")
        xt(A,3,prof)
        return
    if daf==5:
        XS=16; XL=52; XR=53; XM=54; XM2=55
        RING=[16,24,32,232]; FA=TDY; FV=TDY+1; VN=TDY+2
        ALL=0x44444
        A.i("s_cmp_ge_u32 s5, 4")
        A.i(f"s_cbranch_scc1 {name}_tyoung")
        A.i("s_lshl_b32 s6, s5, 10")
        A.i(f"v_add_u32 v{TAA}, s6, v{TAA}")
        A.i(f"v_mov_b32 v{FA}, {LCNT2}")
        for r in range(16): A.i(f"v_mov_b32 v{TACC+r}, 0")
        A.i("s_mov_b32 s72, 0")
        A.i(f"s_mov_b32 s73, {16*1152}")
        A.i(f"s_mov_b32 s31, {ALL}")
        A.i("s_waitcnt lgkmcnt(0)")
        A.i("s_barrier")
        xt(A,1,prof)
        mix_setup([(0,0),(1,0),(0,1),(1,1)],0)
        def rdset(j): return [f"ds_read_b128 {vr(RING[j]+4*tt,4)}, v{VN} offset:{tt*4096+j*1024}" for tt in range(2)]
        rdflag=[f"ds_read_b32 v{FV}, v{FA}"]
        def mm(st,slot,gaps=None):
            k=0
            for ci in range(2):
                for tt in range(2):
                    d=TACC+4*(2*ci+tt)
                    A.i(f"v_mfma_f32_16x16x32_bf16 {vr(d,4)}, {vr(WS_(ci,st),4)}, {vr(RING[slot]+4*tt,4)}, {vr(d,4)}")
                    if gaps:
                        for l in gaps[k]: A.i(l)
                    k+=1
        decide=[["s_waitcnt lgkmcnt(4)",f"v_readfirstlane_b32 s6, v{FV}"],
                ["s_and_b32 s6, s6, s31","s_ff1_i32_b32 s30, s6"],
                ["s_bitset0_b32 s31, s30","s_ashr_i32 s30, s30, 2","s_max_i32 s6, s30, 0"],
                ["s_lshl_b32 s6, s6, 13",f"v_add_u32 v{VN}, s6, v{TL16}"]]
        def dispatch(neg):
            A.i(f"s_cbranch_scc1 {name}_td{neg}")
            A.i("s_cmp_eq_u32 s30, 2")
            A.i(f"s_cbranch_scc1 {name}_tb2")
            A.i("s_cmp_eq_u32 s30, 3")
            A.i(f"s_cbranch_scc1 {name}_tb3")
            A.i(f"s_branch {name}_tb4")
            A.label(f"{name}_td{neg}")
            A.i("s_cmp_eq_u32 s30, 0")
            A.i(f"s_cbranch_scc1 {name}_tb0")
            A.i("s_cmp_eq_u32 s30, 1")
            A.i(f"s_cbranch_scc1 {name}_tb1")
            A.i(f"s_branch {name}_tnone")
        A.label(f"{name}_tnone")
        A.i("s_cmp_eq_u32 s31, 0")
        A.i(f"s_cbranch_scc1 {name}_tfin")
        A.label(f"{name}_tpick")
        for l in rdflag: A.i(l)
        A.i("s_waitcnt lgkmcnt(0)")
        A.i(f"v_readfirstlane_b32 s6, v{FV}")
        A.i("s_and_b32 s6, s6, s31")
        A.i(f"s_cbranch_scc0 {name}_tpick")
        A.i("s_ff1_i32_b32 s30, s6")
        A.i("s_bitset0_b32 s31, s30")
        A.i("s_ashr_i32 s30, s30, 2")
        A.i("s_lshl_b32 s6, s30, 13")
        A.i(f"v_add_u32 v{VN}, s6, v{TL16}")
        for l in rdset(0)+rdset(1)+rdflag+rdset(2)+rdset(3): A.i(l)
        A.i("s_cmp_lt_i32 s30, 2")
        dispatch('p')
        for q in range(5):
            A.label(f"{name}_tb{q}")
            A.i("s_waitcnt lgkmcnt(7)")
            mm(4*q,0,decide)
            if q<4:
                mm(4*q+1,1,[rdset(0),[],[],rdset(1)+rdflag])
                A.i("s_waitcnt lgkmcnt(7)")
                mm(4*q+2,2,[[],[],[],rdset(2)])
                A.i("s_waitcnt lgkmcnt(7)")
                mm(4*q+3,3,[[],["s_cmp_lt_i32 s30, 2"],[],rdset(3)])
            else:
                mm(17,1,[rdset(0),["s_cmp_lt_i32 s30, 2"],[],rdset(1)+rdflag+rdset(2)+rdset(3)])
            dispatch(q)
        A.label(f"{name}_tfin")
        xt(A,2,prof)
        xt(A,3,prof)
        epi([(0,0),(1,0),(0,32),(1,32)])
        A.i(f"s_branch {name}_done")
        A.label(f"{name}_tyoung")
        A.i("s_lshr_b32 s6, s98, 1")
        A.i("s_and_b32 s30, s98, 1")
        A.i("s_lshl_b32 s31, s6, 14")
        A.i("s_lshl_b32 s72, s30, 11")
        A.i("s_add_u32 s31, s31, s72")
        A.i("s_lshl_b32 s80, s74, 15")
        A.i("s_add_u32 s80, s80, s31")
        A.i(f"s_add_u32 s80, s80, {WS_OB}")
        for q in range(1,4): A.i(f"s_add_u32 s{80+q}, s80, {4096*q}")
        A.i("s_lshl_b32 s67, s74, 12")
        A.i("s_lshl_b32 s31, s98, 10")
        A.i("s_add_u32 s67, s67, s31")
        A.i(f"s_add_u32 s67, s67, {WS_OBR}")
        A.i("s_lshl_b32 s31, s6, 12")
        A.i("s_add_u32 s31, s31, s72")
        A.i(f"v_add_u32 v{XL}, s31, v{TL16}")
        A.i(f"v_and_b32 v{XR}, 3, v{V_LANE}")
        A.i(f"v_lshlrev_b32 v{XR}, 6, v{XR}")
        A.i(f"v_bfe_u32 v{XM}, v{V_LANE}, 2, 1")
        A.i(f"v_lshl_add_u32 v{XR}, v{XM}, 12, v{XR}")
        A.i(f"v_bfe_u32 v{XM}, v{V_LANE}, 3, 2")
        A.i(f"v_lshl_add_u32 v{XR}, v{XM}, 2, v{XR}")
        A.i(f"v_lshrrev_b32 v{XM}, 5, v{V_LANE}")
        A.i(f"v_lshl_add_u32 v{XR}, v{XM}, 8, v{XR}")
        A.i("s_lshl_b32 s6, s6, 10")
        A.i("s_lshl_b32 s30, s30, 9")
        A.i("s_add_u32 s6, s6, s30")
        A.i(f"v_add_u32 v{XR}, s6, v{XR}")
        A.i("s_mov_b32 s68, 31")
        A.i(f"s_mov_b32 s69, {SPIN}")
        A.i("s_mov_b64 s[62:63], -1")
        A.i("s_cmp_ge_u32 s5, 6")
        A.i(f"s_cbranch_scc0 {name}_tl0")
        A.i("s_sub_u32 s6, s5, 6")
        A.i("s_mul_i32 s30, s6, 4608")
        A.i("s_add_u32 s30, s30, 4096")
        A.i(f"v_add_u32 v{TAA}, s30, v{TAA}")
        A.i("s_lshl_b32 s30, s6, 12")
        A.i(f"v_add_u32 v{TDY}, s30, v{TL16}")
        A.i("s_cmp_eq_u32 s5, 7")
        A.i(f"s_cbranch_scc0 {name}_tl0")
        gw_loads(False)
        A.label(f"{name}_tl0")
        md=OPT.get('xmod','sc1').replace('-','')
        def xload(p):
            if p<4:
                for k in range(2): A.i(f"buffer_load_dwordx4 {vr(XS+8*p+4*k,4)}, v{TL16}, s[36:39], s{80+p} offen offset:{k*1024} {md}")
            else: A.i(f"buffer_load_dwordx4 {vr(XS+32,4)}, v{TL16}, s[36:39], s67 offen {md}")
        FAD=TDY+2; FDT=TDY+3
        A.i(f"v_mov_b32 v{FAD}, {LCNT2}")
        A.i("s_barrier")
        if prof:
            A.i("s_memtime s[100:101]")
            A.i("s_waitcnt lgkmcnt(0)")
            A.i("s_mov_b32 s99, 1")
        for p in range(5): xload(p)
        def loader(tag,extra):
            A.label(f"{name}_tx{tag}")
            for p in range(5):
                r=XS+8*p
                A.i(f"s_bitcmp1_b32 s68, {p}")
                A.i(f"s_cbranch_scc0 {name}_tx{tag}s{p}")
                A.i(f"s_waitcnt vmcnt({[7,5,3,1,0][p]+extra})")
                if p<4:
                    A.i(f"v_max3_u32 v{XM}, v{r}, v{r+1}, v{r+2}")
                    A.i(f"v_max3_u32 v{XM2}, v{r+3}, v{r+4}, v{r+5}")
                    A.i(f"v_max3_u32 v{XM}, v{XM}, v{r+6}, v{r+7}")
                    A.i(f"v_max_u32 v{XM}, v{XM}, v{XM2}")
                else:
                    A.i(f"v_max3_u32 v{XM}, v{r}, v{r+1}, v{r+2}")
                    A.i(f"v_max_u32 v{XM}, v{XM}, v{r+3}")
                A.i(f"v_cmp_eq_u32 vcc, -1, v{XM}")
                A.i("s_and_b64 vcc, vcc, s[62:63]")
                A.i(f"s_cbranch_scc1 {name}_tx{tag}s{p}")
                if p<4:
                    for k in range(2): A.i(f"ds_write_b128 v{XL}, {vr(r+4*k,4)} offset:{p*8192+k*1024}")
                else:
                    for k in range(4): A.i(f"ds_write_b32 v{XR}, v{r+k} offset:{32768+16*k}")
                A.i(f"v_mov_b32 v{FDT}, {1<<(4*p)}")
                A.i("s_mov_b64 exec, 1")
                A.i(f"ds_add_u32 v{FAD}, v{FDT}")
                A.i("s_mov_b64 exec, -1")
                A.i(f"s_bitset0_b32 s68, {p}")
                A.label(f"{name}_tx{tag}s{p}")
            A.i("s_cmp_eq_u32 s68, 0")
            A.i(f"s_cbranch_scc1 {name}_txok")
            A.i("s_sub_u32 s69, s69, 1")
            A.i(f"s_cbranch_scc0 {name}_tx{tag}r")
            A.i("s_mov_b64 s[62:63], 0")
            A.label(f"{name}_tx{tag}r")
            if prof: A.i("s_add_u32 s99, s99, 1")
            for p in range(5):
                A.i(f"s_bitcmp1_b32 s68, {p}")
                A.i(f"s_cbranch_scc0 {name}_tx{tag}l{p}")
                xload(p)
                A.label(f"{name}_tx{tag}l{p}")
            A.i("s_waitcnt vmcnt(0)")
            A.i(f"s_branch {name}_tx{tag}")
        A.i("s_cmp_eq_u32 s5, 6")
        A.i(f"s_cbranch_scc0 {name}_txa")
        gw_loads(False)
        loader('b',20)
        loader('a',0)
        A.label(f"{name}_txok")
        xt(A,1,prof)
        xt(A,2,prof)
        A.i("s_cmp_ge_u32 s5, 6")
        A.i(f"s_cbranch_scc0 {name}_tidle")
        A.i("s_waitcnt vmcnt(0)")
        A.i("s_cmp_eq_u32 s5, 7")
        A.i(f"s_cselect_b32 s72, {16*1152}, 0")
        A.i(f"s_cbranch_scc0 {name}_tg0")
        A.i(f"v_mov_b32 v{TG}, v{TG+1}")
        A.label(f"{name}_tg0")
        mix_setup([('w',0)],0)
        A.label(f"{name}_tall")
        A.i(f"ds_read_b32 v{XM2}, v{FAD}")
        A.i("s_waitcnt lgkmcnt(0)")
        A.i(f"v_readfirstlane_b32 s6, v{XM2}")
        A.i(f"s_cmp_eq_u32 s6, {ALL}")
        A.i(f"s_cbranch_scc0 {name}_tall")
        DR=136; q=[]
        def rd(st):
            A.i(f"ds_read_b128 {vr(DR+4*st,4)}, v{TDY} offset:{(st>>2)*8192+(st&3)*1024}"); q.append(st)
        AH=12
        for st in range(AH): rd(st)
        for st in range(18):
            newer=sum(1 for x in q if x>st)
            A.i(f"s_waitcnt lgkmcnt({min(newer,15)})")
            d=TACC+4*(st&1)
            A.i(f"v_mfma_f32_16x16x32_bf16 {vr(d,4)}, {vr(WY_(0,st),4)}, {vr(DR+4*st,4)}, {vr(d,4) if st>1 else 0}")
            if st+AH<18: rd(st+AH)
        xt(A,3,prof)
        epi([(0,0)],[f"v_add_f32 v{TACC+r}, v{TACC+r}, v{TACC+4+r}" for r in range(4)])
        A.i(f"s_branch {name}_done")
        A.label(f"{name}_tidle")
        xt(A,3,prof)
        return
    if daf==4:
        XS=16; XA=52; XL=53; XR=54; XM=55; XM2=63
        RING=[16,24,32,232]; FA=TDY; FV=TDY+1; VN=TDY+2
        A.i("s_cmp_ge_u32 s5, 4")
        A.i(f"s_cbranch_scc1 {name}_tyoung")
        A.i("s_lshl_b32 s6, s5, 10")
        A.i(f"v_add_u32 v{TAA}, s6, v{TAA}")
        A.i(f"v_mov_b32 v{FA}, {LCNT2}")
        for r in range(16): A.i(f"v_mov_b32 v{TACC+r}, 0")
        A.i("s_mov_b32 s72, 0")
        A.i(f"s_mov_b32 s73, {16*1152}")
        A.i("s_mov_b32 s31, 15")
        A.i("s_waitcnt lgkmcnt(0)")
        A.i("s_barrier")
        xt(A,1,prof)
        mix_setup([(0,0),(1,0),(0,1),(1,1)],0)
        def rdset(j):
            for tt in range(2): A.i(f"ds_read_b128 {vr(RING[j]+4*tt,4)}, v{VN} offset:{tt*16384+j*1024}")
        def rdrem(k):
            for tt in range(2):
                for i in range(4): A.i(f"ds_read_b32 v{RING[k]+4*tt+i}, v{TRM} offset:{32768+k*2048+i*128+tt*64}")
        def rdflag(): A.i(f"ds_read_b32 v{FV}, v{FA}")
        def mm(st,slot):
            for ci in range(2):
                for tt in range(2):
                    d=TACC+4*(2*ci+tt)
                    A.i(f"v_mfma_f32_16x16x32_bf16 {vr(d,4)}, {vr(WS_(ci,st),4)}, {vr(RING[slot]+4*tt,4)}, {vr(d,4)}")
        def take():
            A.i("s_ff1_i32_b32 s30, s6")
            A.i("s_bitset0_b32 s31, s30")
            A.i("s_lshl_b32 s6, s30, 12")
            A.i(f"v_add_u32 v{VN}, s6, v{TL16}")
        def dispatch():
            for q in range(3):
                A.i(f"s_cmp_eq_u32 s30, {q}")
                A.i(f"s_cbranch_scc1 {name}_tb{q}")
            A.i(f"s_branch {name}_tb3")
        A.label(f"{name}_tpick")
        rdflag()
        A.i("s_waitcnt lgkmcnt(0)")
        A.i(f"v_readfirstlane_b32 s6, v{FV}")
        A.i("s_and_b32 s6, s6, s31")
        A.i(f"s_cbranch_scc0 {name}_tpick")
        take()
        rdset(0); rdset(1); rdflag(); rdset(2); rdset(3)
        dispatch()
        for q in range(4):
            A.label(f"{name}_tb{q}")
            A.i("s_waitcnt lgkmcnt(7)")
            mm(4*q,0)
            A.i("s_waitcnt lgkmcnt(4)")
            A.i(f"v_readfirstlane_b32 s6, v{FV}")
            A.i("s_cmp_eq_u32 s31, 0")
            A.i(f"s_cbranch_scc1 {name}_tr{q}")
            A.i("s_and_b32 s6, s6, s31")
            A.i(f"s_cbranch_scc0 {name}_tn{q}")
            take()
            rdset(0)
            mm(4*q+1,1)
            rdset(1); rdflag()
            A.i("s_waitcnt lgkmcnt(7)")
            mm(4*q+2,2)
            rdset(2)
            A.i("s_waitcnt lgkmcnt(7)")
            mm(4*q+3,3)
            rdset(3)
            dispatch()
            A.label(f"{name}_tn{q}")
            mm(4*q+1,1)
            A.i("s_waitcnt lgkmcnt(2)")
            mm(4*q+2,2)
            A.i("s_waitcnt lgkmcnt(0)")
            mm(4*q+3,3)
            A.i(f"s_branch {name}_tpick")
            A.label(f"{name}_tr{q}")
            rdrem(0)
            mm(4*q+1,1)
            A.i("s_waitcnt lgkmcnt(10)")
            mm(4*q+2,2)
            rdrem(1)
            A.i("s_waitcnt lgkmcnt(15)")
            mm(4*q+3,3)
            if q<3: A.i(f"s_branch {name}_trem")
        A.label(f"{name}_trem")
        xt(A,2,prof)
        A.i("s_waitcnt lgkmcnt(8)")
        mm(16,0)
        A.i("s_waitcnt lgkmcnt(0)")
        mm(17,1)
        xt(A,3,prof)
        epi([(0,0),(1,0),(0,32),(1,32)])
        A.i(f"s_branch {name}_done")
        A.label(f"{name}_tyoung")
        A.i(f"v_and_b32 v{XA}, 31, v{V_LANE}")
        A.i(f"v_lshlrev_b32 v{XA}, 4, v{XA}")
        A.i(f"v_lshrrev_b32 v{XM}, 5, v{V_LANE}")
        A.i(f"v_lshl_add_u32 v{XA}, v{XM}, 11, v{XA}")
        A.i("s_lshl_b32 s6, s98, 12")
        A.i(f"v_add_u32 v{XL}, s6, v{XA}")
        A.i("s_lshl_b32 s80, s74, 15")
        A.i("s_add_u32 s80, s80, s6")
        A.i(f"s_add_u32 s80, s80, {WS_OB}")
        A.i("s_add_u32 s81, s80, 16384")
        A.i("s_lshl_b32 s6, s98, 10")
        A.i(f"v_add_u32 v{XR}, s6, v{TL16}")
        A.i("s_lshl_b32 s82, s74, 12")
        A.i("s_add_u32 s82, s82, s6")
        A.i(f"s_add_u32 s82, s82, {WS_OBR}")
        A.i("s_cmp_ge_u32 s5, 6")
        A.i(f"s_cbranch_scc0 {name}_tl0")
        A.i("s_sub_u32 s6, s5, 6")
        A.i("s_mul_i32 s30, s6, 4608")
        A.i("s_add_u32 s30, s30, 4096")
        A.i(f"v_add_u32 v{TAA}, s30, v{TAA}")
        A.i("s_lshl_b32 s30, s6, 14")
        A.i(f"v_add_u32 v{TDY}, s30, v{TL16}")
        A.i("s_lshl_b32 s30, s6, 6")
        A.i(f"v_add_u32 v{TDY+1}, s30, v{TRM}")
        A.i("s_cmp_eq_u32 s5, 7")
        A.i(f"s_cbranch_scc0 {name}_tl0")
        gw_loads(False)
        A.label(f"{name}_tl0")
        def xloads():
            md=OPT.get('xmod','sc1').replace('-','')
            for i in range(8):
                A.i(f"buffer_load_dwordx4 {vr(XS+4*i,4)}, v{XA}, s[36:39], s{80+(i>>2)} offen offset:{(i&3)*512} {md}")
            A.i(f"buffer_load_dwordx4 {vr(XS+32,4)}, v{TL16}, s[36:39], s82 offen {md}")
        A.i("s_barrier")
        if prof:
            A.i("s_memtime s[100:101]")
            A.i("s_waitcnt lgkmcnt(0)")
            A.i("s_mov_b32 s99, 1")
        xloads()
        A.i(f"s_mov_b32 s73, {SPIN}")
        A.i("s_cmp_eq_u32 s5, 6")
        A.i(f"s_cbranch_scc0 {name}_txw")
        gw_loads(False)
        A.i("s_waitcnt vmcnt(20)")
        A.i(f"s_branch {name}_txc")
        A.label(f"{name}_txw")
        A.i("s_waitcnt vmcnt(0)")
        A.label(f"{name}_txc")
        A.i(f"v_max3_u32 v{XM}, v{XS}, v{XS+1}, v{XS+2}")
        A.i(f"v_max3_u32 v{XM2}, v{XS+18}, v{XS+19}, v{XS+20}")
        for r in range(3,17,2):
            A.i(f"v_max3_u32 v{XM}, v{XM}, v{XS+r}, v{XS+r+1}")
            A.i(f"v_max3_u32 v{XM2}, v{XM2}, v{XS+18+r}, v{XS+18+r+1}")
        A.i(f"v_max3_u32 v{XM}, v{XM}, v{XS+17}, v{XS+35}")
        A.i(f"v_max_u32 v{XM}, v{XM}, v{XM2}")
        A.i(f"v_cmp_eq_u32 vcc, -1, v{XM}")
        A.i("s_and_b64 exec, exec, vcc")
        A.i(f"s_cbranch_scc0 {name}_txok")
        A.i("s_sub_u32 s73, s73, 1")
        A.i(f"s_cbranch_scc1 {name}_txok")
        if prof: A.i("s_add_u32 s99, s99, 1")
        xloads()
        A.i(f"s_branch {name}_txw")
        A.label(f"{name}_txok")
        A.i("s_mov_b64 exec, -1")
        xt(A,1,prof)
        for i in range(8):
            A.i(f"ds_write_b128 v{XL}, {vr(XS+4*i,4)} offset:{(i>>2)*16384+(i&3)*512}")
        A.i(f"ds_write_b128 v{XR}, {vr(XS+32,4)} offset:32768")
        A.i("s_lshl_b32 s6, 1, s98")
        A.i(f"v_mov_b32 v{XM}, {LCNT2}")
        A.i(f"v_mov_b32 v{XM2}, s6")
        A.i("s_mov_b64 exec, 1")
        A.i(f"ds_or_b32 v{XM}, v{XM2}")
        A.i("s_mov_b64 exec, -1")
        xt(A,2,prof)
        A.i("s_cmp_ge_u32 s5, 6")
        A.i(f"s_cbranch_scc0 {name}_tidle")
        A.i("s_waitcnt vmcnt(0)")
        A.i("s_cmp_eq_u32 s5, 7")
        A.i(f"s_cselect_b32 s72, {16*1152}, 0")
        A.i(f"s_cbranch_scc0 {name}_tg0")
        A.i(f"v_mov_b32 v{TG}, v{TG+1}")
        A.label(f"{name}_tg0")
        mix_setup([('w',0)],0)
        A.label(f"{name}_tall")
        A.i(f"ds_read_b32 v{XM2}, v{XM}")
        A.i("s_waitcnt lgkmcnt(0)")
        A.i(f"v_readfirstlane_b32 s6, v{XM2}")
        A.i("s_cmp_eq_u32 s6, 15")
        A.i(f"s_cbranch_scc0 {name}_tall")
        DR=136; q=[]
        def rd(st):
            if st<16: L=[f"ds_read_b128 {vr(DR+4*st,4)}, v{TDY} offset:{st*1024}"]
            else: L=[f"ds_read_b32 v{DR+4*st+i}, v{TDY+1} offset:{32768+(st-16)*2048+i*128}" for i in range(4)]
            for l in L: A.i(l); q.append(st)
        AH=12
        for st in range(AH): rd(st)
        for st in range(18):
            newer=sum(1 for x in q if x>st)
            A.i(f"s_waitcnt lgkmcnt({min(newer,15)})")
            d=TACC+4*(st&1)
            A.i(f"v_mfma_f32_16x16x32_bf16 {vr(d,4)}, {vr(WY_(0,st),4)}, {vr(DR+4*st,4)}, {vr(d,4) if st>1 else 0}")
            if st+AH<18: rd(st+AH)
        xt(A,3,prof)
        epi([(0,0)],[f"v_add_f32 v{TACC+r}, v{TACC+r}, v{TACC+4+r}" for r in range(4)])
        A.i(f"s_branch {name}_done")
        A.label(f"{name}_tidle")
        xt(A,3,prof)
        return
    if daf:
        XS=16; XA=TTMP; XL=TTMP+1; XR=TTMP+2; XM=TTMP+3; XM2=TDY
        A.i("s_cmp_ge_u32 s5, 4")
        A.i(f"s_cbranch_scc1 {name}_tyoung")
        A.i(f"v_and_b32 v{XA}, 31, v{V_LANE}")
        A.i(f"v_lshlrev_b32 v{XA}, 4, v{XA}")
        A.i(f"v_lshrrev_b32 v{XM}, 5, v{V_LANE}")
        A.i(f"v_lshl_add_u32 v{XA}, v{XM}, 11, v{XA}")
        A.i("s_lshl_b32 s6, s5, 12")
        A.i(f"v_add_u32 v{XL}, s6, v{XA}")
        A.i("s_lshl_b32 s30, s74, 15")
        A.i("s_add_u32 s30, s30, s6")
        A.i(f"s_add_u32 s30, s30, {WS_OB}")
        A.i("s_add_u32 s31, s30, 16384")
        A.i("s_lshl_b32 s6, s5, 10")
        A.i(f"v_add_u32 v{XR}, s6, v{TL16}")
        A.i("s_lshl_b32 s72, s74, 12")
        A.i("s_add_u32 s72, s72, s6")
        A.i(f"s_add_u32 s72, s72, {WS_OBR}")
        A.i(f"v_add_u32 v{TAA}, s6, v{TAA}")
        def xloads():
            md=OPT.get('xmod','sc1').replace('-','')
            for i in range(8):
                A.i(f"buffer_load_dwordx4 {vr(XS+4*i,4)}, v{XA}, s[36:39], s{30+(i>>2)} offen offset:{(i&3)*512} {md}")
            A.i(f"buffer_load_dwordx4 {vr(XS+32,4)}, v{TL16}, s[36:39], s72 offen {md}")
        if daf==3:
            A.i("s_waitcnt lgkmcnt(0)")
            A.i("s_barrier")
        else:
            A.i(f"v_mov_b32 v{XM2}, {LCNT2}")
            A.label(f"{name}_tgo")
            A.i(f"ds_read_b32 v{XM}, v{XM2}")
            A.i("s_waitcnt lgkmcnt(0)")
            A.i(f"v_readfirstlane_b32 s6, v{XM}")
            A.i(f"s_cmp_ge_u32 s6, {48+OPT.get('dgo',4) if daf==1 else 68}")
            A.i(f"s_cbranch_scc0 {name}_tgo")
        if prof:
            A.i("s_memtime s[100:101]")
            A.i("s_waitcnt lgkmcnt(0)")
            A.i("s_mov_b32 s99, 1")
        xloads()
        mix_setup([(0,0),(1,0),(0,1),(1,1)],9)
        A.i(f"s_mov_b32 s73, {SPIN}")
        A.label(f"{name}_txw")
        A.i("s_waitcnt vmcnt(0)")
        A.i(f"v_max3_u32 v{XM}, v{XS}, v{XS+1}, v{XS+2}")
        A.i(f"v_max3_u32 v{XM2}, v{XS+18}, v{XS+19}, v{XS+20}")
        for r in range(3,17,2):
            A.i(f"v_max3_u32 v{XM}, v{XM}, v{XS+r}, v{XS+r+1}")
            A.i(f"v_max3_u32 v{XM2}, v{XM2}, v{XS+18+r}, v{XS+18+r+1}")
        A.i(f"v_max3_u32 v{XM}, v{XM}, v{XS+17}, v{XS+35}")
        A.i(f"v_max_u32 v{XM}, v{XM}, v{XM2}")
        A.i(f"v_cmp_eq_u32 vcc, -1, v{XM}")
        A.i("s_and_b64 exec, exec, vcc")
        A.i(f"s_cbranch_scc0 {name}_txok")
        A.i("s_sub_u32 s73, s73, 1")
        A.i(f"s_cbranch_scc1 {name}_txok")
        if prof: A.i("s_add_u32 s99, s99, 1")
        xloads()
        A.i(f"s_branch {name}_txw")
        A.label(f"{name}_txok")
        A.i("s_mov_b64 exec, -1")
        xt(A,1,prof)
        if daf==1: A.i("s_barrier")
        for i in range(8):
            A.i(f"ds_write_b128 v{XL}, {vr(XS+4*i,4)} offset:{(i>>2)*16384+(i&3)*512}")
        A.i(f"ds_write_b128 v{XR}, {vr(XS+32,4)} offset:32768")
        A.i("s_mov_b32 s72, 0")
        A.i(f"s_mov_b32 s73, {16*1152}")
        A.i("s_waitcnt lgkmcnt(0)")
        A.i("s_barrier")
        xt(A,2,prof)
        gemm([0,1],2,False)
        xt(A,3,prof)
        epi([(0,0),(1,0),(0,32),(1,32)])
        A.i(f"s_branch {name}_done")
        A.label(f"{name}_tyoung")
        if daf==3 and OPT.get('d67'):
            A.i("s_cmp_ge_u32 s5, 6")
            A.i(f"s_cbranch_scc0 {name}_tidle")
            A.i("s_sub_u32 s6, s5, 6")
            A.i("s_mul_i32 s30, s6, 4608")
            A.i("s_add_u32 s30, s30, 4096")
            A.i(f"v_add_u32 v{TAA}, s30, v{TAA}")
            A.i("s_lshl_b32 s30, s6, 14")
            A.i(f"v_add_u32 v{TDY}, s30, v{TL16}")
            A.i("s_lshl_b32 s30, s6, 6")
            A.i(f"v_add_u32 v{TDY+1}, s30, v{TRM}")
            A.i("s_mov_b32 s73, s6")
            A.i("s_cmp_eq_u32 s5, 7")
            A.i(f"s_cbranch_scc0 {name}_t6")
            gw_loads(False)
            A.i("s_barrier")
            xt(A,1,prof)
            A.i("s_waitcnt vmcnt(18)")
            A.i(f"v_mov_b32 v{TG}, v{TG+1}")
            mix_setup([('w',0)],18)
            A.i(f"s_mov_b32 s72, {16*1152}")
            A.i("s_waitcnt vmcnt(0)")
            A.i("s_barrier")
            xt(A,2,prof)
            A.i(f"s_branch {name}_t67")
            A.label(f"{name}_t6")
            A.i("s_barrier")
            xt(A,1,prof)
            if OPT['d67']==1:
                A.i("s_barrier")
                gw_loads(False)
            else:
                gw_loads(False)
                A.i("s_barrier")
            xt(A,2,prof)
            mix_setup([('w',0)],18)
            A.i("s_mov_b32 s72, 0")
            A.i("s_waitcnt vmcnt(0)")
            A.label(f"{name}_t67")
            gemm([0],1,True)
            xt(A,3,prof)
            epi([(0,0)])
            A.i(f"s_branch {name}_done")
            A.label(f"{name}_tidle")
            A.i("s_barrier")
            xt(A,1,prof)
            A.i("s_barrier")
            xt(A,2,prof)
            xt(A,3,prof)
            return
        if daf>=2:
            A.i("s_cmp_eq_u32 s5, 7")
            A.i(f"s_cbranch_scc0 {name}_tidle")
            gw_loads(False)
            A.i("s_mov_b32 s72, 0")
            A.i(f"s_mov_b32 s73, {16*1152}")
            if daf==3:
                A.i("s_barrier")
                xt(A,1,prof)
                mix_setup([(0,8),(1,8)],18)
                A.i("s_waitcnt vmcnt(0)")
                A.i("s_barrier")
                xt(A,2,prof)
            else:
                xt(A,1,prof)
                A.i("s_barrier")
                xt(A,2,prof)
                mix_setup([(0,8),(1,8)],18)
                A.i("s_waitcnt vmcnt(0)")
            gemm([0,1],1,False)
            xt(A,3,prof)
            epi([(0,0),(1,0)])
            A.i(f"s_branch {name}_done")
            A.label(f"{name}_tidle")
            if daf==3: A.i("s_barrier")
            xt(A,1,prof)
            A.i("s_barrier")
            xt(A,2,prof)
            xt(A,3,prof)
            return
        A.i("s_cmp_ge_u32 s5, 6")
        A.i(f"s_cbranch_scc1 {name}_tidle")
        A.i("s_sub_u32 s6, s5, 4")
        A.i("s_mul_i32 s30, s6, 4608")
        A.i("s_add_u32 s30, s30, 4096")
        A.i(f"v_add_u32 v{TAA}, s30, v{TAA}")
        A.i("s_lshl_b32 s30, s6, 14")
        A.i(f"v_add_u32 v{TDY}, s30, v{TL16}")
        A.i("s_lshl_b32 s30, s6, 6")
        A.i(f"v_add_u32 v{TDY+1}, s30, v{TRM}")
        A.i("s_cmp_eq_u32 s6, 1")
        A.i("s_cselect_b64 vcc, -1, 0")
        A.i("s_mov_b32 s73, s6")
        gw_loads(False)
        A.i("s_barrier")
        xt(A,1,prof)
        A.i("s_waitcnt vmcnt(18)")
        A.i(f"v_cndmask_b32 v{TG}, v{TG}, v{TG+1}, vcc")
        mix_setup([('w',0)],18)
        A.i(f"s_mul_i32 s72, s73, {16*1152}")
        A.i("s_waitcnt vmcnt(0)")
        A.i("s_barrier")
        xt(A,2,prof)
        gemm([0],1,True)
        xt(A,3,prof)
        epi([(0,0)])
        A.i(f"s_branch {name}_done")
        A.label(f"{name}_tidle")
        A.i("s_barrier")
        xt(A,1,prof)
        A.i("s_barrier")
        xt(A,2,prof)
        xt(A,3,prof)
        return
    pw=OPT.get('tpoll',3)
    if pw=='L': A.i("s_cmp_eq_u32 s73, 7")
    else: A.i(f"s_cmp_eq_u32 s5, {pw}")
    A.i(f"s_cbranch_scc0 {name}_tb2")
    if ptc:
        A.i("s_lshl_b32 s30, s74, 7")
        A.i(f"s_add_u32 s30, s30, {WS_FLAG+0x2000}")
    else:
        R=OPT.get('prep',1)
        A.i("s_and_b32 s30, s2, 7")
        A.i(f"s_mul_i32 s30, s30, {R*128 if R>1 else 256}")
        A.i(f"s_add_u32 s30, s30, {WS_FLAG+0x1000}")
        if R>1:
            A.i("s_lshr_b32 s6, s2, 3")
            A.i(f"s_and_b32 s6, s6, {R-1}")
            A.i("s_lshl_b32 s6, s6, 7")
            A.i("s_add_u32 s30, s30, s6")
    A.i("s_mov_b32 s6, 0")
    N=OPT.get('pn',1)
    if N==1: spin(A,f"{name}_tspin",TTMP+2,30,31)
    else:
        PR=OPT.get('preg',TX)
        for i in range(N): A.i(f"v_mov_b32 v{PR+i}, 0")
        A.i(f"v_mov_b32 v{TTMP}, {LCNT2}")
        A.i(f"s_mov_b32 s31, {SPIN*N}")
        A.label(f"{name}_tspin")
        for i in range(N):
            A.i(f"buffer_load_dword v{PR+i}, off, s[36:39], s30 sc1")
            for k in range(OPT.get('pdl',1)):
                A.i(f"ds_read_b32 v{TTMP+2}, v{TTMP}")
                A.i("s_waitcnt lgkmcnt(0)")
            A.i(f"s_waitcnt vmcnt({N-1})")
            A.i(f"v_readfirstlane_b32 s6, v{PR+(i+1)%N}")
            A.i("s_cmp_eq_u32 s6, 32")
            A.i(f"s_cbranch_scc1 {name}_tspin_go")
        A.i(f"s_sub_u32 s31, s31, {N}")
        A.i(f"s_cbranch_scc0 {name}_tspin")
        A.label(f"{name}_tspin_go")
    A.label(f"{name}_tb2")
    A.i("s_barrier")
    xt(A,1,prof)
    A.i("s_lshl_b32 s30, s74, 15")
    A.i("s_lshl_b32 s31, s5, 10")
    A.i("s_add_u32 s30, s30, s31")
    A.i(f"s_add_u32 s30, s30, {WS_OB}")
    tb=OPT.get('tb')
    for i in range(4):
        A.i("s_mov_b32 m0, s31")
        A.i("s_nop 0")
        A.i(f"buffer_load_dwordx4 v{TL16}, s[36:39], s30 offen {OPT.get('xmod','sc1').replace('-','')} lds".replace('  ',' '))
        d=[16384,-8192,16384,8192][i] if tb else 8192
        if i<3: A.i(f"s_add_u32 s30, s30, {d}")
        A.i(f"s_add_u32 s31, s31, {d}")
    A.i("s_cmp_ge_u32 s5, 4")
    A.i(f"s_cbranch_scc1 {name}_tx4")
    A.i("s_lshl_b32 s30, s74, 12")
    A.i("s_lshl_b32 s6, s5, 10")
    A.i("s_add_u32 s30, s30, s6")
    A.i(f"s_add_u32 s30, s30, {WS_OBR}")
    A.i("s_mov_b32 m0, s31")
    A.i("s_nop 0")
    A.i(f"buffer_load_dwordx4 v{TL16}, s[36:39], s30 offen {OPT.get('xmod','sc1').replace('-','')} lds".replace('  ',' '))
    A.label(f"{name}_tx4")
    A.i("s_cmp_ge_u32 s5, 4")
    A.i(f"s_cbranch_scc1 {name}_tyoung")
    A.i("s_lshl_b32 s6, s5, 10")
    A.i(f"v_add_u32 v{TAA}, s6, v{TAA}")
    mix_setup([(0,0),(1,0),(0,1),(1,1)],5)
    A.i("s_mov_b32 s72, 0")
    A.i(f"s_mov_b32 s73, {16*1152}")
    A.i(f"s_waitcnt vmcnt({3 if tb else 0})")
    A.i("s_barrier")
    xt(A,2,prof)
    gemm([0,1],2,False,None,OPT.get('tbar',6) if tb else None)
    xt(A,3,prof)
    if tb: A.i("s_barrier")
    epi([(0,0),(1,0),(0,32),(1,32)])
    A.i(f"s_branch {name}_done")
    A.label(f"{name}_tyoung")
    if tb==2:
        PBUF=ABASE+9216
        A.i("s_and_b32 s6, s5, 1")
        A.i("s_mul_i32 s30, s6, 4608")
        A.i("s_add_u32 s30, s30, 4096")
        A.i(f"v_add_u32 v{TAA}, s30, v{TAA}")
        A.i("s_lshl_b32 s30, s6, 14")
        A.i(f"v_add_u32 v{TDY}, s30, v{TL16}")
        A.i("s_lshl_b32 s30, s6, 6")
        A.i(f"v_add_u32 v{TDY+1}, s30, v{TRM}")
        A.i("s_lshl_b32 s30, s6, 10")
        A.i(f"s_add_u32 s30, s30, {PBUF}")
        A.i(f"v_add_u32 v{TDY+2}, s30, v{TL16}")
        A.i(f"s_mul_i32 s72, s6, {16*1152}")
        def half(steps):
            for k,st in enumerate(steps):
                r=EX+4*k
                if st<16: A.i(f"ds_read_b128 {vr(r,4)}, v{TDY} offset:{st*1024}")
                else:
                    for i in range(4): A.i(f"ds_read_b32 v{r+i}, v{TDY+1} offset:{32768+(st-16)*2048+i*128}")
        def mm(steps):
            for k,st in enumerate(steps):
                newer=sum((1 if x<16 else 4) for x in steps[k+1:])
                A.i(f"s_waitcnt lgkmcnt({min(newer,15)})")
                A.i(f"v_mfma_f32_16x16x32_bf16 {vr(TACC,4)}, {vr(EW+4*k,4)}, {vr(EX+4*k,4)}, {vr(TACC,4) if k else 0}")
        A.i("s_cmp_ge_u32 s5, 6")
        A.i(f"s_cbranch_scc1 {name}_tk1")
        k0=list(range(0,8)); k1=list(range(8,18))
        A.i("s_mul_i32 s6, s75, 9")
        A.i("s_add_u32 s6, s6, 8")
        A.i("s_lshl_b32 s31, s6, 5")
        A.i(f"v_add_u32 v{TOUT}, s31, v{TOUT}")
        A.i(f"v_mov_b32 v{TG}, v{EG}")
        A.i(f"v_mov_b32 v{TG+1}, v{EG}")
        mix_setup([('w',0)],4)
        A.i("s_waitcnt vmcnt(2)")
        A.i("s_barrier")
        xt(A,2,prof)
        half(k0)
        A.i("s_waitcnt vmcnt(0)")
        A.i("s_barrier")
        mm(k0)
        xt(A,3,prof)
        A.i("s_barrier")
        A.i(f"ds_read_b128 {vr(TX,4)}, v{TDY+2}")
        A.i("s_waitcnt lgkmcnt(0)")
        epi([(0,0)],[f"v_add_f32 v{TACC+r}, v{TACC+r}, v{TX+r}" for r in range(4)])
        A.i(f"s_branch {name}_done")
        A.label(f"{name}_tk1")
        A.i("s_waitcnt vmcnt(2)")
        A.i("s_barrier")
        xt(A,2,prof)
        A.i("s_waitcnt vmcnt(0)")
        A.i("s_barrier")
        half(k1)
        mm(k1)
        A.i("s_nop 7")
        A.i(f"ds_write_b128 v{TDY+2}, {vr(TACC,4)}")
        A.i("s_waitcnt lgkmcnt(0)")
        xt(A,3,prof)
        A.i("s_barrier")
        return
    if tb:
        assert wlate
        PBUF=ABASE+9216
        A.i("s_and_b32 s6, s5, 1")
        A.i("s_mul_i32 s30, s6, 4608")
        A.i("s_add_u32 s30, s30, 4096")
        A.i(f"v_add_u32 v{TAA}, s30, v{TAA}")
        A.i("s_lshl_b32 s30, s6, 14")
        A.i(f"v_add_u32 v{TDY}, s30, v{TL16}")
        A.i("s_lshl_b32 s30, s6, 6")
        A.i(f"v_add_u32 v{TDY+1}, s30, v{TRM}")
        A.i("s_lshl_b32 s30, s6, 10")
        A.i(f"s_add_u32 s30, s30, {PBUF}")
        A.i(f"v_add_u32 v{TDY+2}, s30, v{TL16}")
        A.i("s_cmp_eq_u32 s6, 1")
        A.i("s_cselect_b64 vcc, -1, 0")
        A.i("s_mov_b32 s73, s6")
        A.i("s_cmp_ge_u32 s5, 6")
        A.i(f"s_cbranch_scc1 {name}_tk1")
        k0=list(range(0,8)); k1=list(range(8,18))
        gw_loads(False,k0)
        A.i(f"s_waitcnt vmcnt({2+2+len(k0)})")
        A.i("s_barrier")
        xt(A,2,prof)
        A.i(f"s_waitcnt vmcnt({2+len(k0)})")
        A.i("s_barrier")
        A.i(f"s_waitcnt vmcnt({len(k0)})")
        A.i(f"v_cndmask_b32 v{TG}, v{TG}, v{TG+1}, vcc")
        mix_setup([('w',0)],len(k0))
        A.i(f"s_mul_i32 s72, s73, {16*1152}")
        A.i("s_waitcnt vmcnt(0)")
        gemm([0],1,True,k0)
        xt(A,3,prof)
        A.i("s_barrier")
        A.i(f"ds_read_b128 {vr(TX,4)}, v{TDY+2}")
        A.i("s_waitcnt lgkmcnt(0)")
        epi([(0,0)],[f"v_add_f32 v{TACC+r}, v{TACC+r}, v{TX+r}" for r in range(4)])
        A.i(f"s_branch {name}_done")
        A.label(f"{name}_tk1")
        gw_loads(False,k1,False)
        A.i(f"s_waitcnt vmcnt({2+len(k1)})")
        A.i("s_barrier")
        xt(A,2,prof)
        A.i(f"s_waitcnt vmcnt({len(k1)})")
        A.i("s_barrier")
        A.i("s_waitcnt vmcnt(0)")
        gemm([0],1,True,k1)
        A.i("s_nop 7")
        A.i(f"ds_write_b128 v{TDY+2}, {vr(TACC,4)}")
        A.i("s_waitcnt lgkmcnt(0)")
        xt(A,3,prof)
        A.i("s_barrier")
        return
    A.i("s_cmp_ge_u32 s5, 6")
    A.i(f"s_cbranch_scc1 {name}_tidle")
    A.i("s_sub_u32 s6, s5, 4")
    A.i("s_mul_i32 s30, s6, 4608")
    A.i("s_add_u32 s30, s30, 4096")
    A.i(f"v_add_u32 v{TAA}, s30, v{TAA}")
    A.i("s_lshl_b32 s30, s6, 14")
    A.i(f"v_add_u32 v{TDY}, s30, v{TL16}")
    A.i("s_lshl_b32 s30, s6, 6")
    A.i(f"v_add_u32 v{TDY+1}, s30, v{TRM}")
    A.i("s_cmp_eq_u32 s6, 1")
    A.i("s_cselect_b64 vcc, -1, 0")
    A.i(f"s_mul_i32 s72, s6, {16*1152}")
    if wlate:
        A.i("s_mov_b32 s73, s6")
        gw_loads(False)
        A.i("s_waitcnt vmcnt(20)")
        A.i("s_barrier")
        xt(A,2,prof)
        A.i("s_waitcnt vmcnt(18)")
        A.i(f"v_cndmask_b32 v{TG}, v{TG}, v{TG+1}, vcc")
        mix_setup([('w',0)],18)
        A.i(f"s_mul_i32 s72, s73, {16*1152}")
        A.i("s_waitcnt vmcnt(0)")
    else:
        A.i("s_waitcnt vmcnt(4)")
        A.i(f"v_cndmask_b32 v{TG}, v{TG}, v{TG+1}, vcc")
        mix_setup([('w',0)],4)
        A.i("s_waitcnt vmcnt(0)")
        A.i("s_barrier")
        xt(A,2,prof)
    gemm([0],1,True)
    xt(A,3,prof)
    epi([(0,0)])
    A.i(f"s_branch {name}_done")
    A.label(f"{name}_tidle")
    A.i("s_waitcnt vmcnt(0)")
    A.i("s_barrier")
    xt(A,2,prof)
    xt(A,3,prof)

FLV=170
def mono_flag(A,srd,off):
    A.i(f"v_mov_b32 v{T2}, 1")
    if off: A.i(f"v_add_u32 v{FLV}, {off}, v{FLV}")
    A.i(f"buffer_store_byte v{T2}, v{FLV}, s[{srd}:{srd+3}], 0 offen sc1")
def mono_spin(A,lab,load,dst,mask):
    A.i(f"s_mov_b32 s6, {SPIN}")
    A.label(lab)
    A.i(load)
    A.i("s_waitcnt vmcnt(0)")
    A.i(f"v_and_b32 v{dst}, {mask}, v{dst}")
    A.i(f"v_cmp_ne_u32 vcc, {mask}, v{dst}")
    A.i("s_nop 0")
    A.i(f"s_cbranch_vccz {lab}_go")
    A.i("s_sub_u32 s6, s6, 1")
    A.i(f"s_cbranch_scc0 {lab}")
    A.label(lab+"_go")
def mono_gate_regs(A,ad,mk):
    A.i(f"v_lshlrev_b32 v{ad}, 2, v{V_LANE}")
    A.i(f"v_and_b32 v{ad}, 28, v{ad}")
    A.i(f"v_mov_b32 v{mk}, 0x01010101")
def mono_head_regs(A,ad,mk,base,amask,tmp):
    A.i("s_mul_i32 s64, s3, 18")
    A.i("s_add_u32 s65, s64, 17")
    A.i("s_xor_b32 s64, s64, s65")
    A.i("s_cmp_ge_u32 s64, 64")
    A.i("s_cselect_b32 s65, 2, 1")
    A.i("s_lshl_b32 s64, s4, 3")
    A.i("s_lshl_b64 s[72:73], 1, s64")
    if amask:
        A.i("s_lshr_b64 s[74:75], s[72:73], 8")
        A.i("s_or_b64 s[74:75], s[74:75], s[72:73]")
    else:
        A.i("s_mov_b32 s74, 0x01010101")
        A.i("s_mov_b32 s75, 0x01010101")
    A.i(f"v_and_b32 v{tmp}, 1, v{V_LANE}")
    A.i(f"v_cmp_eq_u32 vcc, 1, v{tmp}")
    A.i(f"v_mov_b32 v{mk}, s72")
    A.i(f"v_mov_b32 v{ad}, s73")
    A.i(f"v_cndmask_b32 v{mk}, v{mk}, v{ad}, vcc")
    A.i(f"v_mov_b32 v{tmp}, s74")
    A.i(f"v_mov_b32 v{ad}, s75")
    A.i(f"v_cndmask_b32 v{tmp}, v{tmp}, v{ad}, vcc")
    A.i(f"v_cmp_gt_u32 vcc, 4, v{V_LANE}")
    A.i("s_nop 0")
    A.i(f"v_cndmask_b32 v{mk}, v{tmp}, v{mk}, vcc")
    A.i(f"v_bfe_u32 v{tmp}, v{V_LANE}, 1, 1")
    A.i(f"v_cmp_gt_u32 vcc, s65, v{tmp}")
    A.i("s_nop 0")
    A.i(f"v_cndmask_b32 v{mk}, 0, v{mk}, vcc")
    A.i("s_lshl_b32 s64, s3, 7")
    A.i(f"s_add_u32 s64, s64, {base}")
    A.i(f"v_lshlrev_b32 v{ad}, 2, v{V_LANE}")
    A.i(f"v_add_u32 v{ad}, s64, v{ad}")
    A.i(f"v_mov_b32 v{tmp}, 0x7fff0000")
    A.i(f"v_cmp_gt_u32 vcc, 12, v{V_LANE}")
    A.i("s_nop 0")
    A.i(f"v_cndmask_b32 v{ad}, v{tmp}, v{ad}, vcc")
    A.i(f"v_cndmask_b32 v{mk}, 0, v{mk}, vcc")
def mono_handoff(A,name,prof):
    a,b,c,d=172,173,174,175
    A.i("s_mov_b32 s16, s20")
    A.i("s_and_b32 s17, s21, 0xffff")
    A.i("s_mov_b32 s18, 0x2000000")
    A.i("s_mov_b32 s19, 0x20000")
    mono_head_regs(A,a,b,WS_FLAGB,False,c)
    mono_gate_regs(A,d,d+1)
    A.i(f"s_cmp_eq_u32 s5, {OPT.get('mgw',5)}")
    A.i(f"s_cbranch_scc0 {name}_h2")
    A.i("s_cmp_eq_u32 s67, 1")
    A.i(f"s_cbranch_scc0 {name}_h2")
    mono_spin(A,f"{name}_gs0",f"global_load_dword v{c}, v{d}, s[92:93] sc1",c,f"v{d+1}")
    A.label(f"{name}_h2")
    A.i("s_waitcnt vmcnt(0)")
    if prof:
        A.i("s_memrealtime s[58:59]")
        stamp(A,3,prof)
        A.i("s_mov_b32 s57, s46"); A.i("s_mov_b32 s95, s58")
    A.i("s_barrier")
    A.i("s_cmp_eq_u32 s5, 0")
    A.i(f"s_cbranch_scc0 {name}_h3")
    A.i("s_cmp_eq_u32 s67, 1")
    A.i(f"s_cbranch_scc0 {name}_h4")
    mono_flag(A,16,0)
    if prof and OPT.get('mnoa'):
        A.i("s_waitcnt vmcnt(0)")
        A.i("s_memrealtime s[78:79]")
        A.i("s_waitcnt lgkmcnt(0)")
    A.i(f"s_branch {name}_h3")
    A.label(f"{name}_h4")
    A.i("s_cmp_eq_u32 s67, 3")
    A.i(f"s_cbranch_scc0 {name}_h3")
    A.i("s_sub_u32 s6, s2, 224")
    A.i(f"v_mov_b32 v{c}, s6")
    A.i(f"v_mov_b32 v{d+2}, 1")
    A.i("s_mov_b64 exec, 1")
    A.i(f"global_store_byte v{c}, v{d+2}, s[92:93] sc1")
    A.i("s_mov_b64 exec, -1")
    A.label(f"{name}_h3")
    A.i("s_cmp_eq_u32 s5, 4")
    A.i(f"s_cbranch_scc0 {name}_h5")
    A.i("s_cmp_eq_u32 s67, 1")
    A.i(f"s_cbranch_scc1 {name}_h6")
    mono_spin(A,f"{name}_gs4",f"global_load_dword v{c}, v{d}, s[92:93] sc1",c,f"v{d+1}")
    A.label(f"{name}_h6")
    mono_spin(A,f"{name}_bs",f"buffer_load_dword v{c}, v{a}, s[16:19], 0 offen sc1",c,f"v{b}")
    if prof and OPT.get('mnoa'): A.i(f"s_sub_u32 s78, {SPIN}, s6")
    A.label(f"{name}_h5")
    A.i("s_mov_b32 s97, 0")
    A.i("s_barrier")
    if prof: A.i("s_memrealtime s[58:59]")
    stamp(A,0,prof)
def mono_wait(A,name,base,tag):
    vals=(9,11,12,14)
    A.i("s_cmp_eq_u32 s97, 0")
    A.i(f"s_cbranch_scc0 {name}_mw{tag}0")
    A.i(f"s_waitcnt vmcnt({base})")
    A.i(f"s_branch {name}_mw{tag}_done")
    A.label(f"{name}_mw{tag}0")
    for n,v in enumerate(vals):
        if n<len(vals)-1:
            A.i(f"s_cmp_eq_u32 s97, {v}")
            A.i(f"s_cbranch_scc0 {name}_mw{tag}{n+1}")
        A.i(f"s_waitcnt vmcnt({base+v})")
        if n<len(vals)-1:
            A.i(f"s_branch {name}_mw{tag}_done")
            A.label(f"{name}_mw{tag}{n+1}")
    A.label(f"{name}_mw{tag}_done")
def gen_k2(A,name="k2_attn_kernel",prof=False):
    ag=OPT.get('ag')
    if ag:
        ag_regs(); assert OPT.get('sw1') and OPT.get('pk') and not OPT.get('itst')
    mono=OPT.get('mono')
    if mono:
        A.label(f"{mono}_trans")
        A.i(f"s_load_dwordx2 s[92:93], s[0:1], {KA_DBG}")
        if prof:
            A.i("s_mov_b32 s54, s40"); A.i("s_mov_b32 s55, s42"); A.i("s_mov_b32 s56, s44"); A.i("s_mov_b32 s94, s58")
    else:
        kernel_header(A,name)
        A.i("s_cmp_ge_u32 s2, 256")
        A.i(f"s_cbranch_scc1 {name}_end")
        A.i(f"s_load_dwordx2 s[20:21], s[0:1], {KA_WS}")
        if OPT.get('eprio'): A.i("s_setprio 1")
    fuse=OPT.get('fuse')
    if fuse:
        assert ag and OPT.get('t2') and not OPT.get('amap') and not OPT.get('swap')
        OPT['pfwo']=0
        A.i(f"s_load_dwordx2 s[76:77], s[0:1], {KA_OUT}")
    if OPT.get('pfwo'):
        if not ag: A.i(f"s_load_dwordx2 s[76:77], s[0:1], {KA_AWO}")
        A.i(f"s_load_dwordx2 s[78:79], s[0:1], {KA_BWO}")
    if not mono:
        if prof: A.i("s_memrealtime s[58:59]")
        if OPT.get('xst')==2 and prof: A.i("s_memtime s[40:41]")
        else: stamp(A,0,prof)
    A.i(f"v_and_b32 v{V_LANE}, 63, v0")
    A.i(f"v_lshrrev_b32 v{T0}, 6, v0")
    A.i("s_and_b32 s3, s2, 7")
    A.i(f"v_readfirstlane_b32 s5, v{T0}")
    A.i("s_nop 3")
    A.i("s_mov_b32 s70, s5")
    if OPT.get('cpf')==1: code_touch(A,name+"_ct",name,name+"_codeend",5,99,96,72,True)
    A.i("s_mov_b32 s71, 0x07060302")
    A.i("s_lshl_b32 s3, s3, 2")
    A.i("s_lshr_b32 s4, s2, 3")
    A.i("s_and_b32 s6, s4, 3")
    A.i("s_add_u32 s3, s3, s6")
    A.i("s_lshr_b32 s4, s2, 5")
    A.i("s_lshl_b32 s7, s4, 3")
    A.i("s_add_u32 s7, s7, s5")
    A.i(f"v_lshlrev_b32 v{A_KM}, 4, v{V_LANE}")
    if not mono: A.i(f"v_mov_b32 v{DMAV}, v{A_KM}")
    A.i(f"v_and_b32 v{T0}, 31, v{V_LANE}")
    A.i(f"v_lshlrev_b32 v{A_KR}, 2, v{T0}")
    A.i(f"v_add_u32 v{A_KR}, {OFF_KR}, v{A_KR}")
    if OPT.get('krg'):
        assert not mono
        A.i(f"v_mov_b32 v{LAR}, v{A_KR}")
        A.i(f"v_lshlrev_b32 v{A_KR}, 4, v{T0}")
        A.i(f"v_mov_b32 v{T1}, {512+OFF_V+18*16}")
        A.i(f"v_cmp_gt_u32 vcc, 32, v{V_LANE}")
        A.i(f"v_cndmask_b32 v{A_KR}, v{T1}, v{A_KR}, vcc")
    A.i(f"v_lshrrev_b32 v{T1}, 5, v{V_LANE}")
    A.i(f"v_mul_u32_u24 v{T1}, 304, v{T1}")
    if OPT.get('vclamp')==1:
        A.i(f"v_min_u32 v{A_V}, 18, v{T0}")
        A.i(f"v_lshl_add_u32 v{A_V}, v{A_V}, 4, v{T1}")
    else:
        A.i(f"v_lshl_add_u32 v{A_V}, v{T0}, 4, v{T1}")
    A.i(f"v_add_u32 v{A_V}, {OFF_V}, v{A_V}")
    A.i(f"v_mov_b32 v{LAV}, v{A_V}")
    if OPT.get('vclamp')==2:
        A.i(f"v_cmp_lt_u32 vcc, 18, v{T0}")
        A.i(f"v_mov_b32 v{T2}, 0x40000")
        A.i(f"v_cndmask_b32 v{A_V}, v{A_V}, v{T2}, vcc")
    A.i(f"v_lshlrev_b32 v{T1}, 2, v{V_LANE}")
    A.i(f"s_mul_i32 s6, s3, {KV_HEAD}")
    A.i("s_lshl_b32 s30, s3, 6")
    A.i("s_add_u32 s30, s30, s7")
    A.i(f"s_mul_i32 s30, s30, {QT_B}")
    A.i(f"s_mul_i32 s31, s7, {TILE_B}")
    A.i("s_cmp_eq_u32 s7, 0")
    A.i("s_cselect_b32 s34, 0, -1")
    A.i(f"s_sub_u32 s35, s31, {TILE_B}")
    A.i("s_cselect_b32 s35, s35, s35")
    A.i("s_cmp_eq_u32 s7, 0")
    A.i("s_cselect_b32 s35, s31, s35")
    if OPT.get('fsrd'):
        assert WS_KVB==0
        A.i(f"s_add_u32 s30, s30, {WS_QB}")
        A.i(f"s_mov_b32 s10, {KV_HEAD}")
        A.i("s_mov_b32 s11, 0x20000")
        A.i(f"s_mov_b32 s14, {QT_B}")
        A.i("s_mov_b32 s15, 0x20000")
        A.i("s_lshl_b32 s22, s5, 10")
        A.i("s_mov_b32 m0, s22")
    xp(A,0)
    A.i("s_waitcnt lgkmcnt(0)")
    xp(A,1)
    def srd(d,off_const,off_s,num):
        A.i(f"s_add_u32 s{d}, s20, s{off_s}")
        A.i(f"s_addc_u32 s{d+1}, s21, 0")
        if off_const:
            A.i(f"s_add_u32 s{d}, s{d}, {off_const}")
            A.i(f"s_addc_u32 s{d+1}, s{d+1}, 0")
        A.i(f"s_and_b32 s{d+1}, s{d+1}, 0xffff")
        A.i(f"s_mov_b32 s{d+2}, {num}")
        A.i(f"s_mov_b32 s{d+3}, 0x20000")
    fast=OPT.get('fsrd')
    if not fast:
        srd(8,WS_KVB,6,KV_HEAD)
        srd(12,WS_QB,30,QT_B)
    if mono: mono_handoff(A,name,prof)
    qm=OPT.get('qmod','')
    if fast:
        A.i("s_add_u32 s8, s20, s6")
        A.i("s_addc_u32 s9, s21, 0")
        A.i("s_and_b32 s9, s9, 0xffff")
        A.i(f"buffer_load_dwordx4 v{DMAV}, s[8:11], s22 offen {OPT.get('kvmod','')} lds".replace('  ',' '))
        A.i("s_add_u32 s12, s20, s30")
        A.i("s_addc_u32 s13, s21, 0")
        A.i("s_and_b32 s13, s13, 0xffff")
    A.i(f"buffer_load_dwordx4 {vr(QM,4)}, v{A_KM}, s[12:15], 0 offen {qm}".rstrip())
    A.i(f"buffer_load_dword v{QR}, v{T1}, s[12:15], 0 offen offset:1024 {qm}".rstrip())
    if fast: A.i("s_add_u32 s22, s22, 8192")
    else: A.i("s_lshl_b32 s22, s5, 10")
    dma=["s_mov_b32 m0, s22","s_nop 0",f"buffer_load_dwordx4 v{A_KM if mono else DMAV}, s[8:11], s22 offen {OPT.get('kvmod','')} lds".replace('  ',' '),"s_add_u32 s22, s22, 8192"]
    ordv=OPT.get('ord',0)
    for i in range(1 if fast else 0,3 if ordv<2 else 1):
        if i==1 and ordv==1: A.i("s_barrier")
        for l in dma: A.i(l)
    if OPT.get('eprio') and not mono: A.i("s_setprio 0")
    def late_dma():
        for i in range(2):
            for l in dma: A.i(l)
    xp(A,2)
    if mono:
        if not OPT.get('mnoa'):
            A.i("s_cmp_eq_u32 s96, 1")
            A.i(f"s_cbranch_scc1 {mono}_epi_qk")
            A.i("s_cmp_eq_u32 s96, 2")
            A.i(f"s_cbranch_scc1 {mono}_epi_v")
        A.label(f"{mono}_cont")
        A.i(f"v_mov_b32 v{DMAV}, v{A_KM}")
    A.i(f"s_add_u32 s24, s20, {WS_KVA}")
    A.i("s_addc_u32 s25, s21, 0")
    A.i("s_and_b32 s25, s25, 0xffff")
    A.i(f"s_mov_b32 s26, {WS_OB-WS_KVA}")
    A.i("s_mov_b32 s27, 0x20000")
    if ag:
        A.i("s_mov_b32 s36, s20")
        A.i("s_and_b32 s37, s21, 0xffff")
        A.i("s_mov_b32 s38, 0x2000000")
    else:
        A.i(f"s_add_u32 s36, s20, {WS_OA}")
        A.i("s_addc_u32 s37, s21, 0")
        A.i("s_and_b32 s37, s37, 0xffff")
        A.i(f"s_mov_b32 s38, {2048*1152}")
    A.i("s_mov_b32 s39, 0x20000")
    if fuse:
        A.i("s_mov_b32 s16, s76")
        A.i("s_and_b32 s17, s77, 0xffff")
    else:
        A.i(f"s_add_u32 s16, s20, {WS_OB}")
        A.i("s_addc_u32 s17, s21, 0")
        A.i("s_and_b32 s17, s17, 0xffff")
    A.i(f"s_mov_b32 s18, {2048*1152}")
    A.i("s_mov_b32 s19, 0x20000")
    A.i(f"v_mov_b32 v{LAQ}, v{T1}")
    if not OPT.get('krg'): A.i(f"v_mov_b32 v{LAR}, v{A_KR}")
    if ordv==2: late_dma()
    def consts():
        if not OPT.get('krg'):
            A.i(f"v_mov_b32 v{KR+1}, 0x3f803f80")
            A.i(f"v_mov_b32 v{KRB+1}, 0x3f803f80")
        A.i(f"v_mov_b32 v{QR+1}, 0")
        for r in range(16): A.i(f"v_mov_b32 v{O+r}, 0")
        for r in range(4): A.i(f"v_mov_b32 v{V1+r}, 0")
        for r in range(4): A.i(f"v_mov_b32 v{P+4+r}, 0")
    def prologue():
        A.i(f"ds_read_b128 {vr(KM,4)}, v{A_KM}"+(f" offset:{toff(0)}" if toff(0) else ""))
        if OPT.get('krg'): A.i(f"ds_read_b128 {vr(KG[0],4)}, v{A_KR}")
        else: A.i(f"ds_read_b32 v{KR}, v{A_KR}")
        A.i(f"v_mov_b32 v{QR0}, v{QR}")
        A.i(f"v_mov_b32 v{QR0+1}, 0")
        A.i("s_waitcnt lgkmcnt(0)")
        mfma16(A,S0,KM,QM,None)
        A.i(f"ds_read_b128 {vr(KM,4)}, v{A_KM} offset:{toff(1)}")
        A.i("s_nop 9")
        mfma8(A,S0,KR,QR,S0)
        if not OPT.get('krg'): A.i(f"ds_read_b32 v{KR}, v{A_KR} offset:{TILE_B}")
        A.i(f"ds_read_b128 {vr(V0,4)}, v{A_V}"+(f" offset:{toff(0)}" if toff(0) else ""))
        A.i("s_nop 9")
        max16(A,X0,S0,True)
        xhalf_max(A,X0,X0+1)
        set_bias(A,X0,X0+2)
        if OPT.get('pk'):
            for r in range(0,16,2): A.i(f"v_pk_add_f32 {vr(S0+r,2)}, {vr(S0+r,2)}, {vr(X0,2)} op_sel_hi:[1,0] neg_lo:[0,1] neg_hi:[0,1]")
        else:
            for r in range(16): A.i(f"v_sub_f32 v{S0+r}, v{S0+r}, v{X0}")
        A.i("s_waitcnt lgkmcnt(0)")
    LCNT=163832
    def notP(label):
        A.i("s_cmp_ge_u32 s5, 4")
        A.i(f"s_cbranch_scc{0 if OPT.get('swap') else 1} {label}")
    us=OPT.get('us')
    if us:
        A.i("s_and_b32 s98, s5, 3")
        A.i("s_lshl_b32 s29, s4, 3")
        A.i("s_add_u32 s29, s29, s98")
        A.i("s_add_u32 s28, s29, 4")
        A.i(f"v_bfe_u32 v{T0}, v{V_LANE}, 4, 1")
        A.i(f"v_lshlrev_b32 v{T0}, 14, v{T0}")
        A.i(f"v_lshrrev_b32 v{T2}, 5, v{V_LANE}")
        A.i(f"v_lshl_add_u32 v{T0}, v{T2}, 8, v{T0}")
        A.i(f"v_and_b32 v{T2}, 15, v{V_LANE}")
        A.i(f"v_lshl_add_u32 v{VOA}, v{T2}, 4, v{T0}")
        if ordv==3: late_dma()
        notP(f"{name}_nobias")
        make_bias(A)
        A.i(f"v_mov_b32 v{X0}, {LCNT}")
        A.i(f"v_mov_b32 v{X0+2}, 0")
        A.i(f"v_mov_b32 v{X0+3}, 0")
        A.i(f"ds_write_b64 v{X0}, {vr(X0+2,2)}")
        A.label(f"{name}_nobias")
    elif ag:
        A.i("s_and_b32 s98, s5, 3")
        notP(f"{name}_young")
        if OPT.get('swap'):
            A.i("s_setprio 1")
            A.i("s_sub_u32 s22, s22, 4096")
        A.i("s_lshl_b32 s29, s4, 3")
        A.i("s_add_u32 s29, s29, s98")
        def kd(i0,i1):
            for i in range(i0,i1):
                for q in range(2):
                    A.i(f"s_add_u32 s30, s22, {(i-3)*8192+q*4096}")
                    A.i("s_mov_b32 m0, s30")
                    A.i("s_nop 0")
                    A.i(f"buffer_load_dwordx4 v{DMAV}, s[8:11], s30 offen {OPT.get('kvmod','')} lds".replace('  ',' '))
            return 2*(i1-i0)
        make_bias(A)
        A.i(f"v_bfe_u32 v{T0}, v{V_LANE}, 4, 1")
        A.i(f"v_lshlrev_b32 v{T0}, 14, v{T0}")
        A.i(f"v_lshrrev_b32 v{T2}, 5, v{V_LANE}")
        A.i(f"v_lshl_add_u32 v{T0}, v{T2}, 8, v{T0}")
        A.i(f"v_and_b32 v{T2}, 15, v{V_LANE}")
        A.i(f"v_lshl_add_u32 v{VOA}, v{T2}, 4, v{T0}")
        A.i("s_add_u32 s28, s29, 4")
        A.i(f"v_mov_b32 v{X0}, {LCNT}")
        A.i(f"v_mov_b32 v{X0+1}, 0")
        if fuse:
            A.i(f"v_mov_b32 v{X0+2}, 0")
            A.i(f"v_mov_b32 v{X0+3}, 0")
            A.i(f"ds_write_b64 v{X0}, {vr(X0+2,2)}")
        else: A.i(f"ds_write_b32 v{X0}, v{X0+1}")
        lo=OPT.get('llo',1)
        if lo>=1: local_loads(A,LA,28,0)
        if lo>=2: local_loads(A,LB,29,1)
        A.i(f"s_waitcnt vmcnt({2+9*lo}) lgkmcnt(0)")
        A.i("s_barrier")
        stamp(A,1,prof)
        if lo<1: local_loads(A,LA,28,0)
        if lo<2: local_loads(A,LB,29,1)
        A.i("s_waitcnt vmcnt(18)")
        A.i("s_barrier")
        xs(A,0)
        i1=OPT.get('dsp',12)
        nA=kd(3,8)
        A.i(f"s_waitcnt vmcnt({9+nA})")
        xs(A,1)
        def mid2():
            xs(A,2)
            n=kd(8,i1)
            A.i(f"s_waitcnt vmcnt({n})")
            A.i("s_barrier")
            xs(A,3)
        local_attn(A,LA,28,mid2)
        xs(A,4)
        nB=kd(i1,19)
        A.i("s_cmp_lg_u32 s29, 0")
        A.i(f"s_cbranch_scc1 {name}_hasprev")
        for r in range(8): A.i(f"v_mov_b32 v{BIAS1+r}, v{LNEG}")
        A.label(f"{name}_hasprev")
        b3=OPT.get('b3pos',0)
        def mid3():
            xs(A,5)
            A.i("s_waitcnt vmcnt(0)")
            A.i("s_barrier")
            xs(A,6)
        if b3==0:
            local_attn(A,LB,29,mid3)
        else:
            local_attn(A,LB,29)
            if b3==1:
                A.i("s_waitcnt vmcnt(2)")
                A.i("s_barrier")
        stamp(A,2,prof)
        consts()
        prologue()
        if b3==2:
            A.i("s_waitcnt vmcnt(2)")
            A.i("s_barrier")
        stamp(A,3,prof)
        A.i("s_mov_b32 s66, 1")
        A.i("s_mov_b32 s23, 0")
        A.i("s_mov_b32 s65, 99")
        A.i(f"s_branch {name}_loop")
        A.label(f"{name}_young")
    else:
        make_bias(A)
    if ordv==4: late_dma()
    consts()
    if ordv==5: late_dma()
    xp(A,3)
    if mono: mono_wait(A,name,2,'a')
    else: A.i("s_waitcnt vmcnt(2)" if OPT.get('sw1') else "s_waitcnt vmcnt(0)")
    xp(A,4)
    A.i("s_barrier")
    xp(A,5)
    stamp(A,1,prof)
    prologue()
    if OPT.get('sw1'):
        if mono: mono_wait(A,name,0,'b')
        else: A.i("s_waitcnt vmcnt(0)")
        A.i("s_barrier")
    stamp(A,2,prof)
    bal=OPT.get('bal',0)
    pr=OPT.get('prio',0)
    if bal or pr or OPT.get('prl'):
        A.i("s_cmp_ge_u32 s5, 4")
        A.i("s_cselect_b64 vcc, -1, 0")
    cnt=[0]
    prl=str(OPT.get('prl',''))
    itn=[0]
    def iteration(with_dma=False,hooks=None):
        pr=OPT.get('prio',0)
        if prl: pr=int(prl[itn[0]])
        itn[0]+=1
        _it[0]=itn[0]
        for tau in range(8):
            if bal in (1,2) and tau==0:
                cnt[0]+=1
                A.i(f"s_cbranch_vccz {name}_pr{cnt[0]}")
                A.i("s_setprio 1")
                A.label(f"{name}_pr{cnt[0]}")
            if pr and tau==0:
                cnt[0]+=1
                A.i(f"s_cbranch_vccz {name}_pr{cnt[0]}")
                A.i("s_setprio 1")
                A.label(f"{name}_pr{cnt[0]}")
            yp=OPT.get('yp')
            if yp and itn[0]>=OPT.get('ypfrom',1):
                a,b=yp//10,yp%10
                if tau==a:
                    cnt[0]+=1
                    A.i("s_cmp_ge_u32 s5, 4")
                    A.i(f"s_cbranch_scc0 {name}_yp{cnt[0]}")
                    A.i("s_setprio 1")
                    A.label(f"{name}_yp{cnt[0]}")
                if tau==b: A.i("s_setprio 0")
            if pr and pr<8 and tau==pr: A.i("s_setprio 0")
            if bal==1 and tau==4: A.i("s_setprio 0")
            if bal==2 and tau==5: A.i("s_setprio 0")
            if bal==3 and tau in (0,4):
                cnt[0]+=1
                A.i(f"s_cbranch_vccz {name}_pr{cnt[0]}")
                A.i("s_setprio 1")
                A.label(f"{name}_pr{cnt[0]}")
            if bal==3 and tau in (2,6): A.i("s_setprio 0")
            step(A,tau,S0 if tau%2==0 else S1, S1 if tau%2==0 else S0, dma if with_dma else None, hooks[tau] if hooks else None)
        if OPT.get('yp') and OPT['yp']%10==8 and OPT.get('ypr8',1): A.i("s_setprio 0")
        for a in (A_KM,A_KR,A_V):
            A.i(f"v_add_u32 v{a}, {8*TILE_B}, v{a}")
        if OPT.get('itst') and itn[0]<=7:
            A.i(f"s_memtime s[{84+2*(itn[0]-1)}:{85+2*(itn[0]-1)}]")
    def dma_piece(sreg,adv):
        L=[f"s_mov_b32 m0, s{sreg}","s_nop 0",f"buffer_load_dwordx4 v{DMAV}, s[8:11], s{sreg} offen {OPT.get('kvmod','')} lds".replace('  ',' ')]
        if adv: L.append("s_add_u32 s22, s22, 8192")
        return L
    if us:
        d0=[int(c) for c in str(OPT.get('d0',11111111))]
        n0=sum(d0); assert n0>=8
        hk=[[[] for k in range(4)] for t in range(8)]
        dw=OPT.get('dw','a')
        if dw=='a':
            for t in range(8):
                for q in range(d0[t]): hk[t][[3,1,2,0][q]]+=dma_piece(22,True)
        else:
            sk=["s_cmp_ge_u32 s5, 4"]; n=0
            for t in range(8):
                for q in range(d0[t]):
                    for h in range(2):
                        n+=1; lab=f"{name}_dk{n}"
                        body=([f"s_add_u32 s30, s22, {4096 if dw=='o' else -4096}"]+dma_piece(30,False)) if h==0 else dma_piece(22,True)
                        hk[t][([1,3] if d0[t]==1 else [0,1,2,3])[2*q+h]]+=sk+[f"s_cbranch_scc{1 if dw=='o' else 0} {lab}"]+body+[lab+":"]
        iteration(False,hk)
        xs(A,0)
        if mono:
            assert dw=='o'
            A.i("s_cmp_ge_u32 s5, 4")
            A.i(f"s_cbranch_scc0 {name}_nodrain")
            A.i("s_waitcnt vmcnt(0)")
            A.label(f"{name}_nodrain")
        A.i(f"s_waitcnt vmcnt({n0-5 if dw=='a' else 2*(n0-5)})")
        A.i("s_barrier")
        xs(A,1)
        notP(f"{name}_young")
        if mono and not OPT.get('mnoa'):
            mono_head_regs(A,X0,X0+1,WS_FLAGA,True,X0+2)
            mono_spin(A,f"{name}_as",f"buffer_load_dword v{X0+2}, v{X0}, s[36:39], 0 offen sc1",X0+2,f"v{X0+1}")
        pa,la=local_loads_l(LA,28,80,81,82)
        pb,lb=local_loads_l(LB,29,83,84,67)
        for l in pa+pb: A.i(l)
        hk=[[[] for k in range(4)] for t in range(8)]
        alp=OPT.get('alp',3)
        for n,l in enumerate(la+lb): hk[n//alp][[0,1,3,2][n%alp]].append(l)
        iteration(False,hk)
        xs(A,2)
        A.i("s_waitcnt vmcnt(9)")
        xs(A,3)
        local_attn_mid(A,LA,28)
        xs(A,4)
        A.i("s_cmp_lg_u32 s29, 0")
        A.i(f"s_cbranch_scc1 {name}_hasprev")
        for r in range(8): A.i(f"v_mov_b32 v{BIAS1+r}, v{LNEG}")
        A.label(f"{name}_hasprev")
        A.i("s_waitcnt vmcnt(2)")
        local_attn_mid(A,LB,29)
        xs(A,5)
        if OPT.get('sw2'):
            A.i("s_lshr_b32 s75, s2, 3")
            A.i("s_and_b32 s75, s75, 3")
            A.i("s_mul_i32 s6, s75, 9")
            A.i("s_lshl_b32 s72, s5, 1")
            A.i("s_add_u32 s6, s6, s72")
            A.i(f"s_mul_i32 s72, s6, {18*1024}")
            A.i(f"s_add_u32 s72, s72, {WS_WOTB}")
            wl=[[f"s_add_u32 s73, s72, {(ci*18+st)*1024}",f"buffer_load_dwordx4 {vr(WPRE(ci,st),4)}, v{DMAV}, s[36:39], s73 offen"] for ci in range(2) for st in range(17)]
            def whooks(L):
                hk=[[[] for k in range(4)] for t in range(8)]
                for n,g in enumerate(L):
                    u=n*16//len(L)
                    hk[u//2][[1,3][u%2]]+=g
                return hk
            iteration(False,whooks(wl[:17]))
            A.i("s_waitcnt vmcnt(17)")
            xs(A,6)
            A.i("s_barrier")
            stamp(A,3,prof)
            A.i("s_cmp_eq_u32 s98, 3")
            A.i(f"s_cbranch_scc0 {name}_nosig")
            A.i(f"v_mov_b32 v{X0+1}, 1")
            A.i("s_lshl_b32 s30, s4, 8")
            A.i(f"s_add_u32 s30, s30, {WS_FLAG}")
            A.i("s_mov_b64 exec, 1")
            A.i(f"buffer_atomic_add v{X0+1}, off, s[36:39], s30 sc1")
            A.i("s_mov_b64 exec, -1")
            A.label(f"{name}_nosig")
            if OPT.get('pfwot',1): touch(A,36,WS_WOT,PFJ_O)
            A.i("s_and_b32 s74, s2, 7")
            A.i("s_lshl_b32 s74, s74, 3")
            A.i("s_lshr_b32 s6, s2, 5")
            A.i("s_add_u32 s74, s74, s6")
            A.i("s_lshl_b32 s6, s74, 7")
            A.i(f"s_add_u32 s6, s6, {WS_G}")
            A.i(f"v_and_b32 v{T0}, 15, v{V_LANE}")
            A.i(f"v_lshlrev_b32 v{T0}, 2, v{T0}")
            A.i(f"buffer_load_dword v{EGO}, v{T0}, s[36:39], s6 offen")
            A.i(f"buffer_load_dword v{EGO+1}, v{T0}, s[36:39], s6 offen offset:64")
            iteration(False,whooks(wl[17:]))
            A.i("s_mov_b32 s66, 0")
            A.i("s_mov_b32 s23, 2")
        else:
            A.i("s_mov_b32 s66, 1")
            A.i("s_mov_b32 s23, 0")
        A.i("s_mov_b32 s65, 99")
        A.i(f"s_branch {name}_loop")
        A.label(f"{name}_young")
        if mono:
            A.i("s_cmp_eq_u32 s5, 4")
            A.i(f"s_cbranch_scc0 {name}_noaflag")
            A.i("s_cmp_eq_u32 s67, 1")
            A.i(f"s_cbranch_scc0 {name}_noaflag")
            mono_flag(A,36,WS_FLAGA-WS_FLAGB)
            A.label(f"{name}_noaflag")
        if OPT.get('daf')==6:
            A.i("s_and_b32 s80, s2, 7")
            A.i("s_lshl_b32 s80, s80, 3")
            A.i("s_lshr_b32 s6, s2, 5")
            A.i("s_add_u32 s80, s80, s6")
            A.i("s_lshl_b32 s67, s80, 12")
            A.i("s_lshl_b32 s80, s80, 15")
            A.i("s_lshr_b32 s6, s98, 1")
            A.i("s_lshl_b32 s6, s6, 14")
            A.i("s_add_u32 s80, s80, s6")
            A.i("s_and_b32 s6, s98, 1")
            A.i("s_lshl_b32 s6, s6, 11")
            A.i("s_add_u32 s80, s80, s6")
            A.i(f"s_add_u32 s80, s80, {WS_OB}")
            for q in range(1,4): A.i(f"s_add_u32 s{80+q}, s80, {4096*q}")
            A.i("s_lshl_b32 s6, s98, 10")
            A.i("s_add_u32 s67, s67, s6")
            A.i(f"s_add_u32 s67, s67, {WS_OBR}")
        rows=list(range(3+n0,19))
        if dw=='o': A.i(f"s_add_u32 s22, s22, {n0*8192}")
        hk=[[[] for k in range(4)] for t in range(8)]
        for n,r in enumerate(rows):
            t=n*8//len(rows) if len(rows)>8 else n
            hk[t][1]+=["s_sub_u32 s30, s22, 4096"]+dma_piece(30,r==18)
            if r<18: hk[t][3]+=dma_piece(22,True)
        iteration(False,hk)
        xs(A,2)
        A.i("s_mov_b32 s66, 5")
        A.i("s_mov_b32 s23, 0")
        A.i("s_mov_b32 s65, 99")
    elif ag:
        iteration()
        xs(A,0)
        A.i("s_barrier")
        xs(A,2)
        iteration()
        xs(A,3)
        if OPT.get('b3y',2)==3: iteration()
        xs(A,4)
        A.i("s_barrier")
        xs(A,6)
    else:
        iteration(True)
        xs(A,0)
        A.i("s_waitcnt vmcnt(3)")
        xs(A,1)
        A.i("s_barrier")
        xs(A,2)
        iteration(True)
        xs(A,3)
        iteration()
        xs(A,4)
        A.i("s_waitcnt vmcnt(0)")
        xs(A,5)
        A.i("s_barrier")
        xs(A,6)
    if prof and not us: A.i("s_waitcnt lgkmcnt(0)")
    if not us: stamp(A,3,prof)
    if bal and OPT.get('pfwo'):
        A.i("s_cmp_ge_u32 s5, 4")
        A.i(f"s_cbranch_scc1 {name}_nopf")
        A.i("s_mov_b32 s29, s7")
        prefetch_wo(A)
        A.i("s_mov_b32 s7, s29")
        A.label(f"{name}_nopf")
    if OPT.get('itst'):
        for _ in range(4): iteration()
    else:
        if not us: A.i(f"s_mov_b32 s23, {4 if (ag and OPT.get('b3y',2)==2) else 3}")
        if ag and not us:
            A.i("s_mov_b32 s66, 0")
            A.i(f"s_mov_b32 s65, {OPT.get('ypr',99)}")
        A.label(f"{name}_loop")
        if ag and OPT.get('ypr',99)!=99:
            A.i("s_cmp_eq_u32 s23, s65")
            A.i(f"s_cbranch_scc0 {name}_nopr")
            A.i("s_setprio 1")
            A.label(f"{name}_nopr")
        iteration()
        A.i("s_sub_u32 s23, s23, 1")
        A.i(f"s_cbranch_scc0 {name}_loop")
    if us:
        agit=OPT.get('agit',4)
        A.i("s_cmp_eq_u32 s66, 0")
        A.i(f"s_cbranch_scc1 {name}_last")
        A.i("s_cmp_eq_u32 s66, 3")
        A.i(f"s_cbranch_scc1 {name}_ph3")
        A.i("s_waitcnt vmcnt(0)")
        xs(A,6)
        A.i("s_barrier")
        stamp(A,3,prof)
        if OPT.get('sw2'):
            A.i("s_mov_b32 s66, 3")
            A.i(f"s_mov_b32 s23, {4-agit}")
            A.i(f"s_branch {name}_loop")
        else:
          A.i("s_cmp_eq_u32 s66, 1")
          A.i(f"s_cbranch_scc1 {name}_osig")
          A.i("s_mov_b32 s66, 0")
          A.i("s_mov_b32 s23, 3")
          A.i(f"s_branch {name}_loop")
        if not OPT.get('sw2'):
         for _ in range(1):
          A.label(f"{name}_osig")
          A.i("s_cmp_eq_u32 s98, 3")
          A.i(f"s_cbranch_scc0 {name}_nosig")
          A.i(f"v_mov_b32 v{X0+1}, 1")
          A.i("s_lshl_b32 s30, s4, 8")
          A.i(f"s_add_u32 s30, s30, {WS_FLAG}")
          A.i("s_mov_b64 exec, 1")
          A.i(f"buffer_atomic_add v{X0+1}, off, s[36:39], s30 sc1")
          A.i("s_mov_b64 exec, -1")
          A.label(f"{name}_nosig")
          if OPT.get('pfwot',1): touch(A,36,WS_WOT,PFJ)
          A.i("s_mov_b32 s66, 3")
          A.i(f"s_mov_b32 s23, {4-agit}")
          A.i(f"s_branch {name}_loop")
        A.label(f"{name}_ph3")
        A.i("s_mov_b32 s66, 0")
        if agit>=2: A.i(f"s_mov_b32 s23, {agit-2}")
        A.i("s_cmp_eq_u32 s98, 3")
        A.i(f"s_cbranch_scc1 {name}_{['fpv','last'][agit] if agit<2 else 'loop'}")
        A.i("s_and_b32 s30, s2, 7")
        A.i("s_lshl_b32 s30, s30, 8")
        A.i(f"s_add_u32 s30, s30, {WS_FLAG}")
        A.i("s_mov_b32 s6, 0")
        spin(A,f"{name}_aspin",POLL,30,31)
        A.i("s_mov_b32 s66, 4")
        ag_setup(A); ag_bases(A)
        pre,hooks,tail=ag_sched(8*agit)
        emit(A,pre)
        for it in range(agit): iteration(False,hooks[8*it:8*it+8])
        A.i(f"s_branch {name}_fpv")
        A.label(f"{name}_last")
        if OPT.get('tb')==2:
            A.i("s_cmp_ge_u32 s5, 4")
            A.i(f"s_cbranch_scc0 {name}_noew")
            A.i("s_lshr_b32 s75, s2, 3")
            A.i("s_and_b32 s75, s75, 3")
            A.i("s_mul_i32 s6, s75, 9")
            A.i("s_add_u32 s6, s6, 8")
            A.i(f"s_mul_i32 s30, s6, {18*1024}")
            A.i("s_cmp_ge_u32 s5, 6")
            A.i("s_cselect_b32 s6, 8192, 0")
            A.i("s_add_u32 s30, s30, s6")
            A.i(f"s_add_u32 s30, s30, {WS_WOTB}")
            for k in range(10):
                if k and k%4==0: A.i("s_add_u32 s30, s30, 4096")
                A.i(f"buffer_load_dwordx4 {vr(EW+4*k,4)}, v{DMAV}, s[36:39], s30 offen offset:{(k%4)*1024}")
            A.i("s_and_b32 s74, s2, 7")
            A.i("s_lshl_b32 s74, s74, 3")
            A.i("s_lshr_b32 s6, s2, 5")
            A.i("s_add_u32 s74, s74, s6")
            A.i("s_lshl_b32 s6, s74, 1")
            A.i("s_and_b32 s30, s5, 1")
            A.i("s_add_u32 s6, s6, s30")
            A.i("s_lshl_b32 s6, s6, 6")
            A.i(f"s_add_u32 s30, s6, {WS_G}")
            A.i(f"v_and_b32 v{EG+1}, 15, v{V_LANE}")
            A.i(f"v_lshlrev_b32 v{EG+1}, 2, v{EG+1}")
            A.i(f"buffer_load_dword v{EG}, v{EG+1}, s[36:39], s30 offen")
            A.label(f"{name}_noew")
    elif ag:
        A.i("s_cmp_eq_u32 s66, 0")
        A.i(f"s_cbranch_scc1 {name}_last")
        A.i("s_cmp_eq_u32 s66, 1")
        A.i(f"s_cbranch_scc0 {name}_ph2")
        A.i("s_waitcnt vmcnt(0)")
        A.i(f"v_mov_b32 v{X0}, {LCNT}")
        A.i(f"v_mov_b32 v{X0+1}, 1")
        A.i("s_mov_b64 exec, 1")
        A.i(f"ds_add_rtn_u32 v{X0+2}, v{X0}, v{X0+1}")
        A.i("s_waitcnt lgkmcnt(0)")
        A.i(f"v_readfirstlane_b32 s6, v{X0+2}")
        A.i("s_lshl_b32 s30, s4, 8")
        A.i(f"s_add_u32 s30, s30, {WS_FLAG}")
        A.i("s_cmp_eq_u32 s6, 3")
        A.i(f"s_cbranch_scc0 {name}_nosig")
        A.i(f"buffer_atomic_add v{X0+1}, off, s[36:39], s30 sc1")
        A.label(f"{name}_nosig")
        A.i("s_mov_b64 exec, -1")
        if OPT.get('pfwot',1): touch(A,36,WS_WOT,PFJ)
        t2=OPT.get('t2')
        A.i("s_mov_b32 s66, 2")
        A.i(f"s_mov_b32 s23, {1 if t2 else 4}")
        A.i(f"s_branch {name}_loop")
        A.label(f"{name}_ph2")
        A.i("s_cmp_eq_u32 s66, 2")
        A.i(f"s_cbranch_scc0 {name}_ph3")
        A.i("s_and_b32 s30, s2, 7")
        A.i("s_lshl_b32 s30, s30, 8")
        A.i(f"s_add_u32 s30, s30, {WS_FLAG}")
        A.i(f"buffer_load_dword v{POLL}, off, s[36:39], s30 sc1")
        A.i("s_mov_b32 s66, 3")
        A.i("s_mov_b32 s23, 0")
        A.i(f"s_branch {name}_loop")
        A.label(f"{name}_ph3")
        A.i("s_waitcnt vmcnt(0)")
        A.i(f"v_readfirstlane_b32 s6, v{POLL}")
        A.i("s_mov_b32 s66, 0")
        if t2:
            A.i("s_mov_b32 s23, 2")
            A.i("s_cmp_eq_u32 s98, 3")
            A.i(f"s_cbranch_scc1 {name}_loop")
            if fuse:
                A.i("s_and_b32 s30, s2, 7")
                A.i("s_lshl_b32 s30, s30, 8")
                A.i(f"s_add_u32 s30, s30, {WS_FLAG}")
                spin(A,f"{name}_aspin",POLL,30,31)
            else:
                A.i(f"s_cmp_eq_u32 s6, {32 if not OPT.get('agskip') else 33}")
                A.i(f"s_cbranch_scc0 {name}_loop")
            A.i("s_mov_b32 s66, 4")
            ag_setup(A); ag_bases(A)
            pre,hooks,tail=ag_sched()
            emit(A,pre)
            for it in range(4): iteration(False,hooks[8*it:8*it+8])
            A.i(f"s_branch {name}_fpv")
        else:
            A.i("s_cmp_eq_u32 s98, 3")
            A.i(f"s_cbranch_scc1 {name}_last")
            A.i(f"s_cmp_eq_u32 s6, {32 if not OPT.get('agskip') else 33}")
            A.i(f"s_cbranch_scc0 {name}_last")
            A.i("s_mov_b32 s66, 4")
            ag_setup(A)
            emit(A,ag_loads(AGB[0],GB0)[0])
        A.label(f"{name}_last")
    if ag: pass
    elif bal:
        local_loads(A,LB,7,1)
    else:
        A.i("s_cmp_ge_u32 s5, 4")
        A.i(f"s_cbranch_scc1 {name}_noA")
        A.i("s_add_u32 s28, s7, 4")
        local_loads(A,LA,28,0)
        local_loads(A,LB,7,1)
        A.label(f"{name}_noA")
    iteration()
    A.label(f"{name}_fpv")
    A.i("s_waitcnt lgkmcnt(0)")
    stamp(A,4,prof)
    mfma16(A,O,V1,P+4,O)
    A.i("s_nop 11")
    A.label(f"{name}_check")
    A.i(f"v_mov_b32 v{X0}, v{O+10}")
    A.i(f"v_mov_b32 v{X0+1}, v{O+10}")
    A.i(f"v_mul_f32 v{X0+2}, 0, v{O}")
    A.i(f"v_fma_f32 v{X0+2}, v{O+1}, 0, v{X0+2}")
    A.i(f"v_permlane32_swap_b32 v{X0}, v{X0+1}")
    for r in range(2,10):
        A.i(f"v_fma_f32 v{X0+2}, v{O+r}, 0, v{X0+2}")
    A.i(f"v_add_f32 v{X0+2}, v{X0+2}, v{X0}")
    A.i(f"v_mov_b32 v{X0+3}, 0x5f800000")
    A.i(f"v_cmp_nlt_f32 vcc, v{X0+2}, v{X0+3}")
    A.i("s_nop 4")
    A.i(f"s_cbranch_vccnz {name}_slow")
    if OPT.get('fslow'): A.i(f"s_branch {name}_slow")
    A.label(f"{name}_fin")
    if fuse and OPT.get('daf')==1:
        A.i("s_cmp_ge_u32 s5, 4")
        A.i(f"s_cbranch_scc0 {name}_nogo")
        A.i(f"v_mov_b32 v{X0+6}, {LCNT2}")
        A.i(f"v_mov_b32 v{X0+7}, 1")
        A.i("s_mov_b64 exec, 1")
        A.i(f"ds_add_u32 v{X0+6}, v{X0+7}")
        A.i("s_mov_b64 exec, -1")
        A.label(f"{name}_nogo")
    if fuse: finish_frag_b(A,P)
    else: finish_store(A,16,P,7,3,OPT.get("obmod",""))
    if not OPT.get('xst'): stamp(A,6,prof)
    if fuse and OPT.get('daf')==2:
        A.i("s_cmp_eq_u32 s66, 4")
        A.i(f"s_cbranch_scc1 {name}_nogo")
        A.i("s_cmp_ge_u32 s5, 4")
        A.i("s_cselect_b32 s6, 1, 16")
        A.i(f"v_mov_b32 v{X0+6}, {LCNT2}")
        A.i(f"v_mov_b32 v{X0+7}, s6")
        A.i("s_mov_b64 exec, 1")
        A.i(f"ds_add_u32 v{X0+6}, v{X0+7}")
        A.i("s_mov_b64 exec, -1")
        A.label(f"{name}_nogo")
    if fuse:
        A.i("s_cmp_eq_u32 s66, 4")
        A.i(f"s_cbranch_scc0 {name}_tail")
        emit(A,tail)
        A.i("s_nop 7")
        ag_epi(A)
        if OPT.get('daf') in (1,2):
            A.i(f"v_mov_b32 v{X0+6}, {LCNT2}")
            A.i(f"v_mov_b32 v{X0+7}, 16")
            A.i("s_mov_b64 exec, 1")
            A.i(f"ds_add_u32 v{X0+6}, v{X0+7}")
            A.i("s_mov_b64 exec, -1")
        A.label(f"{name}_tail")
        gen_tail(A,name,prof)
    elif ag:
        notP(f"{name}_done")
        if OPT.get('swap'): A.i("s_setprio 0")
        if OPT.get('pfwo'):
            A.i("s_and_b32 s79, s79, 0xffff")
            A.i(f"s_mov_b32 s72, s78")
            A.i(f"s_mov_b32 s73, s79")
            A.i(f"s_mov_b32 s74, {576*1152}")
            A.i("s_mov_b32 s75, 0x20000")
            touch(A,72,0,GJ+1)
        A.i("s_cmp_eq_u32 s66, 4")
        A.i(f"s_cbranch_scc0 {name}_done")
        if OPT.get('t2'):
            emit(A,tail)
            A.i("s_nop 7")
            ag_epi(A)
        else: ag_task(A,name,3+(1 if OPT.get('pfwo') else 0))
    elif bal:
        A.i("s_setprio 0")
        A.i("s_waitcnt vmcnt(3)")
    else:
        A.i("s_cmp_ge_u32 s5, 4")
        A.i(f"s_cbranch_scc1 {name}_done")
        A.i("s_waitcnt vmcnt(12)")
        local_attn(A,LA,28)
    if not ag:
        A.i("s_cmp_lg_u32 s7, 0")
        A.i(f"s_cbranch_scc1 {name}_hasprev")
        for r in range(8): A.i(f"v_mov_b32 v{BIAS1+r}, v{LNEG}")
        A.label(f"{name}_hasprev")
        if not bal: A.i("s_waitcnt vmcnt(3)")
        local_attn(A,LB,7)
        if OPT.get('pfwo') and not bal: prefetch_wo(A)
    A.label(f"{name}_done")
    if prof: A.i("s_waitcnt vmcnt(0)")
    stamp(A,5,prof)
    stamp_store(A,14 if (OPT.get('itst') or OPT.get('xst')) else (11 if fuse else 7),prof,name,0x40000)
    if prof and mono:
        A.i(f"s_sub_u32 s64, s64, 0x40000")
        A.i(f"s_subb_u32 s65, s65, 0")
        for k,r in ((0,54),(1,55),(2,56),(3,57),(14,94),(15,95))+(((4,78),) if OPT.get('mnoa') else ()):
            A.i(f"v_mov_b32 v{X0+9}, s{r}")
            A.i(f"global_store_dword v{X0+8}, v{X0+9}, s[64:65] offset:{4*k}")
        A.i("s_getreg_b32 s6, hwreg(HW_REG_XCC_ID, 0, 4)")
        A.i(f"v_mov_b32 v{X0+9}, s6")
        A.i(f"global_store_dword v{X0+8}, v{X0+9}, s[64:65] offset:{52}")
    A.label(f"{name}_end")
    A.i("s_endpgm")
    A.label(f"{name}_slow")
    A.i(f"v_subrev_u32 v{A_KM}, {64*TILE_B}, v{A_KM}")
    A.i(f"v_subrev_u32 v{A_KR}, {64*TILE_B}, v{A_KR}")
    A.i(f"v_subrev_u32 v{A_V}, {64*TILE_B}, v{A_V}")
    if OPT.get('krg'):
        A.i(f"v_mov_b32 v{X0}, 0xff800000")
        A.i(f"v_mov_b32 v{QR}, v{QR0}")
        A.i(f"v_mov_b32 v{QR+1}, 0")
        A.i(f"v_mov_b32 v{QRO}, 0")
        A.i(f"v_mov_b32 v{QRO+1}, v{QR0}")
        A.i("s_mov_b32 s23, 16")
        A.label(f"{name}_slow_max")
        A.i(f"ds_read_b128 {vr(KG[0],4)}, v{A_KR}")
        for i in range(4):
            A.i(f"ds_read_b128 {vr(KM,4)}, v{A_KM} offset:{toff(i)}")
            A.i("s_waitcnt lgkmcnt(0)")
            mfma16(A,S0,KM,QM,None)
            A.i("s_nop 9")
            mfma8(A,S0,KG[0]+2*(i>>1),QRO if i&1 else QR,S0)
            A.i("s_nop 11")
            max16(A,X0,S0,False)
        A.i(f"v_add_u32 v{A_KM}, {GRP_B}, v{A_KM}")
        A.i(f"v_add_u32 v{A_KR}, {GRP_B}, v{A_KR}")
        A.i("s_sub_u32 s23, s23, 1")
        A.i("s_cmp_lg_u32 s23, 0")
        A.i(f"s_cbranch_scc1 {name}_slow_max")
        A.i(f"v_subrev_u32 v{A_KM}, {64*TILE_B}, v{A_KM}")
        A.i(f"v_subrev_u32 v{A_KR}, {64*TILE_B}, v{A_KR}")
        xhalf_max(A,X0,X0+1)
        set_bias(A,X0,X0+2)
        for r in range(16): A.i(f"v_mov_b32 v{O+r}, 0")
        A.i("s_mov_b32 s23, 16")
        A.label(f"{name}_slow_main")
        A.i(f"ds_read_b128 {vr(KG[0],4)}, v{A_KR}")
        for i in range(4):
            A.i(f"ds_read_b128 {vr(KM,4)}, v{A_KM} offset:{toff(i)}")
            A.i(f"ds_read_b128 {vr(V0,4)}, v{A_V} offset:{toff(i)}")
            A.i(f"ds_read_b128 {vr(V1,4)}, v{A_V} offset:{toff(i)+608}")
            A.i("s_waitcnt lgkmcnt(0)")
            mfma16(A,S0,KM,QM,None)
            A.i("s_nop 9")
            mfma8(A,S0,KG[0]+2*(i>>1),QRO if i&1 else QR,S0)
            A.i("s_nop 11")
            for r in range(16): A.i(f"v_exp_f32 v{S0+r}, v{S0+r}")
            A.i("s_nop 0")
            for r in range(8): A.i(f"v_cvt_pk_bf16_f32 v{P+r}, v{S0+2*r}, v{S0+2*r+1}")
            A.i("s_nop 1")
            mfma16(A,O,V0,P,O)
            mfma16(A,O,V1,P+4,O)
            A.i("s_nop 7")
        A.i(f"v_add_u32 v{A_KM}, {GRP_B}, v{A_KM}")
        A.i(f"v_add_u32 v{A_KR}, {GRP_B}, v{A_KR}")
        A.i(f"v_add_u32 v{A_V}, {GRP_B}, v{A_V}")
        A.i("s_sub_u32 s23, s23, 1")
        A.i("s_cmp_lg_u32 s23, 0")
        A.i(f"s_cbranch_scc1 {name}_slow_main")
    else:
        A.i(f"v_mov_b32 v{X0}, 0xff800000")
        A.i("s_mov_b32 s23, 64")
        A.label(f"{name}_slow_max")
        A.i(f"ds_read_b128 {vr(KM,4)}, v{A_KM}")
        A.i(f"ds_read_b32 v{KR}, v{A_KR}")
        A.i("s_waitcnt lgkmcnt(0)")
        mfma16(A,S0,KM,QM,None)
        A.i("s_nop 9")
        mfma8(A,S0,KR,QR0,S0)
        A.i("s_nop 11")
        max16(A,X0,S0,False)
        A.i(f"v_add_u32 v{A_KM}, {TILE_B}, v{A_KM}")
        A.i(f"v_add_u32 v{A_KR}, {TILE_B}, v{A_KR}")
        A.i("s_sub_u32 s23, s23, 1")
        A.i("s_cmp_lg_u32 s23, 0")
        A.i(f"s_cbranch_scc1 {name}_slow_max")
        A.i(f"v_subrev_u32 v{A_KM}, {64*TILE_B}, v{A_KM}")
        A.i(f"v_subrev_u32 v{A_KR}, {64*TILE_B}, v{A_KR}")
        xhalf_max(A,X0,X0+1)
        set_bias(A,X0,X0+2)
        for r in range(16): A.i(f"v_mov_b32 v{O+r}, 0")
        A.i("s_mov_b32 s23, 64")
        A.label(f"{name}_slow_main")
        A.i(f"ds_read_b128 {vr(KM,4)}, v{A_KM}")
        A.i(f"ds_read_b32 v{KR}, v{A_KR}")
        A.i(f"ds_read_b128 {vr(V0,4)}, v{A_V}")
        A.i(f"ds_read_b128 {vr(V1,4)}, v{A_V} offset:608")
        A.i("s_waitcnt lgkmcnt(0)")
        mfma16(A,S0,KM,QM,None)
        A.i("s_nop 9")
        mfma8(A,S0,KR,QR,S0)
        A.i("s_nop 11")
        for r in range(16): A.i(f"v_exp_f32 v{S0+r}, v{S0+r}")
        A.i("s_nop 0")
        for r in range(8): A.i(f"v_cvt_pk_bf16_f32 v{P+r}, v{S0+2*r}, v{S0+2*r+1}")
        A.i("s_nop 1")
        mfma16(A,O,V0,P,O)
        mfma16(A,O,V1,P+4,O)
        A.i(f"v_add_u32 v{A_KM}, {TILE_B}, v{A_KM}")
        A.i(f"v_add_u32 v{A_KR}, {TILE_B}, v{A_KR}")
        A.i(f"v_add_u32 v{A_V}, {TILE_B}, v{A_V}")
        A.i("s_sub_u32 s23, s23, 1")
        A.i("s_cmp_lg_u32 s23, 0")
        A.i(f"s_cbranch_scc1 {name}_slow_main")
    A.i("s_nop 11")
    A.i(f"v_mov_b32 v{X0}, v{O+10}")
    A.i(f"v_mov_b32 v{X0+1}, v{O+10}")
    A.i("s_nop 1")
    A.i(f"v_permlane32_swap_b32 v{X0}, v{X0+1}")
    A.i("s_nop 1")
    A.i(f"s_branch {name}_fin")
    if OPT.get('cpf') or OPT.get('cend'): A.label(f"{name}_codeend")
    kernel_footer(A,OPT.get('mono') or name,NV)
```

```python
from asmlib import *
from k2 import stamp, stamp_store

V_LANE=1; XA=2; WA=4; DX=5; DWE=6; DWO=7; T0=8; T1=9; T2=10; T3=11
G=12
XF=16
WF=52
ACCA=64
ACCB=76
PK=88
NV=104
PIPE=1
OUT_MOD=''
NPRO=2
NSC=9
EP=1
ORD=0
XL=1
AG=0
AR=88; FL=94
STG=36864; WOFF=20480
def osrc(hh): return (WS_OA+hh*128) if hh<9 else (WS_OB+(hh-9)*128)

def dma_list(sc,tg):
    sb=(sc%4)*STG
    L=[]
    hh=2*sc+tg
    wsrd = "s[12:15]" if hh<9 else "s[16:19]"
    kb=(hh%9)*64
    for i in range(2):
        L.append([f"s_add_u32 s30, s23, {(kb+8*i)*1152}",f"s_add_u32 m0, s25, {sb+i*1024}","s_nop 0",
                  f"buffer_load_dwordx4 v{DWO if i else DWE}, {wsrd}, s30 offen lds"])
    for i in range(2):
        L.append([f"s_add_u32 s30, s22, {osrc(hh)+32*i*1152}",f"s_add_u32 m0, s24, {sb+tg*10240+i*4096}","s_nop 0",
                  f"buffer_load_dwordx4 v{DX}, s[8:11], s30 offen lds"])
    if tg==0:
        d = "s29" if sc==4 else "s28"
        L.append([f"s_add_u32 s30, s26, {osrc(2*sc)}",f"s_add_u32 s30, s30, {d}",f"s_add_u32 m0, s27, {sb}","s_nop 0",
                  f"buffer_load_dwordx4 v{DX}, s[8:11], s30 offen lds"])
    return L

def dma_list_b(sc,tg):
    sb=(sc%4)*STG
    L=[]
    hh=2*sc+tg
    if hh>8: return L
    kb=hh*64
    for i in range(2):
        L.append([f"s_add_u32 s30, s23, {(kb+8*i)*1152}",f"s_add_u32 m0, s25, {sb+i*1024}","s_nop 0",
                  f"buffer_load_dwordx4 v{DWO if i else DWE}, s[16:19], s30 offen lds"])
    for i in range(2):
        L.append([f"s_add_u32 s30, s22, {WS_OB+hh*128+32*i*1152}",f"s_add_u32 m0, s24, {sb+tg*10240+i*4096}","s_nop 0",
                  f"buffer_load_dwordx4 v{DX}, s[8:11], s30 offen lds"])
    if tg==0:
        L.append([f"s_add_u32 s30, s26, {WS_OB+2*sc*128}",f"s_add_u32 s30, s30, s28",f"s_add_u32 m0, s27, {sb}","s_nop 0",
                  f"buffer_load_dwordx4 v{DX}, s[8:11], s30 offen lds"])
    return L

def body_b(A,tg,prof,name):
    nt=3 if tg==0 else 2
    nr=2+nt
    NS=18; NC=5
    cnt=lambda sc: len(dma_list_b(sc,tg)) if sc<NC else 0
    for sc in range(NPRO):
        for g in dma_list_b(sc,tg):
            for l in g: A.i(l)
        if (LATE==1 and sc==0) or (LATE==2 and sc==NPRO-1): late_setup(A)
        if sc==0 and ST4==2: stamp(A,4,prof)
        if (ORD==1 and sc==0 and NPRO>1) or (ORD==2 and sc<NPRO-1): A.i("s_barrier")
        if sc==0 and ST4==3: stamp(A,4,prof)
    nx=0
    if XL==1:
        extra_loads(A); nx=7
    if ST4==0: stamp(A,4,prof)
    A.i(f"s_waitcnt vmcnt({sum(cnt(q) for q in range(1,NPRO))+nx})")
    A.i("s_barrier")
    stamp(A,1,prof)
    pend=[]
    for sc in range(NPRO,3): pend+=dma_list_b(sc,tg)
    for l in reads(0,0,nt): A.i(l)
    for l in reads(1,1,nt): A.i(l)
    unpack=[]
    for tt in range(nt):
        for q in range(2):
            unpack.append(f"v_lshlrev_b32 v{ACCA+tt*4+2*q}, 16, v{AR+2*tt+q}")
            unpack.append(f"v_and_b32 v{ACCA+tt*4+2*q+1}, 0xffff0000, v{AR+2*tt+q}")
    shadow=[f"v_cmp_ne_u32 vcc, 1, v{FL}"]+unpack
    for tt in range(nt):
        for r in range(4): shadow.append(f"v_mul_f32 v{ACCA+tt*4+r}, v{G+tt}, v{ACCA+tt*4+r}")
        shadow.append(f"v_sub_f32 v{OMG+tt}, 1.0, v{G+tt}")
    S_EP=14 if XL==2 else (4*max(NPRO-1,0)+2 if XL else 2)
    for s in range(NS):
        sc,ks=divmod(s,4)
        if ks==2 and sc<NC-1:
            while pend:
                for l in pend.pop(0): A.i(l)
            xa=(nx if sc+1<NPRO else 0) if XL!=2 else (7 if sc==2 else 0)
            A.i(f"s_waitcnt vmcnt({sum(cnt(q) for q in range(sc+2,max(NPRO,3,sc+3)))+xa})")
            A.i("s_barrier")
            if sc+3<NC and sc+3>=max(NPRO,3): pend=dma_list_b(sc+3,tg)
            d = STG if (sc+1)%4!=0 else -3*STG
            for r in (XA,XA+1,WA):
                if d>0: A.i(f"v_add_u32 v{r}, {d}, v{r}")
                else: A.i(f"v_subrev_u32 v{r}, {-d}, v{r}")
        if s+2<NS:
            for l in reads((s+2)%4,(s+2)%3,nt): A.i(l)
        later=nr*(min(s+2,NS-1)-s)
        A.i(f"s_waitcnt lgkmcnt({later})")
        buf=s%3
        for tt in range(nt):
            d=ACCB+tt*4
            c="0" if s==0 else vr(d,4)
            A.i(f"v_mfma_f32_16x16x32_bf16 {vr(d,4)}, {vr(WF+buf*4,4)}, {vr(XF+buf*12+tt*4,4)}, {c}")
        k = 3 if (sc==0 and ks<2) else (2 if ks>=2 else 1)
        for _ in range(k):
            if pend:
                for l in pend.pop(0): A.i(l)
        if ks==1:
            while pend:
                for l in pend.pop(0): A.i(l)
        if XL==2 and s==8:
            while pend:
                for l in pend.pop(0): A.i(l)
            extra_loads(A)
        if EP and s>=S_EP:
            for _ in range(4 if XL!=2 else 7):
                if shadow: A.i(shadow.pop(0))
    while EP and shadow: A.i(shadow.pop(0))
    stamp(A,2,prof)
    if not EP:
        A.i(f"v_cmp_ne_u32 vcc, 1, v{FL}")
        A.i("s_nop 4")
    A.i(f"s_cbranch_vccnz {name}_fb{tg}")
    if not EP:
        for l in unpack: A.i(l)
    A.label(f"{name}_join{tg}")
    if EP: epilogue2(A,nt,prof,name)
    else: epilogue(A,nt,prof,name)
    A.label(f"{name}_fb{tg}")
    A.i(f"v_lshlrev_b32 v{T0}, 4, v{V_LANE}")
    A.i(f"v_lshrrev_b32 v{T1}, 4, v{V_LANE}")
    A.i(f"v_lshlrev_b32 v{T1}, 9, v{T1}")
    A.i(f"v_and_b32 v{T2}, 15, v{V_LANE}")
    A.i(f"v_lshl_add_u32 v{T1}, v{T2}, 2, v{T1}")
    A.i(f"s_mul_i32 s84, s38, {18*1024}")
    A.i(f"s_add_u32 s84, s84, {WS_WOT}")
    for r in range(4*nt): A.i(f"v_mov_b32 v{ACCA+r}, 0")
    A.i("s_mov_b32 s85, 0")
    A.label(f"{name}_fbl{tg}")
    A.i("s_add_u32 s30, s84, s85")
    A.i(f"buffer_load_dwordx4 {vr(WF,4)}, v{T0}, s[8:11], s30 offen")
    for tt in range(nt):
        A.i(f"s_add_u32 s30, s37, {tt}")
        A.i("s_lshl_b32 s30, s30, 14")
        A.i("s_add_u32 s30, s30, s85")
        A.i(f"s_add_u32 s30, s30, {WS_OA}")
        A.i(f"buffer_load_dwordx4 {vr(XF+4*tt,4)}, v{T0}, s[8:11], s30 offen")
    A.i("s_waitcnt vmcnt(0)")
    for tt in range(nt):
        A.i(f"v_mfma_f32_16x16x32_bf16 {vr(ACCA+4*tt,4)}, {vr(WF,4)}, {vr(XF+4*tt,4)}, {vr(ACCA+4*tt,4)}")
    A.i("s_add_u32 s85, s85, 1024")
    A.i("s_cmp_lt_u32 s85, 16384")
    A.i("s_nop 7")
    A.i(f"s_cbranch_scc1 {name}_fbl{tg}")
    for r in range(2):
        A.i(f"s_add_u32 s30, s84, {(16+r)*1024}")
        A.i(f"buffer_load_dwordx4 {vr(WF,4)}, v{T0}, s[8:11], s30 offen")
        for tt in range(nt):
            A.i(f"s_add_u32 s31, s37, {tt}")
            A.i("s_lshr_b32 s30, s31, 1")
            A.i("s_lshl_b32 s30, s30, 12")
            A.i("s_and_b32 s31, s31, 1")
            A.i("s_lshl_b32 s31, s31, 6")
            A.i("s_add_u32 s30, s30, s31")
            A.i(f"s_add_u32 s30, s30, {WS_OAR+r*2048}")
            for i in range(4):
                A.i(f"buffer_load_dword v{XF+4*tt+i}, v{T1}, s[8:11], s30 offen offset:{i*128}")
        A.i("s_waitcnt vmcnt(0)")
        for tt in range(nt):
            A.i(f"v_mfma_f32_16x16x32_bf16 {vr(ACCA+4*tt,4)}, {vr(WF,4)}, {vr(XF+4*tt,4)}, {vr(ACCA+4*tt,4)}")
        A.i("s_nop 7")
    A.i("s_nop 3")
    if EP:
        A.i("s_nop 3")
        for tt in range(nt):
            for r in range(4): A.i(f"v_mul_f32 v{ACCA+tt*4+r}, v{G+tt}, v{ACCA+tt*4+r}")
    A.i(f"s_branch {name}_join{tg}")

def reads(ks,buf,nt):
    r=[]
    for u in range(2):
        r.append(f"ds_read_b64_tr_b16 {vr(WF+buf*4+2*u,2)}, v{WA} offset:{WOFF+ks*4096+u*512}")
    for tt in range(nt):
        r.append(f"ds_read_b128 {vr(XF+buf*12+tt*4,4)}, v{XA+(ks&1)} offset:{(ks>>1)*10240+tt*2048}")
    return r

def body2(A,tg,prof,name):
    nt=3 if tg==0 else 2
    n=5 if tg==0 else 4
    nr=2+nt
    for sc in range(NPRO):
        for g in dma_list(sc,tg):
            for l in g: A.i(l)
    stamp(A,4,prof)
    A.i(f"s_waitcnt vmcnt({n*(NPRO-1)})")
    A.i("s_barrier")
    stamp(A,1,prof)
    pend=[]
    for sc in range(NPRO,3): pend+=dma_list(sc,tg)
    for l in reads(0,0,nt): A.i(l)
    for l in reads(1,1,nt): A.i(l)
    NS=4*NSC
    for s in range(NS):
        sc,ks=divmod(s,4)
        if ks==2 and sc<NSC-1:
            assert not pend
            A.i(f"s_waitcnt vmcnt({n if sc+2<NSC else 0})")
            A.i("s_barrier")
            if sc+3<NSC: pend=dma_list(sc+3,tg)
            d = STG if (sc+1)%4!=0 else -3*STG
            for r in (XA,XA+1,WA):
                if d>0: A.i(f"v_add_u32 v{r}, {d}, v{r}")
                else: A.i(f"v_subrev_u32 v{r}, {-d}, v{r}")
        later=0
        if s+2<NS:
            for l in reads((s+2)%4,(s+2)%3,nt): A.i(l)
        later=nr*(min(s+2,NS-1)-s)
        A.i(f"s_waitcnt lgkmcnt({later})")
        buf=s%3
        hh=2*sc+(ks>>1)
        acc=ACCA if hh<9 else ACCB
        first=(hh%9==0 and (ks&1)==0)
        for tt in range(nt):
            d=acc+tt*4
            c="0" if first else vr(d,4)
            A.i(f"v_mfma_f32_16x16x32_bf16 {vr(d,4)}, {vr(WF+buf*4,4)}, {vr(XF+buf*12+tt*4,4)}, {c}")
        k = 3 if (sc==0 and ks<2) else (2 if ks>=2 else 1)
        for _ in range(k):
            if pend:
                for l in pend.pop(0): A.i(l)
        if ks==1:
            while pend:
                for l in pend.pop(0): A.i(l)
    stamp(A,2,prof)
    epilogue(A,nt,prof,name)

def epilogue(A,nt,prof,name):
    A.i("s_nop 7")
    for tt in range(nt):
        for r in range(4):
            a=ACCA+tt*4+r; b=ACCB+tt*4+r
            A.i(f"v_sub_f32 v{a}, v{a}, v{b}")
            A.i(f"v_fma_f32 v{a}, v{G+tt}, v{a}, v{b}")
        A.i(f"v_cvt_pk_bf16_f32 v{PK+2*tt}, v{ACCA+tt*4}, v{ACCA+tt*4+1}")
        A.i(f"v_cvt_pk_bf16_f32 v{PK+2*tt+1}, v{ACCA+tt*4+2}, v{ACCA+tt*4+3}")
        A.i(f"buffer_store_dwordx2 {vr(PK+2*tt,2)}, v{T3}, s[32:35], 0 offen {OUT_MOD}")
        if tt<nt-1: A.i(f"v_add_u32 v{T3}, {16*1152}, v{T3}")
    if prof: A.i("s_waitcnt vmcnt(0)")
    stamp(A,3,prof)
    stamp_store(A,5,prof,name,0x80000)
    A.i("s_endpgm")

OMG=98
def epilogue2(A,nt,prof,name):
    A.i("s_nop 7")
    for tt in range(nt):
        for r in range(4):
            a=ACCA+tt*4+r; b=ACCB+tt*4+r
            A.i(f"v_fma_f32 v{a}, v{OMG+tt}, v{b}, v{a}")
        A.i(f"v_cvt_pk_bf16_f32 v{PK+2*tt}, v{ACCA+tt*4}, v{ACCA+tt*4+1}")
        A.i(f"v_cvt_pk_bf16_f32 v{PK+2*tt+1}, v{ACCA+tt*4+2}, v{ACCA+tt*4+3}")
        A.i(f"buffer_store_dwordx2 {vr(PK+2*tt,2)}, v{T3}, s[32:35], 0 offen {OUT_MOD}")
        if tt<nt-1: A.i(f"v_add_u32 v{T3}, {16*1152}, v{T3}")
    if prof: A.i("s_waitcnt vmcnt(0)")
    stamp(A,3,prof)
    stamp_store(A,5,prof,name,0x80000)
    if HPROF: hprof(A,name)
    A.i("s_endpgm")

HPROF=0
ST4=0
HPROBE=-1
_hp=[0]
def hprof(A,name):
    _hp[0]+=1; L=f"{name}_hp{_hp[0]}"
    A.i("s_or_b32 s6, s2, s70")
    A.i("s_cmp_lg_u32 s6, 0")
    A.i(f"s_cbranch_scc1 {L}")
    A.i("s_load_dwordx2 s[66:67], s[0:1], 64")
    A.i("s_waitcnt lgkmcnt(0)")
    if HPROF>1:
        A.i(f"s_sub_u32 s66, s66, {512*(HPROF-1)}")
        A.i("s_subb_u32 s67, s67, 0")
    A.i(f"v_and_b32 v1, 63, v0")
    A.i("v_mov_b32 v40, 0")
    res=[]
    for k,(base,n,ns) in enumerate(((0,224,4),(0x40000,256,6))):
        A.i(f"s_add_u32 s64, s20, {WS_PROF+base}")
        A.i("s_addc_u32 s65, s21, 0")
        for r in range(4):
            A.i(f"v_add_u32 v2, {64*r}, v1")
            A.i(f"v_min_u32 v2, {n-1}, v2")
            A.i("v_lshlrev_b32 v2, 10, v2")
            A.i(f"global_load_dwordx2 v[{4+2*r}:{5+2*r}], v2, s[64:65] offset:56")
        A.i("v_mov_b32 v2, 8192")
        A.i("global_load_dwordx4 v[16:19], v2, s[64:65] offset:0")
        A.i("global_load_dwordx4 v[20:23], v2, s[64:65] offset:16")
        A.i("global_load_dwordx2 v[24:25], v2, s[64:65] offset:56")
        A.i("s_waitcnt vmcnt(0)")
        for r in range(4):
            A.i(f"v_sub_u32 v{4+2*r}, s58, v{4+2*r}")
            A.i(f"v_sub_u32 v{5+2*r}, s58, v{5+2*r}")
        for r in range(1,4):
            A.i(f"v_max_u32 v4, v4, v{4+2*r}")
            A.i(f"v_min_u32 v5, v5, v{5+2*r}")
        a,b=(72,73) if k==0 else (74,75)
        A.i(f"s_mov_b32 s{a}, 0"); A.i(f"s_mov_b32 s{b}, -1")
        A.i("s_nop 4")
        for l in range(64):
            A.i(f"v_readlane_b32 s6, v4, {l}")
            A.i(f"v_readlane_b32 s7, v5, {l}")
            A.i(f"s_max_u32 s{a}, s{a}, s6")
            A.i(f"s_min_u32 s{b}, s{b}, s7")
        if k==1:
            A.i("s_mov_b32 s77, 0")
            A.i("v_and_b32 v2, 7, v1")
            A.i("v_lshlrev_b32 v2, 10, v2")
            A.i("global_load_dword v30, v2, s[64:65] offset:52")
            for r in range(4):
                A.i(f"v_add_u32 v2, {64*r}, v1")
                A.i("v_lshlrev_b32 v2, 10, v2")
                A.i(f"global_load_dword v{31+r}, v2, s[64:65] offset:52")
            A.i("s_waitcnt vmcnt(0)")
            for r in range(4):
                A.i(f"v_cmp_eq_u32 vcc, v30, v{31+r}")
                A.i("s_bcnt1_i32_b64 s6, vcc")
                A.i("s_add_u32 s77, s77, s6")
            A.i("s_mov_b32 s81, 0")
            for l in range(8):
                A.i(f"v_readlane_b32 s6, v30, {l}")
                A.i(f"s_lshl_b32 s6, s6, {4*l}")
                A.i("s_or_b32 s81, s81, s6")
        o=5 if k==0 else 9
        for q in range(ns-1):
            A.i(f"v_sub_u32 v3, v{17+q}, v{16+q}")
            if o+q<=13 and not (k==1 and q==4):
                A.i(f"global_store_dword v40, v3, s[66:67] offset:{4*(o+q)}")
        A.i("v_sub_u32 v3, v25, v24")
        A.i(f"global_store_dword v40, v3, s[66:67] offset:{4*(8 if k==0 else 13)}")
    def out(i,expr):
        for e in expr: A.i(e)
        A.i("v_mov_b32 v3, s6")
        A.i(f"global_store_dword v40, v3, s[66:67] offset:{4*i}")
    out(0,["s_sub_u32 s6, s72, s73"])
    out(1,["s_sub_u32 s6, s73, s74"])
    out(2,["s_sub_u32 s6, s74, s75"])
    out(3,["s_mov_b32 s6, s75"])
    out(4,["s_sub_u32 s6, s60, s58"])
    if HPROBE>=0:
        e=[["s_sub_u32 s6, s72, s73"],["s_sub_u32 s6, s73, s74"],["s_sub_u32 s6, s74, s75"],["s_mov_b32 s6, s75"],["s_mov_b32 s6, 300"],["s_mov_b32 s6, s77"]][HPROBE]
        for l in e: A.i(l)
        A.i("s_min_u32 s6, s6, 2500")
        A.i("s_lshl_b32 s76, s6, 2")
        A.i("s_memrealtime s[78:79]")
        A.i("s_waitcnt lgkmcnt(0)")
        A.i("s_add_u32 s76, s76, s78")
        A.label(L+"_spin")
        A.i("s_memrealtime s[78:79]")
        A.i("s_waitcnt lgkmcnt(0)")
        A.i("s_sub_u32 s6, s76, s78")
        A.i("s_cmp_gt_i32 s6, 0")
        A.i(f"s_cbranch_scc1 {L}_spin")
    out(14,["s_sub_u32 s6, s42, s40"])
    out(15,["s_sub_u32 s6, s46, s40"])
    out(11,["s_mov_b32 s6, s77"])
    out(10,["s_mov_b32 s6, s81"])
    A.i("s_waitcnt vmcnt(0)")
    A.label(L)

def body(A,tg,prof,name):
    if AG: return body_b(A,tg,prof,name)
    if PIPE: return body2(A,tg,prof,name)
    nt=3 if tg==0 else 2
    n=5 if tg==0 else 4
    for sc in range(3):
        for g in dma_list(sc,tg):
            for l in g: A.i(l)
    if tg==0: stamp(A,4,prof)
    else: stamp(A,4,prof)
    step=0
    for sc in range(9):
        rem=min(2,8-sc)
        A.i(f"s_waitcnt vmcnt({n*rem})")
        A.i("s_barrier")
        if sc==0: stamp(A,1,prof)
        pend = dma_list(sc+3,tg) if sc+3<9 else []
        if sc>0:
            d = STG if sc%4!=0 else -3*STG
            for r in (XA,XA+1,WA):
                if d>0: A.i(f"v_add_u32 v{r}, {d}, v{r}")
                else: A.i(f"v_subrev_u32 v{r}, {-d}, v{r}")
        for l in reads(0,step&1,nt): A.i(l)
        for ks in range(4):
            buf=step&1
            hh=2*sc+(ks>>1)
            acc=ACCA if hh<9 else ACCB
            first = (hh%9==0 and (ks&1)==0)
            if ks<3:
                for l in reads(ks+1,buf^1,nt): A.i(l)
                A.i(f"s_waitcnt lgkmcnt({2+nt})")
            else:
                A.i("s_waitcnt lgkmcnt(0)")
            for tt in range(nt):
                d=acc+tt*4
                c="0" if first else vr(d,4)
                A.i(f"v_mfma_f32_16x16x32_bf16 {vr(d,4)}, {vr(WF+buf*4,4)}, {vr(XF+buf*12+tt*4,4)}, {c}")
            for _ in range(2):
                if pend:
                    for l in pend.pop(0): A.i(l)
            step+=1
        assert not pend
    stamp(A,2,prof)
    A.i("s_nop 7")
    for tt in range(nt):
        for r in range(4):
            a=ACCA+tt*4+r; b=ACCB+tt*4+r
            A.i(f"v_sub_f32 v{a}, v{a}, v{b}")
            A.i(f"v_fma_f32 v{a}, v{G+tt}, v{a}, v{b}")
        A.i(f"v_cvt_pk_bf16_f32 v{PK+2*tt}, v{ACCA+tt*4}, v{ACCA+tt*4+1}")
        A.i(f"v_cvt_pk_bf16_f32 v{PK+2*tt+1}, v{ACCA+tt*4+2}, v{ACCA+tt*4+3}")
        A.i(f"buffer_store_dwordx2 {vr(PK+2*tt,2)}, v{T3}, s[32:35], 0 offen {OUT_MOD}")
        if tt<nt-1: A.i(f"v_add_u32 v{T3}, {16*1152}, v{T3}")
    if prof: A.i("s_waitcnt vmcnt(0)")
    stamp(A,3,prof)
    stamp_store(A,5,prof,name,0x80000)
    A.i("s_endpgm")

def extra_loads(A):
    for tt in range(3):
        A.i(f"buffer_load_dword v{G+tt}, v{T1}, s[8:11], 0 offen offset:{64*tt}")
    if AG:
        A.i("s_lshr_b32 s37, s3, 4")
        A.i("s_lshr_b32 s7, s5, 2")
        A.i("s_mul_i32 s7, s7, 3")
        A.i("s_add_u32 s37, s37, s7")
        A.i("s_lshl_b32 s38, s4, 2")
        A.i("s_and_b32 s7, s5, 3")
        A.i("s_add_u32 s38, s38, s7")
        A.i("s_mul_i32 s39, s37, 36")
        A.i("s_add_u32 s39, s39, s38")
        A.i("s_lshl_b32 s39, s39, 9")
        A.i(f"s_add_u32 s39, s39, {WS_AT}")
        A.i(f"v_lshlrev_b32 v{T0}, 3, v{V_LANE}")
        for tt in range(3):
            A.i(f"buffer_load_dwordx2 {vr(AR+2*tt,2)}, v{T0}, s[8:11], s39 offen")
            if tt<2: A.i(f"s_add_u32 s39, s39, {36*512}")
        A.i("s_lshr_b32 s7, s3, 5")
        A.i(f"v_lshrrev_b32 v{T0}, 1, v{V_LANE}")
        A.i(f"v_min_u32 v{T0}, 2, v{T0}")
        A.i(f"v_add_u32 v{T0}, s7, v{T0}")
        A.i(f"v_min_u32 v{T0}, 63, v{T0}")
        A.i("s_lshl_b32 s7, s4, 2")
        A.i("s_mul_i32 s7, s7, 21846")
        A.i("s_lshr_b32 s7, s7, 16")
        A.i(f"v_and_b32 v{T1}, 1, v{V_LANE}")
        A.i(f"v_add_u32 v{T1}, s7, v{T1}")
        A.i(f"v_lshl_add_u32 v{T0}, v{T0}, 4, v{T1}")
        A.i(f"v_lshlrev_b32 v{T0}, 2, v{T0}")
        A.i(f"s_mov_b32 s39, {WS_FLAG+0x1000}")
        A.i(f"buffer_load_dword v{FL}, v{T0}, s[8:11], s39 offen")

LATE=0
def late_setup(A):
    A.i(f"v_and_b32 v{T0}, 15, v{V_LANE}")
    A.i(f"v_lshrrev_b32 v{T1}, 4, v{V_LANE}")
    A.i(f"v_bfe_u32 v{T2}, v{V_LANE}, 1, 3")
    A.i(f"v_xor_b32 v{T2}, v{T1}, v{T2}")
    A.i(f"v_lshlrev_b32 v{T2}, 4, v{T2}")
    A.i(f"v_lshl_add_u32 v{T2}, v{T0}, 7, v{T2}")
    A.i("s_lshr_b32 s7, s5, 2")
    A.i(f"s_mul_i32 s31, s7, {3*2048}")
    A.i(f"v_add_u32 v{XA}, s31, v{T2}")
    A.i(f"v_xor_b32 v{XA+1}, 64, v{XA}")
    A.i(f"v_bfe_u32 v{T2}, v{V_LANE}, 2, 2")
    A.i(f"v_lshl_add_u32 v{T3}, v{T1}, 3, v{T2}")
    A.i(f"v_lshlrev_b32 v{T3}, 7, v{T3}")
    A.i(f"v_lshrrev_b32 v{T2}, 1, v{T2}")
    A.i(f"v_and_b32 v{T1}, 1, v{T1}")
    A.i(f"v_lshl_or_b32 v{T2}, v{T1}, 1, v{T2}")
    A.i(f"v_xor_b32 v{T2}, s6, v{T2}")
    A.i(f"v_lshl_add_u32 v{T3}, v{T2}, 5, v{T3}")
    A.i(f"v_and_b32 v{T1}, 3, v{V_LANE}")
    A.i(f"v_lshl_add_u32 v{WA}, v{T1}, 3, v{T3}")
    A.i("s_mul_i32 s31, s7, 48")
    A.i("s_add_u32 s31, s31, s3")
    A.i(f"v_add_u32 v{T0}, s31, v{T0}")
    A.i(f"v_lshlrev_b32 v{T1}, 2, v{T0}")
    A.i(f"v_add_u32 v{T1}, {WS_G}, v{T1}")
    A.i(f"v_mul_u32_u24 v{T3}, 1152, v{T0}")
    A.i(f"v_lshrrev_b32 v{T2}, 4, v{V_LANE}")
    A.i(f"v_lshl_add_u32 v{T3}, v{T2}, 3, v{T3}")
    A.i("s_lshl_b32 s31, s4, 7")
    A.i("s_lshl_b32 s36, s6, 5")
    A.i("s_add_u32 s31, s31, s36")
    A.i(f"v_add_u32 v{T3}, s31, v{T3}")

def gen_k3(A,name="k3_out_kernel",prof=False):
    kernel_header(A,name)
    A.i("s_cmp_ge_u32 s2, 240")
    A.i(f"s_cbranch_scc1 {name}_end")
    A.i(f"s_load_dwordx2 s[20:21], s[0:1], {KA_WS}")
    A.i(f"s_load_dwordx2 s[12:13], s[0:1], {KA_AWO}")
    A.i(f"s_load_dwordx2 s[16:17], s[0:1], {KA_BWO}")
    A.i(f"s_load_dwordx2 s[32:33], s[0:1], {KA_OUT}")
    if prof: A.i("s_memrealtime s[58:59]")
    stamp(A,0,prof)
    if ST4==1: stamp(A,4,prof)
    A.i(f"v_and_b32 v{V_LANE}, 63, v0")
    A.i(f"v_lshrrev_b32 v{T0}, 6, v0")
    A.i("s_and_b32 s6, s2, 7")
    A.i(f"v_readfirstlane_b32 s5, v{T0}")
    A.i("s_mul_i32 s6, s6, 30")
    A.i("s_lshr_b32 s7, s2, 3")
    A.i("s_add_u32 s6, s6, s7")
    A.i("s_mov_b32 s70, s5")
    A.i("s_cmp_ge_u32 s6, 234")
    A.i(f"s_cbranch_scc1 {name}_end")
    A.i("s_mul_i32 s3, s6, 7282")
    A.i("s_lshr_b32 s3, s3, 16")
    A.i("s_mul_i32 s7, s3, 9")
    A.i("s_sub_u32 s4, s6, s7")
    A.i("s_mul_i32 s3, s3, 80")
    A.i(f"v_lshrrev_b32 v{T0}, 3, v{V_LANE}")
    A.i(f"v_mul_u32_u24 v{T0}, 1152, v{T0}")
    A.i(f"v_and_b32 v{T1}, 7, v{V_LANE}")
    A.i(f"v_lshrrev_b32 v{T2}, 4, v{V_LANE}")
    A.i(f"v_xor_b32 v{T3}, v{T1}, v{T2}")
    A.i(f"v_lshl_add_u32 v{DX}, v{T3}, 4, v{T0}")
    A.i("s_and_b32 s6, s5, 1")
    A.i("s_lshl_b32 s6, s6, 6")
    A.i(f"v_xor_b32 v{DX}, s6, v{DX}")
    A.i(f"v_and_b32 v{T2}, 1, v{T2}")
    A.i(f"v_lshlrev_b32 v{T2}, 1, v{T2}")
    A.i(f"v_xor_b32 v{T3}, v{T1}, v{T2}")
    A.i(f"v_lshl_add_u32 v{DWE}, v{T3}, 4, v{T0}")
    A.i(f"v_xor_b32 v{DWO}, 64, v{DWE}")
    A.i("s_and_b32 s6, s5, 3")
    A.i(f"s_mul_i32 s23, s6, {16*1152}")
    A.i("s_lshl_b32 s7, s4, 7")
    A.i("s_add_u32 s23, s23, s7")
    A.i("s_lshl_b32 s25, s5, 11")
    A.i(f"s_add_u32 s25, s25, {WOFF}")
    A.i("s_lshl_b32 s7, s6, 3")
    A.i("s_add_u32 s7, s7, s3")
    A.i("s_mul_i32 s22, s7, 1152")
    A.i("s_lshl_b32 s24, s6, 10")
    A.i("s_and_b32 s7, s5, 1")
    A.i("s_lshl_b32 s26, s7, 3")
    A.i("s_add_u32 s26, s26, s3")
    A.i("s_add_u32 s26, s26, 64")
    A.i("s_mul_i32 s26, s26, 1152")
    A.i("s_lshl_b32 s27, s7, 10")
    A.i("s_add_u32 s27, s27, 8192")
    A.i("s_lshr_b32 s7, s6, 1")
    A.i("s_mul_i32 s31, s7, 10240")
    A.i("s_add_u32 s27, s27, s31")
    A.i("s_lshl_b32 s28, s7, 7")
    A.i(f"s_mul_i32 s29, s7, {osrc(9)-osrc(8)}")
    if not LATE: late_setup(A)
    A.i("s_waitcnt lgkmcnt(0)")
    A.i("s_mov_b32 s8, s20")
    A.i("s_and_b32 s9, s21, 0xffff")
    A.i("s_mov_b32 s10, 0x2000000")
    A.i("s_mov_b32 s11, 0x20000")
    for d in (12,16):
        A.i(f"s_and_b32 s{d+1}, s{d+1}, 0xffff")
        A.i(f"s_mov_b32 s{d+2}, {576*1152}")
        A.i(f"s_mov_b32 s{d+3}, 0x20000")
    A.i("s_and_b32 s33, s33, 0xffff")
    A.i(f"s_mov_b32 s34, {2048*1152}")
    A.i("s_mov_b32 s35, 0x20000")
    if not (AG and XL): extra_loads(A)
    A.i("s_cmp_ge_u32 s5, 4")
    A.i(f"s_cbranch_scc1 {name}_tg1")
    body(A,0,prof,name)
    A.label(f"{name}_tg1")
    body(A,1,prof,name)
    A.label(f"{name}_end")
    A.i("s_endpgm")
    kernel_footer(A,name,NV)
```

```python
import itertools
def classify(G):
    p,r9=divmod(G,9)
    if r9==4: return ('R',p,None)
    odd=1 if r9>4 else 0
    return ('M',2*p+odd,r9-5*odd)
def plan(m):
    info=[classify(16*m+a) for a in range(16)]
    gran=[(a,a+1) for a in range(15) if info[a][0]=='M' and info[a][2]%2==0]
    ing=set(x for g in gran for x in g)
    singles=[a for a in range(16) if a not in ing]
    best=None
    for bits in itertools.product((0,1),repeat=8):
        T=list(bits)+[1-b for b in bits]
        if any(T[a]!=T[b] for a,b in gran): continue
        ns=[sum(1 for s in singles if T[s]==ct) for ct in range(2)]
        if ns[0]%2 or ns[1]%2: continue
        cost=sum((n//2+1)//2 for n in ns)
        if best is None or cost<best[0]: best=(cost,T)
    assert best is not None,m
    T=best[1]
    tab=[[None]*8 for _ in range(2)]
    slots={}
    for ct in range(2):
        items=[('G',g) for g in gran if T[g[0]]==ct]
        ss=[s for s in singles if T[s]==ct]
        ss.sort(key=lambda a:(info[a][0],a))
        n=len(ss)//2
        sitems=[]
        if n==1: sitems=[('S',(ss[0],ss[1]))]
        elif n==2: sitems=[('S',(ss[0],ss[2])),('S',(ss[1],ss[3]))]
        items=items+sitems
        assert len(items)==4,(m,ct,items)
        pos=[(0,0),(0,1),(1,0),(1,1)]
        for (gp,h),it in zip(pos,items):
            slots[(ct,gp,h)]=it
            tab[ct][4*gp+h]=it[1][0]; tab[ct][4*gp+2+h]=it[1][1]
    for ct in range(2): assert sorted(x&7 for x in tab[ct])==list(range(8))
    return info,tab,slots
if __name__=='__main__':
    for m in range(9):
        info,tab,slots=plan(m)
        print(m,tab,{k:v for k,v in slots.items() if v[0]=='S'},[ (a,info[a]) for k,v in slots.items() if v[0]=='S' for a in v[1]])
```

```python
import itertools
from qkperm import classify
def pairings(s):
    if not s: yield []; return
    a=s[0]
    for k in range(1,len(s)):
        b=s[k]; rest=s[1:k]+s[k+1:]
        for r in pairings(rest):
            yield [(a,b)]+r
            yield [(b,a)]+r
def cost_s(info,it):
    return sum(1 if info[a][0]=='M' else 2 for a in it[1])
def plan64(G0):
    info=[classify(G0+a) for a in range(16)]
    gran=[(a,a+1) for a in range(15) if info[a][0]=='M' and info[a][2]%2==0 and info[a+1][0]=='M']
    ing=set(x for g in gran for x in g)
    singles=[a for a in range(16) if a not in ing]
    best=None
    for pr in pairings(singles):
        items=[('G',g) for g in gran]+[('S',s) for s in pr]
        assert len(items)==8
        for sub in itertools.combinations(range(8),4):
            grp=[[items[i] for i in sub],[items[i] for i in range(8) if i not in sub]]
            ok=True; cost=0
            for g in grp:
                if sum(1 for it in g if it[0]=='S')>2: ok=False
                for j in range(2):
                    if sorted(it[1][j]&3 for it in g)!=[0,1,2,3]: ok=False
                    kinds=set(info[it[1][j]][0] for it in g if it[0]=='S')
                    cost+=(1 if 'M' in kinds else 0)+(2 if 'R' in kinds else 0)
            if ok and (best is None or cost<best[0]): best=(cost,grp)
    assert best is not None,G0
    cost,grp=best
    tab=[[None]*4 for _ in range(4)]; slots={}
    for p in range(2):
        for c,it in enumerate(grp[p]):
            slots[(p,c)]=it
            tab[2*p][c]=it[1][0]; tab[2*p+1][c]=it[1][1]
    return info,tab,slots,[]
def plan48(G0):
    info=[classify(G0+a) for a in range(12)]
    allg=[(a,a+1) for a in range(11) if info[a][0]=='M' and info[a][2]%2==0 and info[a+1][0]=='M']
    best=None
    for T in itertools.combinations(range(12),4):
        if sorted(a&3 for a in T)!=[0,1,2,3]: continue
        R=[a for a in range(12) if a not in T]
        gran=[g for g in allg if g[0] in R and g[1] in R]
        for ng in range(len(gran),1,-1):
            for gs in itertools.combinations(gran,ng):
                ing=set(x for g in gs for x in g)
                ss=[a for a in R if a not in ing]
                if len(ss)>4: continue
                for pr in pairings(ss):
                    items=[('G',g) for g in gs]+[('S',s) for s in pr]
                    if len(items)!=4: continue
                    ok=all(sorted(it[1][j]&3 for it in items)==[0,1,2,3] for j in range(2))
                    if not ok: continue
                    cost=sum(cost_s(info,it) for it in items if it[0]=='S')+sum(1 if info[a][0]=='M' else 2 for a in T)
                    if best is None or cost<best[0]: best=(cost,items,T)
    assert best is not None,G0
    cost,items,T=best
    tab=[[None]*4 for _ in range(4)]; slots={}
    for c,it in enumerate(items):
        slots[(0,c)]=it; tab[0][c]=it[1][0]; tab[1][c]=it[1][1]
    tab[2]=list(T); tab[3]=[12,13,14,15]
    return info,tab,slots,[(2,c,info[a]) for c,a in enumerate(T)]
def plan(i,wc):
    return plan64(28*i) if wc==0 else plan48(28*i+16)
if __name__=='__main__':
    for i in range(5):
        for wc in range(2):
            info,tab,slots,extra=plan(i,wc)
            S=[(k,[(a,info[a]) for a in v[1]]) for k,v in slots.items() if v[0]=='S']
            n=sum(1 if info[a][0]=='M' else 2 for k,v in slots.items() if v[0]=='S' for a in v[1])+sum(1 if e[2][0]=='M' else 2 for e in extra)
            print(i,wc,'single stores',n,tab,S,extra)
```

```python
import itertools
from qkperm import classify
def plan(m):
    info=[classify(16*m+a) for a in range(16)]
    gran=[(a,a+1) for a in range(15) if info[a][0]=='M' and info[a][2]%2==0 and info[a+1][0]=='M']
    ing=set(x for g in gran for x in g)
    singles=[a for a in range(16) if a not in ing]
    best=None
    def pairings(s):
        if not s: yield []; return
        a=s[0]
        for k in range(1,len(s)):
            b=s[k]; rest=s[1:k]+s[k+1:]
            for r in pairings(rest):
                yield [(a,b)]+r
                yield [(b,a)]+r
    for pr in pairings(singles):
        items=[('G',g) for g in gran]+[('S',s) for s in pr]
        assert len(items)==8
        for sub in itertools.combinations(range(8),4):
            grp=[[items[i] for i in sub],[items[i] for i in range(8) if i not in sub]]
            ok=True; cost=0
            for g in grp:
                for j in range(2):
                    if sorted(it[1][j]&3 for it in g)!=[0,1,2,3]: ok=False
                    kinds=set(info[it[1][j]][0] for it in g if it[0]=='S')
                    cost+=(1 if 'M' in kinds else 0)+(2 if 'R' in kinds else 0)
            if ok and (best is None or cost<best[0]): best=(cost,grp)
    assert best is not None,m
    cost,grp=best
    tab=[[None]*4 for _ in range(4)]; slots={}
    for p in range(2):
        for c,it in enumerate(grp[p]):
            slots[(p,c)]=it
            tab[2*p][c]=it[1][0]; tab[2*p+1][c]=it[1][1]
    return info,tab,slots,cost
if __name__=='__main__':
    for m in range(9):
        info,tab,slots,cost=plan(m)
        print(m,'cost',cost,tab,[(k,[(a,info[a]) for a in v[1]]) for k,v in slots.items() if v[0]=='S'])
```

```python
import sys, importlib, aligner
from asmlib import *
from build import *
prof='prof' in sys.argv
for a in sys.argv[1:]:
    if a=='prof': continue
    tag,_,o=a.partition(':')
    import k1,k2,k3,k1r
    for m in (k2,k1,k3,k1r): importlib.reload(m)
    k1.NPRE=6; k2.OPT['order']=5; k2.OPT['vclamp']=2; k2.OPT['pfwo']=1
    for kv in o.split(','):
        if not kv: continue
        k,_,v=kv.partition('=')
        if k=='noalign': continue
        mod,_,attr=k.partition('.')
        M={'k1':k1,'k2':k2,'k3':k3,'k1r':k1r}[mod]
        try: val=int(v)
        except: val=eval(v.replace(';',',')) if v.startswith('[') else v.replace('+',' ')
        if attr.startswith('OPT_'): M.OPT[attr[4:]]=val
        else: setattr(M,attr,val)
    ALIGN=0 if 'noalign' in o else 1
    A=Asm()
    fuse=k2.OPT.get('fuse')
    if k1.MONO:
        nm="gated_mix_kernel"
        k2.OPT['mono']=nm
        k1.gen_k1(A,name=nm,prof=prof); k2.gen_k2(A,prof=prof)
        k1.LAUNCH=[(nm,256,512,163840)]; k2.LAUNCH=[]
    else:
        k1.gen_k1(A,prof=prof); k2.gen_k2(A,prof=prof)
    if not fuse: k3.gen_k3(A,prof=prof)
    L=(k1.LAUNCH or [("k1_qkv_kernel",256,512,147456)])+getattr(k2,'LAUNCH',[("k2_attn_kernel",256,512,163840)])+([] if fuse else getattr(k3,'LAUNCH',[("k3_out_kernel",240,512,147456)]))
    body=A.text()
    if ALIGN:
        o,a,b=aligner.align(body.split('\n')); body='\n'.join(o); print('aligned: promoted',a,'nops',b)
    txt=header(L)+body
    out=tag+('_p' if prof else '')
    open(out+'.s','w').write(txt)
    assemble(txt,out,[l[0] for l in L])
```

```python
from asmlib import *
from k2 import stamp, stamp_store
import struct
C_SCALE=18**-0.5*1.4426950408889634
def f32bits(x): return struct.unpack('<I',struct.pack('<f',x))[0]

V_LANE=1; XA=2; WA=6; DXE=8; DXO=9; DW=10; T0=11; T1=12; T2=13; T3=14; T4=15
XF=16
WF=32
EA=48
ACC=64
NV=128
STAGE=49152; WOFF=32768
NPRE=0
PF=0
FAKE=0
W_MOD=''
X_MOD=''
PF2=0
PF0=2
QK_MOD=''
TMOD=None
WOT_MOD=''
WOTB=0
DAF=0
MIX=0
MONO=0
FLV=170
W64=0
DAF_MOD='sc1'
NZ=40
VA_MOD=None
V_MOD=''

def csel(A,d,a,b):
    A.i(f"s_mov_b32 s{d}, {b}")
    A.i(f"s_cselect_b32 s{d}, {a}, s{d}")

M16=0
_par=[0]
def mfma(A,d,a,b,first=False):
    if M16:
        for q in range(2):
            dd=d+8*((_par[0]>>2)&1)+4*q
            A.i(f"v_mfma_f32_16x16x32_bf16 {vr(dd,4)}, {vr(a,4)}, {vr(b,4)}, {vr(dd,4)}")
        _par[0]+=1
        return
    c = "0" if first else vr(d,16)
    A.i(f"v_mfma_f32_32x32x16_bf16 {vr(d,16)}, {vr(a,4)}, {vr(b,4)}, {c}")

def dma_list(c):
    sb=(c%3)*STAGE
    L=[]
    for i in range(2):
        L.append([f"s_add_u32 s30, s23, {(c*64+4*i)*3456}",f"s_add_u32 m0, s25, {sb+i*1024}","s_nop 0",
                  f"buffer_load_dwordx4 v{DW}, s[12:15], s30 offen {W_MOD} lds"])
    for i in range(4):
        L.append([f"s_add_u32 s30, s22, {8*i*1152+c*128}",f"s_add_u32 m0, s24, {sb+i*1024}","s_nop 0",
                  f"buffer_load_dwordx4 v{DXO if i&1 else DXE}, s[8:11], s30 offen {X_MOD} lds"])
    return L
def dma_chunk(A,c):
    for g in dma_list(c):
        for l in g: A.i(l)

def reads(ks,buf):
    r=[]
    for tt in range(2):
        r.append(f"ds_read_b128 {vr(XF+buf*8+tt*4,4)}, v{XA+ks} offset:{tt*4096}")
    for ct in range(2):
        for u in range(2):
            r.append(f"ds_read_b64_tr_b16 {vr(WF+buf*8+ct*4+2*u,2)}, v{WA+ct} offset:{ks*4096+u*1024}")
    return r

RPOS=[0,1,2,3,4,5,6,7,8,9,10,11]
DPOS=[4,9,14]
def mainloop16(A,vtype,prof):
    XB=[16,24,128,136]; WB=[32,40,144,152]
    def rds(s2,par):
        r=[]
        for h in range(2):
            ks=2*s2+h; b=2*par+h
            for tt in range(2):
                r.append(f"ds_read_b128 {vr(XB[b]+tt*4,4)}, v{XA+ks} offset:{tt*4096}")
            for ct in range(2):
                for u in range(2):
                    r.append(f"ds_read_b64_tr_b16 {vr(WB[b]+ct*4+2*u,2)}, v{WA+ct} offset:{ks*4096+u*1024}")
        return r
    for l in rds(0,0): A.i(l)
    pend=dma_list(1)[NPRE:]+dma_list(2)
    step=0
    for c in range(9):
        for s2 in range(2):
            par=step&1
            last=(c==8 and s2==1)
            A.i("s_waitcnt lgkmcnt(0)")
            if s2==1 and c<8:
                while pend:
                    for l in pend.pop(0): A.i(l)
                A.i(f"s_waitcnt vmcnt({6 if c<7 else 0})")
                A.i("s_barrier")
                if c+3<9: pend=dma_list(c+3)
                d = STAGE if (c+1)%3!=0 else -2*STAGE
                for r in list(range(XA,XA+4))+[WA,WA+1]:
                    if d>0: A.i(f"v_add_u32 v{r}, {d}, v{r}")
                    else: A.i(f"v_subrev_u32 v{r}, {-d}, v{r}")
            rd=[] if last else rds((s2+1)%2,par^1)
            n=0
            for i in range(4):
                for j in range(4):
                    jj=j if i%2==0 else 3-j
                    xf=XB[2*par+(i>>1)]+4*(i&1); wf=WB[2*par+(jj>>1)]+4*(jj&1)
                    d=ACC+(i*4+jj)*4
                    a,b=(xf,wf) if vtype else (wf,xf)
                    A.i(f"v_mfma_f32_16x16x32_bf16 {vr(d,4)}, {vr(a,4)}, {vr(b,4)}, {vr(d,4) if step else 0}")
                    for q,p in enumerate(RPOS):
                        if p==n and rd: A.i(rd[q])
                    if pend and (n in DPOS or (c==0 and n in (2,7,12))):
                        for l in pend.pop(0): A.i(l)
                    n+=1
            step+=1

def mainloop(A,vtype,prof):
    if M16==4: return mainloop16(A,vtype,prof)
    for l in reads(0,0): A.i(l)
    step=0
    pend=dma_list(1)[NPRE:]+dma_list(2)
    for c in range(9):
        for ks in range(4):
            buf=step&1
            last = (c==8 and ks==3)
            A.i("s_waitcnt lgkmcnt(0)")
            if ks==3 and c<8:
                assert not pend
                A.i(f"s_waitcnt vmcnt({6 if c<7 else 0})")
                A.i("s_barrier")
                if c+3<9: pend=dma_list(c+3)
                d = STAGE if (c+1)%3!=0 else -2*STAGE
                for r in list(range(XA,XA+4))+[WA,WA+1]:
                    if d>0: A.i(f"v_add_u32 v{r}, {d}, v{r}")
                    else: A.i(f"v_subrev_u32 v{r}, {-d}, v{r}")
            rd = [] if last else reads((ks+1)%4,buf^1)
            k=0
            if M16>=2:
                n=0
                for rep in range(2):
                    order=[(0,0),(0,1),(1,1),(1,0)] if M16==3 else [(0,0),(0,1),(1,0),(1,1)]
                    for tt,ct in order:
                        d=ACC+(tt*2+ct)*16+8*(step&1)+4*rep
                        xf=XF+buf*8+tt*4; wf=WF+buf*8+ct*4
                        a,b=(xf,wf) if vtype else (wf,xf)
                        A.i(f"v_mfma_f32_16x16x32_bf16 {vr(d,4)}, {vr(a,4)}, {vr(b,4)}, {vr(d,4)}")
                        if n<6 and rd: A.i(rd[n])
                        if pend and (n in (3,7) or (c==0 and n in (1,5))):
                            for l in pend.pop(0): A.i(l)
                        n+=1
                step+=1
                continue
            for tt in range(2):
                for ct in range(2):
                    d=ACC+(tt*2+ct)*16
                    xf=XF+buf*8+tt*4; wf=WF+buf*8+ct*4
                    if vtype: mfma(A,d,xf,wf,step==0)
                    else: mfma(A,d,wf,xf,step==0)
                    for l in rd[k:k+2]: A.i(l)
                    k+=2
                    if pend and ((tt*2+ct) in (1,3) or c==0):
                        for l in pend.pop(0): A.i(l)
            step+=1


DENSE=1
SM_MOD=''
SR_MOD=''
import qkperm
OOB=0x7fff0000
def qk_scalars(A):
    A.i("s_lshl_b32 s6, s4, 7")
    A.i(f"s_lshl_b32 s7, s{97 if MIX else 29}, 6")
    A.i("s_add_u32 s6, s6, s7")
    A.i("s_cmp_ge_u32 s6, 576")
    A.i("s_cselect_b32 s7, 576, 0")
    A.i("s_sub_u32 s6, s6, s7")
    A.i("s_lshr_b32 s32, s6, 2")
    A.i("s_cmp_eq_u32 s7, 576")
    csel(A,33,WS_KVA,WS_QA)
    csel(A,38,WS_KVB,WS_QB)
    csel(A,34,KV_HEAD,64*QT_B)
    csel(A,35,TILE_B,QT_B)
    csel(A,36,OFF_KR,1024)
    A.i(f"s_cselect_b32 s37, 1.0, {f32bits(C_SCALE)}")
    A.i("s_cselect_b32 s78, 1, 0")
    A.i("s_cmp_eq_u32 s26, 1")
    A.i("s_cselect_b32 s33, s38, s33")
    A.i("s_lshl_b32 s6, s3, 3")
    A.i("s_lshl_b32 s7, s28, 1")
    A.i("s_add_u32 s6, s6, s7")
    A.i("s_mul_i32 s38, s6, s35")
    A.i("s_add_u32 s39, s38, s35")

AMR=EA
ASR=EA+4
def single_list(m):
    info,tab,slots=qkperm.plan(m)
    out=[]
    for ct in range(2):
        for g in range(4):
            gp,j=divmod(g,2)
            byk={}
            for h in range(2):
                it=slots[(ct,gp,h)]
                if it[0]=='S':
                    a=it[1][j]; byk.setdefault(info[a][0],{})[h]=info[a]
            for k,d in byk.items(): out.append((ct,g,k,d))
    return out
def addr_pair(A,dst,base,c):
    for h in range(2):
        r=80+h
        if c[h] is None: A.i(f"s_mov_b32 s{r}, {OOB}")
        else:
            head,const,rem=c[h]
            A.i(f"s_mul_i32 s{r}, s34, {head}")
            A.i(f"s_add_u32 s{r}, s{r}, s33")
            if rem: A.i(f"s_add_u32 s{r}, s{r}, s36")
            if const: A.i(f"s_add_u32 s{r}, s{r}, {const}")
    A.i(f"v_mov_b32 v{T3}, s80")
    A.i(f"v_mov_b32 v{T4}, s81")
    A.i(f"v_cndmask_b32 v{dst}, v{T3}, v{T4}, s[74:75]")
    A.i(f"v_add_u32 v{dst}, v{dst}, v{base}")
def qk_setup(A,name):
    A.i("s_mov_b32 s72, 0x76543210")
    A.i("s_mov_b32 s73, 0xfedcba98")
    A.i("s_cmp_eq_u32 s27, 1")
    A.i(f"s_cbranch_scc1 {name}_setup_done")
    qk_scalars(A)
    A.i("s_lshr_b32 s79, s32, 4")
    A.i("s_add_u32 s76, s38, s34")
    A.i("s_add_u32 s77, s39, s34")
    A.i("s_mov_b32 s74, 0")
    A.i("s_mov_b32 s75, -1")
    A.i(f"v_and_b32 v{T0}, 31, v{V_LANE}")
    A.i(f"v_lshlrev_b32 v{T1}, 4, v{T0}")
    A.i(f"v_lshlrev_b32 v{T2}, 2, v{T0}")
    for m in range(9):
        if m<8:
            A.i(f"s_cmp_lg_u32 s79, {m}")
            A.i(f"s_cbranch_scc1 {name}_setup{m+1}")
        info,tab,slots=qkperm.plan(m)
        for ct in range(2):
            A.i(f"s_mov_b32 s{72+ct}, {hex(sum(tab[ct][q]<<(4*q) for q in range(8)))}")
        for ct in range(2):
            for gp in range(2):
                c=[]
                for h in range(2):
                    it=slots[(ct,gp,h)]
                    if it[0]=='G':
                        _,head,sl=info[it[1][0]]; c.append((head,(sl>>1)*512,False))
                    else: c.append(None)
                addr_pair(A,AMR+2*ct+gp,T1,c)
        for n,(ct,g,k,d) in enumerate(single_list(m)):
            c=[None,None]
            for h,inf in d.items():
                if k=='M': c[h]=(inf[1],(inf[2]>>1)*512+(inf[2]&1)*8,False)
                else: c[h]=(2*inf[1],0,True)
            addr_pair(A,ASR+n,T1 if k=='M' else T2,c)
        A.i(f"s_branch {name}_setup_done")
        if m<8: A.label(f"{name}_setup{m+1}")
    A.label(f"{name}_setup_done")
def qk_epilogue(A,name,prof):
    A.i("s_nop 7")
    A.i("s_cmp_eq_u32 s78, 1")
    A.i(f"s_cbranch_scc1 {name}_noscale")
    A.i("s_mov_b32 s36, s37")
    for r in range(0,64,2): A.i(f"v_pk_mul_f32 {vr(ACC+r,2)}, {vr(ACC+r,2)}, s[36:37]")
    A.label(f"{name}_noscale")
    for tt in range(2):
        for ct in range(2):
            b=ACC+(tt*2+ct)*8; a=ACC+(tt*2+ct)*16
            for r in range(8): A.i(f"v_cvt_pk_bf16_f32 v{b+r}, v{a+2*r}, v{a+2*r+1}")
            for gp in range(2):
                A.i(f"buffer_store_dwordx4 {vr(b+4*gp,4)}, v{AMR+2*ct+gp}, s[16:19], s{38+tt} offen {QK_MOD}")
    for m in range(9):
        if m<8:
            A.i(f"s_cmp_lg_u32 s79, {m}")
            A.i(f"s_cbranch_scc1 {name}_epi{m+1}")
        for n,(ct,g,k,d) in enumerate(single_list(m)):
            for tt in range(2):
                b=ACC+(tt*2+ct)*8+2*g
                if k=='M': A.i(f"buffer_store_dwordx2 {vr(b,2)}, v{ASR+n}, s[16:19], s{38+tt} offen {SM_MOD if k=='M' else SR_MOD}")
                else:
                    A.i(f"buffer_store_dword v{b}, v{ASR+n}, s[16:19], s{38+tt} offen {SM_MOD if k=='M' else SR_MOD}")
                    A.i(f"buffer_store_dword v{b+1}, v{ASR+n}, s[16:19], s{76+tt} offen {SM_MOD if k=='M' else SR_MOD}")
        if m<8:
            A.i(f"s_branch {name}_epi_done")
            A.label(f"{name}_epi{m+1}")
    A.label(f"{name}_epi_done")
    if prof: A.i("s_waitcnt vmcnt(0)")
    stamp(A,3,prof)
    stamp_store(A,6,prof,name)
    A.i("s_endpgm")

WBL2=0
_wb=[0]
def wb(A,name):
    if not WBL2: return
    _wb[0]+=1
    if WBL2==1:
        A.i("s_cmp_lg_u32 s5, 7")
        A.i(f"s_cbranch_scc1 {name}_wb{_wb[0]}")
    if WBL2 in (1,2):
        A.i("s_waitcnt vmcnt(0)")
        A.i("buffer_wbl2 sc1")
    A.label(f"{name}_wb{_wb[0]}")

def gen_wot(A,name):
    A.i("s_mov_b64 exec, -1")
    A.i(f"s_load_dwordx2 s[12:13], s[0:1], {KA_AWO}")
    if WOTB: A.i(f"s_load_dwordx2 s[22:23], s[0:1], {KA_BWO}")
    A.i("s_sub_u32 s44, s2, 224")
    A.i("s_lshl_b32 s44, s44, 3")
    A.i("s_add_u32 s44, s44, s5")
    A.i(f"v_lshlrev_b32 v{T4}, 4, v{V_LANE}")
    for r in range(4): A.i(f"v_mov_b32 v{136+r}, 0")
    A.i(f"s_cmp_ge_u32 s44, {NZ if WOTB else 8}")
    A.i(f"s_cbranch_scc1 {name}_nozero")
    A.i("s_lshl_b32 s6, s44, 10")
    A.i(f"s_add_u32 s6, s6, {WS_FLAG}")
    A.i(f"buffer_store_dwordx4 v[136:139], v{T4}, s[16:19], s6 offen{' sc1' if MONO else ''}")
    A.label(f"{name}_nozero")
    A.i(f"v_and_b32 v{T0}, 15, v{V_LANE}")
    if W64:
        A.i(f"v_lshlrev_b32 v150, 1, v{T0}")
        A.i(f"v_lshrrev_b32 v151, 2, v{T0}")
        A.i(f"v_lshlrev_b32 v151, 4, v151")
        A.i(f"v_and_b32 v{T0}, 3, v{T0}")
        A.i(f"v_lshl_add_u32 v151, v{T0}, 1, v151")
        A.i(f"v_mov_b32 v{T0}, 0")
    else:
        A.i(f"v_lshlrev_b32 v{T0}, 1, v{T0}")
    A.i(f"v_lshrrev_b32 v{T1}, 4, v{V_LANE}")
    A.i(f"v_mul_u32_u24 v{T2}, {72*1152}, v{T1}")
    A.i(f"v_add_u32 v{T2}, {16*1152}, v{T2}")
    A.i(f"v_add_u32 v{T2}, v{T2}, v{T0}")
    A.i(f"v_lshrrev_b32 v{T3}, 1, v{T1}")
    A.i(f"v_mul_u32_u24 v{T3}, {18*1152}, v{T3}")
    A.i(f"v_add_u32 v{T3}, v{T3}, v{T0}")
    A.i(f"v_and_b32 v{T1}, 1, v{T1}")
    A.i(f"v_mul_u32_u24 v{T1}, {4*1152}, v{T1}")
    A.i(f"v_add_u32 v{T3}, v{T3}, v{T1}")
    A.i("s_waitcnt lgkmcnt(0)")
    A.i("s_and_b32 s13, s13, 0xffff")
    A.i(f"s_mov_b32 s14, {576*1152}")
    A.i("s_mov_b32 s15, 0x20000")
    if WOTB:
        A.i("s_mov_b32 s24, s22")
        A.i("s_and_b32 s25, s23, 0xffff")
        A.i(f"s_mov_b32 s26, {576*1152}")
        A.i("s_mov_b32 s27, 0x20000")
    mats=[(12,100,124,WS_WOT)]+([(24,16,40,WS_WOTB)] if WOTB else [])
    for it in range(3):
        A.i(f"s_add_u32 s45, s44, {256*it}")
        A.i("s_min_u32 s45, s45, 647")
        A.i(f"s_mov_b32 s{48+it}, s45")
        A.i("s_mul_i32 s46, s45, 3641")
        A.i("s_lshr_b32 s46, s46, 16")
        A.i("s_mul_i32 s47, s46, 18")
        A.i("s_sub_u32 s47, s45, s47")
        if W64:
            A.i("s_mul_i32 s6, s46, 7282")
            A.i("s_lshr_b32 s6, s6, 16")
            A.i("s_mul_i32 s7, s6, 9")
            A.i("s_sub_u32 s7, s46, s7")
            A.i("s_mul_i32 s46, s6, 288")
            A.i("s_and_b32 s6, s6, 1")
            A.i("s_lshl_b32 s52, s6, 5")
            A.i("s_lshr_b32 s53, s7, 1")
            A.i("s_lshl_b32 s53, s53, 6")
            A.i("s_add_u32 s52, s52, s53")
            A.i("s_and_b32 s53, s7, 1")
            A.i("s_lshl_b32 s53, s53, 3")
            A.i("s_add_u32 s52, s52, s53")
            A.i("s_cmp_eq_u32 s6, 0")
            A.i("s_cselect_b32 s53, 256, 0")
            A.i("s_cmp_eq_u32 s7, 8")
            A.i("s_cselect_b32 s52, s53, s52")
            A.i("s_cselect_b64 s[54:55], -1, 0")
            A.i("s_add_u32 s46, s46, s52")
        else:
            A.i("s_lshl_b32 s46, s46, 5")
        A.i(f"s_mul_i32 s6, s47, {36*1152}")
        A.i("s_sub_u32 s7, s47, 16")
        A.i(f"s_mul_i32 s7, s7, {288*1152}")
        A.i("s_cmp_lt_u32 s47, 16")
        A.i("s_cselect_b32 s6, s6, s7")
        A.i("s_cselect_b64 vcc, -1, 0")
        A.i("s_add_u32 s46, s46, s6")
        A.i("s_cmp_lt_u32 s47, 16")
        A.i(f"v_cndmask_b32 v{T0}, v{T2}, v{T3}, vcc")
        if W64:
            A.i(f"v_cndmask_b32 v152, v151, v150, s[54:55]")
            A.i(f"v_add_u32 v{T0}, v{T0}, v152")
        for e in range(8):
            c1=((e&3)+8*(e>>2))*1152; c2=((e>>1)*18+(e&1))*1152
            A.i(f"s_mov_b32 s6, {c2}")
            A.i(f"s_cselect_b32 s6, {c1}, s6")
            A.i("s_add_u32 s6, s6, s46")
            A.i("s_cmp_lt_u32 s47, 16")
            for (srd,lr,pr,dst) in mats:
                A.i(f"buffer_load_ushort v{lr+8*it+e}, v{T0}, s[{srd}:{srd+3}], s6 offen")
    nm=len(mats)
    for it in range(3):
        A.i(f"s_waitcnt vmcnt({8*nm*(2-it)+nm*it})")
        for (srd,lr,pr,dst) in mats:
            for q in range(4):
                A.i(f"v_lshl_or_b32 v{pr+4*it+q}, v{lr+8*it+2*q+1}, 16, v{lr+8*it+2*q}")
            A.i(f"s_lshl_b32 s6, s{48+it}, 10")
            A.i(f"s_add_u32 s6, s6, {dst}")
            A.i(f"buffer_store_dwordx4 {vr(pr+4*it,4)}, v{T4}, s[16:19], s6 offen {WOT_MOD}".rstrip())
    if DAF:
        for r in range(4): A.i(f"v_mov_b32 v{140+r}, -1")
        A.i("s_mul_i32 s6, s44, 9216")
        A.i(f"s_add_u32 s6, s6, {WS_OB}")
        for k in range(9):
            if k and k%4==0: A.i("s_add_u32 s6, s6, 4096")
            A.i(f"buffer_store_dwordx4 v[140:143], v{T4}, s[16:19], s6 offen offset:{(k%4)*1024} {DAF_MOD}".rstrip())

def gen_gate(A,name,prof):
    A.label(f"{name}_gate")
    A.i(f"s_load_dwordx2 s[12:13], s[0:1], {KA_GW}")
    A.i(f"s_load_dwordx2 s[22:23], s[0:1], {KA_AWQKV}")
    A.i(f"s_load_dwordx2 s[24:25], s[0:1], {KA_BWQKV}")
    A.i("s_and_b32 s3, s2, 7")
    A.i("s_sub_u32 s4, s2, 224")
    A.i("s_lshr_b32 s4, s4, 3")
    A.i("s_and_b32 s28, s3, 1")
    A.i("s_lshr_b32 s29, s3, 1")
    if PF==2:
        A.i("s_lshl_b32 s26, s4, 3")
        A.i("s_add_u32 s26, s26, s5")
        A.i("s_cmp_ge_u32 s26, 9")
        A.i(f"s_cbranch_scc1 {name}_nopf")
        A.i("s_lshl_b32 s6, s26, 6")
        A.i(f"v_add_u32 v{T1}, s6, v{V_LANE}")
        A.i(f"v_mul_u32_u24 v{T0}, 3456, v{T1}")
        A.i("s_and_b32 s6, s29, 1")
        A.i("s_mul_i32 s6, s6, 1792")
        A.i(f"v_add_u32 v{T0}, s6, v{T0}")
        A.i("s_waitcnt lgkmcnt(0)")
        A.i("s_cmp_ge_u32 s29, 2")
        A.i("s_cselect_b32 s32, s24, s22")
        A.i("s_cselect_b32 s33, s25, s23")
        A.i("s_and_b32 s33, s33, 0xffff")
        A.i(f"s_mov_b32 s34, {576*3456}")
        A.i("s_mov_b32 s35, 0x20000")
        A.i(f"buffer_load_dword v{100}, v{T0}, s[32:35], 0 offen")
        A.label(f"{name}_nopf")
    if PF==1:
        A.i("s_lshl_b32 s26, s4, 3")
        A.i("s_add_u32 s26, s26, s5")
        A.i("s_cmp_ge_u32 s26, 30")
        A.i(f"s_cbranch_scc1 {name}_nopf")
        A.i("s_cmp_ge_u32 s26, 16")
        A.i(f"s_cbranch_scc1 {name}_pfw")
        A.i("s_lshl_b32 s6, s28, 10")
        A.i("s_lshl_b32 s7, s26, 6")
        A.i("s_add_u32 s6, s6, s7")
        A.i(f"v_add_u32 v{T0}, s6, v{V_LANE}")
        A.i(f"v_mul_u32_u24 v{T0}, 1152, v{T0}")
        A.i("s_waitcnt lgkmcnt(0)")
        A.i("s_mov_b32 s32, s8")
        A.i("s_and_b32 s33, s9, 0xffff")
        A.i(f"s_mov_b32 s34, {2048*1152}")
        A.i("s_mov_b32 s36, 128")
        A.i(f"s_branch {name}_pfgo")
        A.label(f"{name}_pfw")
        A.i("s_sub_u32 s6, s26, 16")
        A.i("s_lshl_b32 s6, s6, 6")
        A.i(f"v_add_u32 v{T1}, s6, v{V_LANE}")
        A.i(f"v_mul_u32_u24 v{T2}, 4682, v{T1}")
        A.i(f"v_lshrrev_b32 v{T2}, 16, v{T2}")
        A.i(f"v_mul_u32_u24 v{T3}, 14, v{T2}")
        A.i(f"v_sub_u32 v{T1}, v{T1}, v{T3}")
        A.i(f"v_mul_u32_u24 v{T0}, 3456, v{T2}")
        A.i(f"v_lshl_add_u32 v{T0}, v{T1}, 7, v{T0}")
        A.i("s_and_b32 s6, s29, 1")
        A.i("s_mul_i32 s6, s6, 1792")
        A.i(f"v_add_u32 v{T0}, s6, v{T0}")
        A.i("s_waitcnt lgkmcnt(0)")
        A.i("s_cmp_ge_u32 s29, 2")
        A.i("s_cselect_b32 s32, s24, s22")
        A.i("s_cselect_b32 s33, s25, s23")
        A.i("s_and_b32 s33, s33, 0xffff")
        A.i(f"s_mov_b32 s34, {576*3456}")
        A.i(f"s_mov_b32 s36, {64*3456}")
        A.label(f"{name}_pfgo")
        A.i("s_mov_b32 s35, 0x20000")
        A.i(f"s_mul_i32 s37, s36, {PF0}")
        for c in range(PF0,9):
            A.i(f"buffer_load_dword v{100+c}, v{T0}, s[32:35], s37 offen")
            if c<8: A.i("s_add_u32 s37, s37, s36")
        A.label(f"{name}_nopf")
    A.i("s_lshl_b32 s6, s28, 10")
    A.i("s_lshl_b32 s7, s29, 8")
    A.i("s_add_u32 s6, s6, s7")
    A.i("s_lshl_b32 s7, s4, 6")
    A.i("s_add_u32 s6, s6, s7")
    A.i("s_lshl_b32 s7, s5, 3")
    A.i("s_add_u32 s6, s6, s7")
    A.i(f"v_lshrrev_b32 v{T0}, 3, v{V_LANE}")
    A.i(f"v_add_u32 v{T0}, s6, v{T0}")
    A.i(f"v_and_b32 v{T1}, 7, v{V_LANE}")
    A.i(f"v_lshlrev_b32 v{T1}, 4, v{T1}")
    A.i(f"v_mul_u32_u24 v{T2}, 1152, v{T0}")
    A.i(f"v_add_u32 v{T2}, v{T2}, v{T1}")
    A.i("s_waitcnt lgkmcnt(0)")
    A.i("s_and_b32 s9, s9, 0xffff")
    A.i(f"s_mov_b32 s10, {2048*1152}")
    A.i("s_mov_b32 s11, 0x20000")
    A.i("s_and_b32 s13, s13, 0xffff")
    A.i("s_mov_b32 s14, 1152")
    A.i("s_mov_b32 s15, 0x20000")
    for s in range(9):
        A.i(f"buffer_load_dwordx4 {vr(16+4*s,4)}, v{T2}, s[8:11], 0 offen offset:{128*s}")
        A.i(f"buffer_load_dwordx4 {vr(64+4*s,4)}, v{T1}, s[12:15], 0 offen offset:{128*s}")
    A.i("s_mov_b32 s16, s20")
    A.i("s_and_b32 s17, s21, 0xffff")
    A.i("s_mov_b32 s18, 0x2000000")
    A.i("s_mov_b32 s19, 0x20000")
    A.i(f"v_mov_b32 v{T3}, 0")
    A.i(f"v_mov_b32 v{T4}, 0")
    for s in range(9):
        A.i(f"s_waitcnt vmcnt({2*(8-s)})")
        for r in range(4):
            acc = T3 if r%2==0 else T4
            A.i(f"v_dot2_f32_bf16 v{acc}, v{16+4*s+r}, v{64+4*s+r}, v{acc}")
    A.i("s_nop 4")
    A.i(f"v_add_f32 v{T3}, v{T3}, v{T4}")
    A.i("s_nop 1")
    A.i(f"v_add_f32_dpp v{T3}, v{T3}, v{T3} quad_perm:[1,0,3,2] row_mask:0xf bank_mask:0xf")
    A.i("s_nop 1")
    A.i(f"v_add_f32_dpp v{T3}, v{T3}, v{T3} quad_perm:[2,3,0,1] row_mask:0xf bank_mask:0xf")
    A.i("s_nop 1")
    A.i(f"v_add_f32_dpp v{T3}, v{T3}, v{T3} row_half_mirror row_mask:0xf bank_mask:0xf")
    A.i("s_nop 1")
    A.i(f"v_mul_f32 v{T3}, {f32bits(-1.4426950408889634)}, v{T3}")
    A.i(f"v_exp_f32 v{T3}, v{T3}")
    A.i("s_nop 0")
    A.i(f"v_add_f32 v{T3}, 1.0, v{T3}")
    A.i(f"v_rcp_f32 v{T3}, v{T3}")
    A.i(f"v_lshlrev_b32 v{T0}, 2, v{T0}")
    A.i(f"v_add_u32 v{T0}, {WS_G}, v{T0}")
    A.i(f"v_and_b32 v{T1}, 7, v{V_LANE}")
    A.i(f"v_cmp_eq_u32 vcc, 0, v{T1}")
    A.i("s_and_saveexec_b64 s[30:31], vcc")
    A.i(f"buffer_store_dword v{T3}, v{T0}, s[16:19], 0 offen{' sc1' if MONO else ''}")
    if AG: gen_wot(A,name)
    if CPF2:
        A.i("s_mov_b64 exec, -1")
        code_touch(A,name+"_ct2","k2_attn_kernel","k2_attn_kernel_codeend",5,250 if False else 10,12,72,False)
        A.i("s_waitcnt vmcnt(0)")
    if MONO:
        A.i("s_mov_b64 exec, -1")
        A.i("s_mov_b32 s67, 3")
        A.i(f"v_mov_b32 v{FLV}, {OOB}")
        A.i("s_mov_b32 s96, 0")
        A.i(f"s_branch {name}_trans")
        A.label(f"{name}_idle")
        A.i("s_mov_b32 s67, 2")
        A.i(f"v_mov_b32 v{FLV}, {OOB}")
        A.i("s_mov_b32 s96, 0")
        A.i(f"s_branch {name}_trans")
    if prof and PAUX:
        A.i("s_mov_b64 exec, -1")
        A.i("s_waitcnt vmcnt(0)")
        A.i("s_mov_b32 s70, s5")
        stamp_store(A,1,prof,name+"_aux")
        A.i("s_endpgm")
    A.label(f"{name}_end")
    A.i("s_endpgm")

PAUX=0
CPF2=0
R16=0
AG=0
LAUNCH=None
def gen_k1(A,name="k1_qkv_kernel",prof=False):
    if R16:
        import k1r
        return k1r.gen_k1(A,name,prof)
    kernel_header(A,name)
    A.i("s_cmp_ge_u32 s2, 256")
    A.i(f"s_cbranch_scc1 {name}_end")
    A.i(f"s_load_dwordx2 s[20:21], s[0:1], {KA_WS}")
    A.i(f"s_load_dwordx2 s[8:9], s[0:1], {KA_X}")
    if prof: A.i("s_memrealtime s[58:59]")
    stamp(A,0,prof)
    A.i(f"v_and_b32 v{V_LANE}, 63, v0")
    A.i(f"v_lshrrev_b32 v{T0}, 6, v0")
    A.i("s_nop 0")
    A.i(f"v_readfirstlane_b32 s5, v{T0}")
    A.i("s_cmp_ge_u32 s2, 224")
    A.i(f"s_cbranch_scc1 {name}_gate")
    A.i(f"s_load_dwordx2 s[12:13], s[0:1], {KA_AWQKV}")
    A.i(f"s_load_dwordx2 s[14:15], s[0:1], {KA_BWQKV}")
    A.i("s_mov_b32 s70, s5")
    A.i("s_and_b32 s6, s2, 7")
    A.i("s_lshr_b32 s7, s2, 3")
    A.i("s_and_b32 s3, s6, 1")
    A.i("s_lshl_b32 s3, s3, 2")
    A.i("s_and_b32 s30, s7, 3")
    A.i("s_add_u32 s3, s3, s30")
    A.i("s_lshr_b32 s6, s6, 1")
    A.i("s_mul_i32 s6, s6, 7")
    A.i("s_lshr_b32 s7, s7, 2")
    A.i("s_add_u32 s4, s6, s7")
    A.i("s_cmp_ge_u32 s4, 14")
    A.i("s_cselect_b32 s26, 1, 0")
    A.i("s_mul_i32 s6, s26, 14")
    A.i("s_sub_u32 s4, s4, s6")
    A.i("s_cmp_ge_u32 s4, 9")
    A.i("s_cselect_b32 s27, 1, 0")
    A.i("s_and_b32 s28, s5, 3")
    A.i("s_lshr_b32 s29, s5, 2")
    A.i(f"v_lshrrev_b32 v{T0}, 3, v{V_LANE}")
    A.i(f"v_mul_u32_u24 v{T0}, 1152, v{T0}")
    A.i(f"v_and_b32 v{T1}, 7, v{V_LANE}")
    A.i(f"v_lshrrev_b32 v{T2}, 4, v{V_LANE}")
    A.i(f"v_xor_b32 v{T1}, v{T1}, v{T2}")
    A.i(f"v_lshl_add_u32 v{DXE}, v{T1}, 4, v{T0}")
    A.i(f"v_xor_b32 v{DXO}, 64, v{DXE}")
    A.i(f"v_mul_u32_u24 v{T0}, 3456, v{T2}")
    A.i(f"v_and_b32 v{T1}, 15, v{V_LANE}")
    A.i(f"v_lshlrev_b32 v{T2}, 2, v{T2}")
    A.i(f"v_xor_b32 v{T1}, v{T1}, v{T2}")
    A.i(f"v_lshl_add_u32 v{DW}, v{T1}, 4, v{T0}")
    A.i("s_lshl_b32 s6, s3, 8")
    A.i("s_lshl_b32 s7, s5, 5")
    A.i("s_add_u32 s6, s6, s7")
    A.i("s_mul_i32 s22, s6, 1152")
    A.i(f"s_mul_i32 s23, s5, {8*3456}")
    A.i("s_lshl_b32 s6, s4, 8")
    A.i("s_add_u32 s23, s23, s6")
    A.i("s_lshl_b32 s24, s5, 12")
    A.i("s_lshl_b32 s25, s5, 11")
    A.i(f"s_add_u32 s25, s25, {WOFF}")
    A.i("s_waitcnt lgkmcnt(0)")
    A.i("s_and_b32 s9, s9, 0xffff")
    A.i(f"s_mov_b32 s10, {2048*1152}")
    A.i("s_mov_b32 s11, 0x20000")
    A.i("s_cmp_eq_u32 s26, 1")
    A.i("s_cselect_b32 s12, s14, s12")
    A.i("s_cselect_b32 s13, s15, s13")
    A.i("s_and_b32 s13, s13, 0xffff")
    A.i(f"s_mov_b32 s14, {576*3456}")
    A.i("s_mov_b32 s15, 0x20000")
    stamp(A,4,prof)
    dma_chunk(A,0)
    for g in dma_list(1)[:NPRE]:
        for l in g: A.i(l)
    if PF2:
        A.i("s_lshr_b32 s6, s2, 3")
        A.i("s_lshl_b32 s6, s6, 3")
        A.i("s_add_u32 s6, s6, s5")
        A.i("s_mul_i32 s7, s6, 2185")
        A.i("s_lshr_b32 s7, s7, 16")
        A.i("s_mul_i32 s30, s7, 30")
        A.i("s_sub_u32 s30, s6, s30")
        A.i(f"s_add_u32 s7, s7, {PF0}")
        A.i("s_and_b32 s31, s2, 1")
        A.i("s_cmp_ge_u32 s30, 16")
        A.i(f"s_cbranch_scc1 {name}_pf2w")
        A.i("s_lshl_b32 s31, s31, 10")
        A.i("s_lshl_b32 s30, s30, 6")
        A.i("s_add_u32 s30, s30, s31")
        A.i(f"v_add_u32 v{T0}, s30, v{V_LANE}")
        A.i(f"v_mul_u32_u24 v{T0}, 1152, v{T0}")
        A.i("s_lshl_b32 s6, s7, 7")
        A.i("s_cmp_ge_u32 s7, 9")
        A.i("s_cselect_b32 s6, 0x7fff0000, s6")
        A.i(f"buffer_load_dword v{EA}, v{T0}, s[8:11], s6 offen")
        A.i(f"s_branch {name}_pf2e")
        A.label(f"{name}_pf2w")
        A.i("s_sub_u32 s30, s30, 16")
        A.i("s_lshl_b32 s30, s30, 6")
        A.i(f"v_add_u32 v{T1}, s30, v{V_LANE}")
        A.i(f"v_mul_u32_u24 v{T2}, 4682, v{T1}")
        A.i(f"v_lshrrev_b32 v{T2}, 16, v{T2}")
        A.i(f"v_mul_u32_u24 v{T3}, 14, v{T2}")
        A.i(f"v_sub_u32 v{T1}, v{T1}, v{T3}")
        A.i(f"v_mul_u32_u24 v{T0}, 3456, v{T2}")
        A.i(f"v_lshl_add_u32 v{T0}, v{T1}, 7, v{T0}")
        A.i("s_bfe_u32 s30, s2, 0x10001")
        A.i("s_mul_i32 s30, s30, 1792")
        A.i(f"v_add_u32 v{T0}, s30, v{T0}")
        A.i(f"s_mul_i32 s6, s7, {64*3456}")
        A.i(f"buffer_load_dword v{EA}, v{T0}, s[12:15], s6 offen")
        A.label(f"{name}_pf2e")
    stamp(A,5,prof)
    A.i("s_mov_b32 s16, s20")
    A.i("s_and_b32 s17, s21, 0xffff")
    A.i("s_mov_b32 s18, 0x2000000")
    A.i("s_mov_b32 s19, 0x20000")
    A.i(f"v_and_b32 v{T0}, 31, v{V_LANE}")
    A.i(f"v_lshrrev_b32 v{T1}, 5, v{V_LANE}")
    A.i(f"v_bfe_u32 v{T2}, v{V_LANE}, 1, 3")
    A.i(f"v_xor_b32 v{T2}, v{T1}, v{T2}")
    A.i(f"v_lshlrev_b32 v{T2}, 4, v{T2}")
    A.i(f"v_lshl_add_u32 v{T2}, v{T0}, 7, v{T2}")
    A.i("s_lshl_b32 s6, s28, 13")
    A.i(f"v_add_u32 v{XA}, s6, v{T2}")
    for ks in range(1,4): A.i(f"v_xor_b32 v{XA+ks}, {ks<<5}, v{XA}")
    if DENSE:
        qk_setup(A,name)
    else:
        A.i("s_mov_b32 s72, 0x76543210")
        A.i("s_mov_b32 s73, 0xfedcba98")
    A.i(f"v_lshrrev_b32 v{T1}, 5, v{V_LANE}")
    A.i(f"v_bfe_u32 v{T0}, v{V_LANE}, 2, 2")
    A.i(f"v_lshl_add_u32 v{T2}, v{T1}, 3, v{T0}")
    A.i(f"v_lshlrev_b32 v{T2}, 8, v{T2}")
    A.i(f"v_add_u32 v{T2}, {WOFF}, v{T2}")
    A.i(f"v_bfe_u32 v{T1}, v{V_LANE}, 4, 1")
    A.i(f"v_and_b32 v{T3}, 3, v{V_LANE}")
    A.i(f"v_lshl_add_u32 v{T1}, v{T1}, 2, v{T3}")
    A.i(f"v_lshlrev_b32 v{T1}, 2, v{T1}")
    A.i("s_lshl_b32 s6, s29, 1")
    for ct in range(2):
        A.i(f"v_lshrrev_b32 v{T3}, v{T1}, s{72+ct}")
        A.i(f"v_bfe_u32 v{T4}, v{T3}, 3, 1")
        A.i(f"v_or_b32 v{T4}, s6, v{T4}")
        A.i(f"v_xor_b32 v{T4}, v{T4}, v{T0}")
        A.i(f"v_lshl_add_u32 v{T4}, v{T4}, 6, v{T2}")
        A.i(f"v_and_b32 v{T3}, 7, v{T3}")
        A.i(f"v_lshl_add_u32 v{WA+ct}, v{T3}, 3, v{T4}")
    A.i(f"s_waitcnt vmcnt({NPRE+(1 if PF2 else 0)})")
    A.i("s_barrier")
    stamp(A,1,prof)
    A.i("s_cmp_eq_u32 s27, 1")
    A.i(f"s_cbranch_scc1 {name}_vtype")
    mainloop(A,False,prof)
    stamp(A,2,prof)
    if DENSE:
        qk_epilogue(A,name,prof)
    if not DENSE: qk_scalars(A)
    A.i(f"v_and_b32 v{T0}, 31, v{V_LANE}")
    A.i(f"v_lshrrev_b32 v{T1}, 5, v{V_LANE}")
    A.i(f"v_add_u32 v{T1}, s32, v{T1}")
    A.i("s_nop 7")
    if FAKE:
        A.i("s_mov_b32 s36, s37")
        for r in range(0,64,2): A.i(f"v_pk_mul_f32 {vr(ACC+r,2)}, {vr(ACC+r,2)}, s[36:37]")
        for r in range(32): A.i(f"v_cvt_pk_bf16_f32 v{ACC+r}, v{ACC+2*r}, v{ACC+2*r+1}")
        A.i("s_lshl_b32 s6, s2, 3")
        A.i("s_add_u32 s6, s6, s5")
        A.i("s_lshl_b32 s6, s6, 13")
        A.i(f"v_lshlrev_b32 v{EA}, 4, v{V_LANE}")
        A.i(f"v_lshlrev_b32 v{EA+1}, 2, v{V_LANE}")
        for k in range(8):
            A.i(f"buffer_store_dwordx4 {vr(ACC+4*k,4)}, v{EA}, s[16:19], s6 offen {QK_MOD}")
            A.i("s_add_u32 s6, s6, 1024")
        A.i("s_sub_u32 s6, s6, 8192")
        for k in range(2):
            A.i(f"buffer_store_dword v{ACC+k}, v{EA+1}, s[16:19], s6 offen {QK_MOD}")
            A.i("s_add_u32 s6, s6, 256")
        if prof: A.i("s_waitcnt vmcnt(0)")
        stamp(A,3,prof)
        stamp_store(A,6,prof,name)
        A.i("s_endpgm")
    for r in range(64): A.i(f"v_mul_f32 v{ACC+r}, s37, v{ACC+r}")
    for r in range(32): A.i(f"v_cvt_pk_bf16_f32 v{ACC+r}, v{ACC+2*r}, v{ACC+2*r+1}")
    G_=EA; P_=EA+1; R_=EA+2; ODD=EA+3; AM=EA+4; AR=EA+5
    for ct in range(2):
        for g in range(4):
            A.i(f"v_add_u32 v{G_}, {8*ct+2*g}, v{T1}")
            A.i(f"v_mul_u32_u24 v{P_}, 7282, v{G_}")
            A.i(f"v_lshrrev_b32 v{P_}, 16, v{P_}")
            A.i(f"v_mul_u32_u24 v{R_}, 9, v{P_}")
            A.i(f"v_sub_u32 v{R_}, v{G_}, v{R_}")
            A.i(f"v_cmp_lt_u32 vcc, 4, v{R_}")
            A.i(f"v_cndmask_b32 v{ODD}, 0, 1, vcc")
            A.i(f"v_lshl_add_u32 v{AM}, v{P_}, 1, v{ODD}")
            A.i(f"v_mul_u32_u24 v{ODD}, 5, v{ODD}")
            A.i(f"v_sub_u32 v{ODD}, v{R_}, v{ODD}")
            A.i(f"v_mul_u32_u24 v{AM}, s34, v{AM}")
            A.i(f"v_lshl_add_u32 v{AM}, v{T0}, 4, v{AM}")
            A.i(f"v_lshrrev_b32 v{AR}, 1, v{ODD}")
            A.i(f"v_lshl_add_u32 v{AM}, v{AR}, 9, v{AM}")
            A.i(f"v_and_b32 v{AR}, 1, v{ODD}")
            A.i(f"v_lshl_add_u32 v{AM}, v{AR}, 3, v{AM}")
            A.i(f"v_add_u32 v{AM}, s33, v{AM}")
            A.i(f"v_cmp_eq_u32 vcc, 4, v{R_}")
            A.i(f"v_mov_b32 v{AR}, 0x7fff0000")
            A.i(f"v_cndmask_b32 v{AM}, v{AM}, v{AR}, vcc")
            for tt in range(2):
                b=ACC+(tt*2+ct)*8+2*g
                A.i(f"buffer_store_dwordx2 {vr(b,2)}, v{AM}, s[16:19], s{38+tt} offen {QK_MOD}")
            lab=f"{name}_norem_{ct}_{g}"
            A.i(f"s_cbranch_vccz {lab}")
            A.i("s_and_saveexec_b64 s[30:31], vcc")
            A.i(f"v_lshlrev_b32 v{P_}, 1, v{P_}")
            A.i(f"v_mul_u32_u24 v{AR}, s34, v{P_}")
            A.i(f"v_lshl_add_u32 v{AR}, v{T0}, 2, v{AR}")
            A.i(f"v_add_u32 v{AR}, s33, v{AR}")
            A.i(f"v_add_u32 v{AR}, s36, v{AR}")
            A.i(f"v_add_u32 v{P_}, s34, v{AR}")
            for tt in range(2):
                b=ACC+(tt*2+ct)*8+2*g
                A.i(f"buffer_store_dword v{b}, v{AR}, s[16:19], s{38+tt} offen {QK_MOD}")
                A.i(f"buffer_store_dword v{b+1}, v{P_}, s[16:19], s{38+tt} offen {QK_MOD}")
            A.i("s_mov_b64 exec, s[30:31]")
            A.label(lab)
    wb(A,name)
    if prof: A.i("s_waitcnt vmcnt(0)")
    stamp(A,3,prof)
    stamp_store(A,6,prof,name)
    A.i("s_endpgm")
    A.label(f"{name}_vtype")
    mainloop(A,True,prof)
    stamp(A,2,prof)
    A.i("s_lshl_b32 s6, s4, 7")
    A.i("s_lshl_b32 s7, s29, 6")
    A.i("s_add_u32 s6, s6, s7")
    A.i("s_sub_u32 s32, s6, 1152")
    A.i("s_cmp_ge_u32 s32, 576")
    A.i(f"s_cbranch_scc1 {name}_end")
    A.i("s_cmp_eq_u32 s26, 1")
    csel(A,33,WS_KVB+OFF_V,WS_KVA+OFF_V)
    A.i("s_lshl_b32 s6, s3, 3")
    A.i("s_lshl_b32 s7, s28, 1")
    A.i("s_add_u32 s6, s6, s7")
    A.i(f"s_mul_i32 s38, s6, {TILE_B}")
    A.i(f"s_add_u32 s39, s38, {TILE_B}")
    A.i(f"s_mov_b32 s34, {KV_HEAD}")
    A.i(f"v_and_b32 v{T0}, 31, v{V_LANE}")
    A.i(f"v_lshrrev_b32 v{T1}, 5, v{V_LANE}")
    A.i(f"v_mul_u32_u24 v{T1}, 304, v{T1}")
    A.i(f"v_add_u32 v{T1}, s33, v{T1}")
    A.i(f"v_add_u32 v{T0}, s32, v{T0}")
    for r in range(4): A.i(f"v_mov_b32 v{XF+r}, 0x3f803f80")
    A.i("s_nop 7")
    for r in range(32): A.i(f"v_cvt_pk_bf16_f32 v{ACC+r}, v{ACC+2*r}, v{ACC+2*r+1}")
    for ct in range(2):
        VC=EA; HD=EA+1; DM=EA+2; AD=EA+3
        A.i(f"v_add_u32 v{VC}, {32*ct}, v{T0}")
        A.i(f"v_mul_u32_u24 v{HD}, 3641, v{VC}")
        A.i(f"v_lshrrev_b32 v{HD}, 16, v{HD}")
        A.i(f"v_mul_u32_u24 v{DM}, 18, v{HD}")
        A.i(f"v_sub_u32 v{DM}, v{VC}, v{DM}")
        A.i(f"v_mul_u32_u24 v{AD}, s34, v{HD}")
        A.i(f"v_lshl_add_u32 v{AD}, v{DM}, 4, v{AD}")
        A.i(f"v_add_u32 v{AD}, v{T1}, v{AD}")
        for tt in range(2):
            b=ACC+(tt*2+ct)*8
            A.i(f"buffer_store_dwordx4 {vr(b,4)}, v{AD}, s[16:19], s{38+tt} offen {V_MOD}")
            A.i(f"buffer_store_dwordx4 {vr(b+4,4)}, v{AD}, s[16:19], s{38+tt} offen offset:608 {V_MOD}")
        A.i(f"v_cmp_eq_u32 vcc, 17, v{DM}")
        A.i("s_and_saveexec_b64 s[30:31], vcc")
        for tt in range(2):
            A.i(f"buffer_store_dwordx4 {vr(XF,4)}, v{AD}, s[16:19], s{38+tt} offen offset:16 {V_MOD}")
            A.i(f"buffer_store_dwordx4 {vr(XF,4)}, v{AD}, s[16:19], s{38+tt} offen offset:{608+16} {V_MOD}")
        A.i("s_mov_b64 exec, s[30:31]")
    wb(A,name)
    if prof: A.i("s_waitcnt vmcnt(0)")
    stamp(A,3,prof)
    stamp_store(A,6,prof,name)
    A.i("s_endpgm")
    gen_gate(A,name,prof)
    kernel_footer(A,name,160 if M16==4 else NV)
```

```python
from asmlib import *
from k2 import stamp, stamp_store
import k1 as K
import qkperm16
import qkperm112
import k1aux
from k1 import C_SCALE,f32bits,csel,STAGE,WOFF,OOB
V_LANE=1; XA=2; WA=4; DXE=8; DXO=9; DW=10; T0=11; T1=12; T2=13; T3=14; T4=15
XB=[16,32]; WB=[64+64,64+64+16]
DX1=48; DX2=49; AM=50; L16=52; L4=53; AD=50; AO=54; ONE=56
ACC=64
NV=160
RPOS=[0,1,2,3,4,5,6,7,8,9,10,11]
RORD=[0,1,2,3,4,5,6,7,8,9,10,11]
DPOS=[4,9,14]
DPOS0=[2,7,12]
SKIPPAD=1
CGMAP=None
CBTAB=None
SPLITD=0
PRIO=0
EPI=0
ORD=0
FAKEV=0
NOA=0
EPRIO=0
QKI=None; VI=None
NOS=0
W112=0
CPF1=0
KRG=0
WAL=0
DAFD=1
NARROW=0
XLB=[160,164]; XLA=60; AL=62; SL=96
DPOSN=[3,7,11]; DPOS0N=[1,5,9]; RPOSN=[0,0,1,1,2,2,3,3,4,5,6,7,8]
LOADERS=0; LPRE=1; DW1=60
def ldma(c):
    sb=(c%3)*STAGE
    L=[]
    for i in range(4):
        L.append([f"s_add_u32 s30, s23, {(c*64+4*i)*3456}",f"s_add_u32 m0, s25, {sb+i*1024}","s_nop 0",
                  f"buffer_load_dwordx4 v{DW1 if i>>1 else DW}, s[12:15], s30 offen {K.W_MOD} lds"])
    X=[]
    for i in range(8):
        X.append([f"s_add_u32 s30, s22, {8*i*1152+c*128}",f"s_add_u32 m0, s24, {sb+i*1024}","s_nop 0",
                  f"buffer_load_dwordx4 v{[DXE,DX1,DX2,DXO][i&3]}, s[8:11], s30 offen {K.X_MOD} lds"])
    return [X[0],L[0],X[1],X[2],L[1],X[3],X[4],L[2],X[5],X[6],L[3],X[7]]
def loader(A,name,prof):
    A.i("s_sub_u32 s6, s5, 8")
    A.i(f"v_lshrrev_b32 v{T0}, 3, v{V_LANE}")
    A.i(f"v_mul_u32_u24 v{T0}, 1152, v{T0}")
    A.i(f"v_and_b32 v{T1}, 7, v{V_LANE}")
    A.i(f"v_lshrrev_b32 v{T2}, 4, v{V_LANE}")
    A.i(f"v_xor_b32 v{T1}, v{T1}, v{T2}")
    A.i(f"v_lshl_add_u32 v{DXE}, v{T1}, 4, v{T0}")
    A.i(f"v_xor_b32 v{DXO}, 64, v{DXE}")
    A.i(f"v_xor_b32 v{DX1}, s30, v{DXE}")
    A.i(f"v_xor_b32 v{DX2}, s31, v{DXE}")
    A.i(f"v_mul_u32_u24 v{T0}, 3456, v{T2}")
    A.i(f"v_and_b32 v{T1}, 15, v{V_LANE}")
    A.i(f"v_lshlrev_b32 v{T2}, 2, v{T2}")
    A.i(f"v_xor_b32 v{T1}, v{T1}, v{T2}")
    A.i(f"v_lshl_add_u32 v{DW}, v{T1}, 4, v{T0}")
    A.i(f"v_xor_b32 v{DW1}, 32, v{DW}")
    A.i("s_lshl_b32 s7, s3, 8")
    A.i("s_lshl_b32 s31, s6, 6")
    A.i("s_add_u32 s7, s7, s31")
    A.i("s_mul_i32 s22, s7, 1152")
    A.i(f"s_mul_i32 s23, s6, {16*3456}")
    A.i("s_lshl_b32 s7, s4, 8")
    A.i("s_add_u32 s23, s23, s7")
    A.i("s_lshl_b32 s24, s6, 13")
    A.i("s_lshl_b32 s25, s6, 12")
    A.i(f"s_add_u32 s25, s25, {WOFF}")
    A.i("s_waitcnt lgkmcnt(0)")
    A.i("s_and_b32 s9, s9, 0xffff")
    A.i(f"s_mov_b32 s10, {2048*1152}")
    A.i("s_mov_b32 s11, 0x20000")
    A.i("s_cmp_eq_u32 s26, 1")
    A.i("s_cselect_b32 s12, s14, s12")
    A.i("s_cselect_b32 s13, s15, s13")
    A.i("s_and_b32 s13, s13, 0xffff")
    A.i(f"s_mov_b32 s14, {576*3456}")
    A.i("s_mov_b32 s15, 0x20000")
    for c in range(LPRE+1):
        for g in ldma(c):
            for l in g: A.i(l)
    A.i(f"s_waitcnt vmcnt({12*LPRE})")
    A.i("s_barrier")
    for c in range(LPRE+1,3):
        for g in ldma(c):
            for l in g: A.i(l)
    for c in range(8):
        A.i(f"s_waitcnt vmcnt({12 if c<7 else 0})")
        A.i("s_barrier")
        if c+3<9:
            for g in ldma(c+3):
                for l in g: A.i(l)
    A.i("s_endpgm")
AUXDIE=-1
E2D=0; E2P=0; E2R=0; E2S=0; E2I=0
W2=160; W3=176
NODMA=0; NORD=0; NOBAR=0; OLDDMA=0
FIXW=0; FIXX=0
W4=0; XST=32768; WBASE=98304; WST=16384
def woff(): return WBASE if W4 else WOFF
def wdma(c):
    sb=(c%4)*WST
    return [[f"s_add_u32 s30, s23, {(c*64+4*i)*3456}",f"s_add_u32 m0, s25, {sb+i*1024}","s_nop 0",
             f"buffer_load_dwordx4 v{DW}, s[12:15], s30 offen {K.W_MOD} lds"] for i in range(2)]
def xdma(c):
    sb=(c%3)*XST
    return [[f"s_add_u32 s30, s22, {8*i*1152+c*128}",f"s_add_u32 m0, s24, {sb+i*1024}","s_nop 0",
             f"buffer_load_dwordx4 v{[DXE,DX1,DX2,DXO][i]}, s[8:11], s30 offen {K.X_MOD} lds"] for i in range(4)]
def batch(c):
    return (xdma(c+3) if c+3<9 else [])+(wdma(c+4) if c+4<9 else [])
PFW=0
PFV=61
WP=60
PFL=0
def prefetch_w(A,issue=True):
    rows=576-64*PFW
    per=(rows*2+31)//32
    assert per<=64
    A.i("s_and_b32 s6, s3, 3")
    A.i("s_lshl_b32 s6, s6, 3")
    A.i("s_add_u32 s6, s6, s5")
    A.i(f"s_mul_i32 s6, s6, {per}")
    A.i(f"v_add_u32 v{T0}, s6, v{V_LANE}")
    A.i(f"v_lshrrev_b32 v{T1}, 1, v{T0}")
    A.i(f"v_mul_u32_u24 v{T1}, 3456, v{T1}")
    A.i(f"v_and_b32 v{T0}, 1, v{T0}")
    A.i(f"v_lshl_add_u32 v{T1}, v{T0}, 7, v{T1}")
    A.i(f"v_mov_b32 v{T2}, {OOB}")
    A.i(f"v_cmp_gt_u32 vcc, {per}, v{V_LANE}")
    A.i("s_lshl_b32 s6, s4, 8")
    A.i(f"s_add_u32 s6, s6, {64*PFW*3456}")
    if PFL:
        A.i(f"v_cndmask_b32 v{PFV}, v{T2}, v{T1}, vcc")
        A.i("s_mov_b32 s96, s6")
        return
    A.i(f"v_cndmask_b32 v{T1}, v{T2}, v{T1}, vcc")
    A.i(f"buffer_load_dword v{PFV}, v{T1}, s[12:15], s6 offen")
def dma_list(c):
    sb=(c%3)*STAGE
    L=[]
    cw=0 if FIXW else c
    cx=0 if FIXX else c
    for i in range(2):
        if K.MIX:
            a=WP+2*i
            L.append([f"s_add_u32 m0, s25, {sb+i*1024}","s_nop 0","s_nop 0",
                      f"global_load_lds_dwordx4 v[{a}:{a+1}], off {K.W_MOD}".rstrip()]+
                     ([f"v_add_co_u32 v{a}, vcc, {64*3456}, v{a}",f"v_addc_co_u32 v{a+1}, vcc, 0, v{a+1}, vcc"] if c<8 else []))
            continue
        L.append([f"s_add_u32 s30, s23, {(cw*64+4*i)*3456}",f"s_add_u32 m0, s25, {sb+i*1024}","s_nop 0",
                  f"buffer_load_dwordx4 v{DW}, s[12:15], s30 offen {K.W_MOD} lds"])
    for i in range(4):
        L.append([f"s_add_u32 s30, s22, {8*i*1152+cx*128}",f"s_add_u32 m0, s24, {sb+i*1024}","s_nop 0",
                  f"buffer_load_dwordx4 v{[DXE,DX1,DX2,DXO][i]}, s[8:11], s30 offen {K.X_MOD} lds"])
    return L
def accn(vtype,i,ct):
    return (((i>>1)*4+ct)*2+(i&1)) if vtype else (4*i+ct)
def epi_qk(i,scale):
    L=[]
    if scale:
        for ct in range(4):
            for q in range(2):
                r=ACC+4*(4*i+ct)+2*q
                L.append(f"v_pk_mul_f32 {vr(r,2)}, {vr(r,2)}, s[36:37]")
    for ct in range(4):
        n=4*i+ct
        for q in range(2): L.append(f"v_cvt_pk_bf16_f32 v{ACC+2*n+q}, v{ACC+4*n+2*q}, v{ACC+4*n+2*q+1}")
    for p in range(2):
        md=K.QK_MOD if not QKI else ('sc1' if QKI[1+2*i+p]=='1' else '')
        L.append(f"buffer_store_dwordx4 {vr(ACC+8*i+4*p,4)}, v{AM+p}, s[16:19], s{38+(i>>1)} offen offset:{(i&1)*256} {md}")
    return L
def epi_v(tp):
    L=[]
    for ct in range(4):
        n=(tp*4+ct)*2
        for q in range(4): L.append(f"v_cvt_pk_bf16_f32 v{ACC+2*n+q}, v{ACC+4*n+2*q}, v{ACC+4*n+2*q+1}")
        md=K.V_MOD if not VI else ('sc1' if VI[1+4*tp+ct]=='1' else '')
        L.append(f"buffer_store_dwordx4 {vr(ACC+2*n,4)}, v{AD+ct}, s[16:19], s{38+tp} offen {md}")
    return L
def last_step(A,vtype,par,scale):
    def M(i,j):
        ct=j if i%2==0 else 3-j
        xf=XB[par]+4*i; wf=WB[par]+4*ct
        d=ACC+accn(vtype,i,ct)*4
        a,b=(xf,wf) if vtype else (wf,xf)
        A.i(f"v_mfma_f32_16x16x32_bf16 {vr(d,4)}, {vr(a,4)}, {vr(b,4)}, {vr(d,4)}")
    if vtype:
        for i in range(2):
            for j in range(4): M(i,j)
        for j in range(4): M(2,j)
        e=epi_v(0)
        A.i("s_nop 3")
        q=(len(e)+3)//4
        for j in range(4):
            M(3,j)
            for l in e[j*q:(j+1)*q]: A.i(l)
        A.i("s_nop 7")
        for l in epi_v(1): A.i(l)
        return
    for i in range(2):
        for j in range(4): M(i,j)
    for i in (2,3):
        e=epi_qk(i-2,scale)
        q=(len(e)+3)//4
        if i==2: A.i("s_nop 3")
        for j in range(4):
            M(i,j)
            for l in e[j*q:(j+1)*q]: A.i(l)
    for l in epi_qk(2,scale): A.i(l)
    A.i("s_nop 3")
    for l in epi_qk(3,scale): A.i(l)

def e2_wreads(dst,chunk8,s2):
    o=STAGE if chunk8 else 0
    return [f"ds_read_b64_tr_b16 {vr(dst+ct*4+2*u,2)}, v{WA+ct} offset:{o+s2*8192+u*1024}" for ct in range(4) for u in range(2)]
def e2_xreads(vtype,dst,chunk8,tp):
    o=STAGE if chunk8 else 0
    L=[]
    for s2 in range(2):
        for r in range(2):
            i=2*tp+r
            L.append(f"ds_read_b128 {vr(dst+4*(2*r+s2),4)}, v{XA+s2} offset:{o+(((i>>1)*4096+(i&1)*1024) if vtype else i*2048)}")
    return L
def spread(A,mf,extra,first,last):
    n=last-first+1
    k=0; tail=0
    for q,m in enumerate(mf):
        for l in (m if isinstance(m,list) else [m]): A.i(l)
        tail=0
        if extra and first<=q<=last:
            upto=(len(extra)*(q-first+1)+n-1)//n
            while k<upto:
                A.i(extra[k]); k+=1; tail+=1
    assert k==len(extra)
    return tail
def final_two_rows(A,vtype,tag,WS,M,phase):
    if vtype:
        phase(0,1,XB[1],e2_xreads(True,XB[0],False,1),[0,1,2,3],True)
        if E2S: stamp(A,4,E2S)
        A.i("s_waitcnt lgkmcnt(0)")
        rd=e2_xreads(True,XB[1],True,1)
        mf=[]
        for s2 in range(2):
            for r in range(2):
                for j in range(4):
                    m=[M(XB[0],WS[s2],2+r,j if r==0 else 3-j,s2)]
                    if len(mf)<4: m.append(rd[len(mf)])
                    mf.append(m)
        spread(A,mf,epi_v(0),2,13)
        if E2S: stamp(A,5,E2S)
        A.i("s_waitcnt lgkmcnt(0)")
        phase(1,1,XB[1],[],[],True)
        A.i("s_nop 1")
        for l in epi_v(1): A.i(l)
        return
    def rowreads(dst,i):
        return [f"ds_read_b128 {vr(dst+4*(2*ch+s2),4)}, v{XA+s2} offset:{ch*STAGE+i*2048}" for ch in range(2) for s2 in range(2)]
    def rowm(xset,i,rd):
        mf=[]
        for k in range(4):
            for ct in range(4):
                d=ACC+accn(False,i,ct)*4
                m=[f"v_mfma_f32_16x16x32_bf16 {vr(d,4)}, {vr(WS[k]+4*ct,4)}, {vr(xset+4*k,4)}, {vr(d,4)}"]
                if len(mf)<len(rd): m.append(rd[len(mf)])
                mf.append(m)
        return mf
    phase(0,1,XB[1],rowreads(XB[0],2),[0,1,2,3],True)
    if E2S: stamp(A,4,E2S)
    A.i("s_cmp_eq_u32 s78, 1")
    A.i(f"s_cbranch_scc1 {tag}_k")
    for scale in (True,False):
        if not scale: A.label(f"{tag}_k")
        A.i("s_waitcnt lgkmcnt(0)")
        spread(A,rowm(XB[0],2,rowreads(XB[1],3)),epi_qk(0,scale)+epi_qk(1,scale),0 if E2I==1 else 1,15 if E2I==1 else 13)
        if E2S: stamp(A,5,E2S)
        A.i("s_waitcnt lgkmcnt(0)")
        t=spread(A,rowm(XB[1],3,[]),epi_qk(2,scale),7,15)
        if t<6: A.i(f"s_nop {5-t}")
        for l in epi_qk(3,scale): A.i(l)
        if scale: A.i(f"s_branch {tag}_d")
    A.label(f"{tag}_d")
W4R=192; W5R=208; XE=224; XA8=240; WA8=242
def e3_w(dst,ch,s2):
    base,o=(WA8,0) if ch==2 else (WA,ch*STAGE)
    return [f"ds_read_b64_tr_b16 {vr(dst+ct*4+2*u,2)}, v{base+ct} offset:{o+s2*8192+u*1024}" for ct in range(4) for u in range(2)]
def e3_xo(vtype,i): return ((i>>1)*4096+(i&1)*1024) if vtype else i*2048
def e3_x1(vtype,dst,ch,s2,i):
    base,o=(XA8,0) if ch==2 else (XA,ch*STAGE)
    return f"ds_read_b128 {vr(dst,4)}, v{base+s2} offset:{o+e3_xo(vtype,i)}"
def e3_x(vtype,dst,ch,tp):
    return [e3_x1(vtype,dst+4*(2*r+s2),ch,s2,2*tp+r) for s2 in range(2) for r in range(2)]
def final_three(A,vtype,name,pend):
    tag=name+("_e3v" if vtype else "_e3q")
    WS=[WB[0],W2,W3,WB[1],W4R,W5R]
    def mm(xf,wf,i,ct):
        d=ACC+accn(vtype,i,ct)*4
        a,b=(xf,wf) if vtype else (wf,xf)
        return f"v_mfma_f32_16x16x32_bf16 {vr(d,4)}, {vr(a,4)}, {vr(b,4)}, {vr(d,4)}"
    def pseq(tp,ch,xset,fin):
        seq=[]
        if not fin:
            for s2 in range(2):
                for r in range(2):
                    for j in range(4): seq.append((r,j if r==0 else 3-j,s2))
        elif vtype:
            for r in range(2):
                for j in range(4): seq.append((r,j,0))
            for ct in range(4):
                for r in range(2): seq.append((r,ct,1))
        else:
            for r in range(2):
                for s2 in range(2):
                    for j in range(4): seq.append((r,j,s2))
        return [mm(xset+4*(2*r+s2),WS[2*ch+s2]+4*ct,2*tp+r,ct) for r,ct,s2 in seq]
    def withreads(mf,reads,pos):
        out=[]
        for n,m in enumerate(mf):
            out.append([m]+[reads[q] for q,p in enumerate(pos) if p==n])
        return out
    P20=[0,0,1,1,2,2,3,3,4,5,6,7,8,9,10,11,12,13,14,15]
    def big(ch,wa,wb,xd):
        w0=e3_w(wa,ch,0); w1=e3_w(wb,ch,1); x=e3_x(vtype,xd,ch,0)
        return w0[:2]+x[:2]+w0[2:]+w1[:2]+x[2:]+w1[2:]
    A.i("s_waitcnt lgkmcnt(0)")
    while pend:
        for l in pend.pop(0): A.i(l)
    A.i("s_waitcnt vmcnt(6)")
    A.i("s_barrier")
    if E2S: stamp(A,1,E2S)
    for r in range(2): A.i(f"v_add_u32 v{XA8+r}, {2*STAGE}, v{XA+r}")
    for r in range(4): A.i(f"v_add_u32 v{WA8+r}, {2*STAGE}, v{WA+r}")
    spread(A,withreads(pseq(0,0,XB[0],False),big(1,W3,WB[1],XB[1]),P20),[],0,15)
    A.i("s_waitcnt lgkmcnt(0)")
    A.i("s_waitcnt vmcnt(0)")
    A.i("s_barrier")
    if E2P:
        A.i("s_cmp_lt_u32 s70, 4")
        A.i(f"s_cbranch_scc0 {tag}_yp")
        A.i(f"s_setprio {E2P}")
        A.label(f"{tag}_yp")
    if vtype: A.i(f"buffer_store_dwordx4 {vr(ONE,4)}, v{AO}, s[16:19], s38 offen {K.V_MOD}")
    else: A.i("s_mov_b32 s36, s37")
    spread(A,withreads(pseq(0,1,XB[1],False),big(2,W4R,W5R,XB[0]),P20),[],0,15)
    A.i("s_waitcnt lgkmcnt(0)")
    if vtype:
        spread(A,withreads(pseq(0,2,XB[0],True),e3_x(True,XB[1],0,1),[0,1,2,3]),[],0,15)
        if E2S: stamp(A,4,E2S)
        A.i("s_waitcnt lgkmcnt(0)")
        spread(A,withreads(pseq(1,0,XB[1],False),e3_x(True,XB[0],1,1),[0,1,2,3]),epi_v(0),2,13)
        if E2S: stamp(A,5,E2S)
        A.i("s_waitcnt lgkmcnt(0)")
        spread(A,withreads(pseq(1,1,XB[0],False),e3_x(True,XB[1],2,1),[0,1,2,3]),[],0,15)
        A.i("s_waitcnt lgkmcnt(0)")
        spread(A,withreads(pseq(1,2,XB[1],True),[],[]),[],0,15)
        A.i("s_nop 1")
        for l in epi_v(1): A.i(l)
        return
    def rowregs(xa,xe): return [xa,xa+4,xa+8,xa+12,xe,xe+4]
    def rowreads(regs,i): return [e3_x1(False,regs[k],k>>1,k&1,i) for k in range(6)]
    def rowm(regs,i): return [mm(regs[k],WS[k]+4*ct,i,ct) for k in range(6) for ct in range(4)]
    r2=rowregs(XB[1],XE); r3=rowregs(XB[0],XE+8)
    spread(A,withreads(pseq(0,2,XB[0],True),rowreads(r2,2),[0,1,2,3,4,5]),[],0,15)
    if E2S: stamp(A,4,E2S)
    A.i("s_cmp_eq_u32 s78, 1")
    A.i(f"s_cbranch_scc1 {tag}_k")
    for scale in (True,False):
        if not scale: A.label(f"{tag}_k")
        A.i("s_waitcnt lgkmcnt(0)")
        spread(A,withreads(rowm(r2,2),rowreads(r3,3),[0,1,2,3,4,5]),epi_qk(0,scale)+epi_qk(1,scale),0,E3L)
        if E2S: stamp(A,5,E2S)
        A.i("s_waitcnt lgkmcnt(0)")
        t=spread(A,rowm(r3,3),epi_qk(2,scale),7,23 if E3L==23 else 19)
        if t<6: A.i(f"s_nop {5-t}")
        for l in epi_qk(3,scale): A.i(l)
        if scale: A.i(f"s_branch {tag}_d")
    A.label(f"{tag}_d")
E3L=23
def final_two(A,vtype,name):
    tag=name+("_e2v" if vtype else "_e2q")
    WS=[WB[0],W2,W3,WB[1]]
    def M(xset,wset,i,ct,s2):
        xf=xset+4*(2*(i&1)+s2); wf=wset+4*ct
        d=ACC+accn(vtype,i,ct)*4
        a,b=(xf,wf) if vtype else (wf,xf)
        return f"v_mfma_f32_16x16x32_bf16 {vr(d,4)}, {vr(a,4)}, {vr(b,4)}, {vr(d,4)}"
    def phase(tp,ch,xset,reads,pos,fin):
        seq=[]
        if not fin:
            for s2 in range(2):
                for r in range(2):
                    for j in range(4): seq.append((2*tp+r,j if r==0 else 3-j,s2))
        elif vtype:
            for r in range(2):
                for j in range(4): seq.append((2*tp+r,j,0))
            for ct in range(4):
                for r in range(2): seq.append((2*tp+r,ct,1))
        else:
            for r in range(2):
                for s2 in range(2):
                    for j in range(4): seq.append((2*tp+r,j,s2))
        for n,(i,ct,s2) in enumerate(seq):
            A.i(M(xset,WS[2*ch+s2],i,ct,s2))
            for q,p in enumerate(pos):
                if p==n: A.i(reads[q])
    def epi(tp):
        if vtype:
            A.i("s_nop 1")
            for l in epi_v(tp): A.i(l)
            return
        for r in range(2):
            i=2*tp+r
            e=epi_qk(i,True)
            A.i("s_cmp_eq_u32 s78, 1")
            A.i(f"s_cbranch_scc1 {tag}_ns{i}")
            for l in e[:8]: A.i(l)
            A.label(f"{tag}_ns{i}")
            for l in e[8:]: A.i(l)
    A.i("s_waitcnt lgkmcnt(0)")
    A.i("s_waitcnt vmcnt(0)")
    A.i("s_barrier")
    if E2S: stamp(A,1,E2S)
    if E2P:
        A.i("s_cmp_lt_u32 s70, 4")
        A.i(f"s_cbranch_scc0 {tag}_yp")
        A.i(f"s_setprio {E2P}")
        A.label(f"{tag}_yp")
    if vtype: A.i(f"buffer_store_dwordx4 {vr(ONE,4)}, v{AO}, s[16:19], s38 offen {K.V_MOD}")
    else: A.i("s_mov_b32 s36, s37")
    x8=e2_xreads(vtype,XB[1],True,0)
    w80=e2_wreads(W3,True,0); w81=e2_wreads(WB[1],True,1)
    rd=w80[:2]+x8[:2]+w80[2:]+w81[:2]+x8[2:]+w81[2:]
    pos=[[0,0,1,1,2,2,3,3,4,5,6,7,8,9,10,11,12,13,14,15],[0,0,0,1,1,1,2,2,3,3,4,4,5,5,6,6,7,7,8,8]][E2R]
    phase(0,0,XB[0],rd,pos,False)
    A.i("s_waitcnt lgkmcnt(0)")
    if E2I:
        final_two_rows(A,vtype,tag,WS,M,phase)
        return
    phase(0,1,XB[1],e2_xreads(vtype,XB[0],False,1),[0,1,2,3],True)
    if E2S: stamp(A,4,E2S)
    epi(0)
    if E2S: stamp(A,5,E2S)
    A.i("s_waitcnt lgkmcnt(0)")
    phase(1,0,XB[0],e2_xreads(vtype,XB[1],True,1),[0,1,2,3],False)
    A.i("s_waitcnt lgkmcnt(0)")
    phase(1,1,XB[1],[],[],True)
    epi(1)

def mainloop(A,vtype,nomfma=False,name=None,narrow=False):
    def rds(s2,par):
        xs=[f"ds_read_b128 {vr(XB[par]+4*i,4)}, v{XA+s2} offset:{((i>>1)*4096+(i&1)*1024) if vtype else i*2048}" for i in range(4)]
        ws=[f"ds_read_b64_tr_b16 {vr(WB[par]+ct*4+2*u,2)}, v{WA+ct} offset:{s2*8192+u*1024}" for ct in range(4) for u in range(2)]
        r=[ws[0],ws[1],xs[0]]+ws[2:]+xs[1:]
        r=[r[q] for q in RORD]
        if narrow: r.append(f"ds_read_b128 {vr(XLB[par],4)}, v{XLA+s2}")
        return r
    if not nomfma:
        for l in rds(0,0): A.i(l)
    A0=A
    class F:
        def i(self,x):
            if NODMA and ('lds' in x and x.startswith('buffer') or x.startswith('s_add_u32 s30') or x.startswith('s_add_u32 m0') or x=='s_nop 0'): return
            if NORD and x.startswith('ds_read') : return
            if NOBAR and x.startswith('s_barrier'): return
            A0.i(x)
    A=F()
    pend=[] if LOADERS else dma_list(1)[K.NPRE:]+dma_list(2)
    if W4: pend=(wdma(1)+xdma(1)+wdma(2))[K.NPRE:]+batch(-1)
    step=0
    for c in range(9):
        for s2 in range(2):
            par=step&1
            last=(c==8 and s2==1)
            if EPI==2 and not nomfma and c==7:
                assert not pend and not narrow and not W4 and not PFW and not LOADERS and par==0
                final_two(A0,vtype,name)
                return
            if EPI==3 and not nomfma and c==6:
                assert not narrow and not W4 and not PFW and not LOADERS and par==0
                final_three(A0,vtype,name,pend)
                return
            if not nomfma: A.i("s_waitcnt lgkmcnt(0)")
            if s2==1 and c<8:
                while pend:
                    for l in pend.pop(0): A.i(l)
                if PFW and PFL and c==PFL-1:
                    A.i(f"buffer_load_dword v{PFV}, v{PFV}, s[12:15], s96 offen")
                if W4: A.i(f"s_waitcnt vmcnt({8 if c<6 else (6 if c==6 else 0)})")
                elif not LOADERS: A.i(f"s_waitcnt vmcnt({(6 if c<7 else 0)+(1 if (PFW and PFL and PFL-1<=c<=PFL) else 0)+(2 if (W112 and DAFD and c==0) else 0)})")
                A.i("s_barrier")
                if c+3<9 and not LOADERS: pend=dma_list(c+3)
                if W4: pend=batch(c)
                d = STAGE if (c+1)%3!=0 else -2*STAGE
                if not nomfma:
                    for r in [XA,XA+1]+list(range(WA,WA+4))+([XLA,XLA+1] if narrow else []):
                        if W4:
                            if r<WA: d = XST if (c+1)%3!=0 else -2*XST
                            else: d = WST if (c+1)%4!=0 else -3*WST
                        if d>0: A.i(f"v_add_u32 v{r}, {d}, v{r}")
                        else: A.i(f"v_subrev_u32 v{r}, {-d}, v{r}")
            if nomfma:
                k=3
                while pend and k:
                    for l in pend.pop(0): A.i(l)
                    k-=1
                step+=1
                continue
            if last and EPI==1:
                if vtype:
                    A0.i(f"buffer_store_dwordx4 {vr(ONE,4)}, v{AO}, s[16:19], s38 offen {K.V_MOD}")
                    last_step(A0,True,par,False)
                else:
                    A0.i("s_mov_b32 s36, s37")
                    A0.i("s_cmp_eq_u32 s78, 1")
                    A0.i(f"s_cbranch_scc1 {name}_last_k")
                    last_step(A0,False,par,True)
                    A0.i(f"s_branch {name}_last_done")
                    A0.label(f"{name}_last_k")
                    last_step(A0,False,par,False)
                    A0.label(f"{name}_last_done")
                return
            rd=[] if last else rds((s2+1)%2,par^1)
            rpos=RPOS; dpos=DPOS
            if EPI==2 and c==6 and s2==1:
                x7=e2_xreads(vtype,XB[0],False,0)
                w70=e2_wreads(WB[0],False,0); w71=e2_wreads(W2,False,1)
                rd=w70[:2]+x7[:2]+w70[2:]+w71[:2]+x7[2:]+w71[2:]
                rpos=[0,0,1,1,2,2,3,3,4,5,6,7,8,9,10,11,12,13,14,15]
            if EPI in (2,3) and E2D and c==5 and s2==1: dpos=[1,4,6,9,11,14]
            if EPI==3 and c==5 and s2==1:
                x6=e3_x(vtype,XB[0],0,0)
                w0=e3_w(WB[0],0,0); w1=e3_w(W2,0,1)
                rd=w0[:2]+x6[:2]+w0[2:]+w1[:2]+x6[2:]+w1[2:]
                rpos=[0,0,1,1,2,2,3,3,4,5,6,7,8,9,10,11,12,13,14,15]
            n=0
            if narrow:
                seq=[(i,(j if i%2==0 else 2-j)) for i in range(4) for j in range(3)]+[(4,3)]
                for i,ct in seq:
                    xf=XB[par]+4*i if i<4 else XLB[par]; wf=WB[par]+4*ct
                    d=ACC+accn(vtype,i&3,ct)*4
                    a,b=(xf,wf) if vtype else (wf,xf)
                    isd = bool(pend) and (n in DPOSN or (c==0 and n in DPOS0N))
                    if isd and SPLITD:
                        g=pend.pop(0)
                        for l in g[:2]:
                            if l!="s_nop 0": A.i(l)
                    A.i(f"v_mfma_f32_16x16x32_bf16 {vr(d,4)}, {vr(a,4)}, {vr(b,4)}, {vr(d,4) if step else 0}")
                    for q,p in enumerate(RPOSN):
                        if p==n and rd: A.i(rd[q])
                    if isd and SPLITD==1:
                        for l in g[3:]: A.i(l)
                    if isd and not SPLITD:
                        for l in pend.pop(0): A.i(l)
                    n+=1
                step+=1
                continue
            for i in range(4):
                for j in range(4):
                    ct=j if i%2==0 else 3-j
                    xf=XB[par]+4*i; wf=WB[par]+4*ct
                    d=ACC+accn(vtype,i,ct)*4
                    a,b=(xf,wf) if vtype else (wf,xf)
                    if PRIO==1 and n==0: A.i(f"s_setprio {1 if s2==1 else 0}")
                    if PRIO==2 and n in (0,8): A.i(f"s_setprio {(3 if n==0 else 2) if s2==1 else (1 if n==0 else 0)}")
                    if PRIO==3 and ((s2==1 and n==0) or (s2==0 and n==8)): A.i(f"s_setprio {1 if s2==1 else 0}")
                    if PRIO==4 and ((s2==1 and n in (0,12)) or (s2==0 and n==8)): A.i(f"s_setprio {(2 if n==0 else 1) if s2==1 else 0}")
                    isd = bool(pend) and (n in dpos or (c==0 and n in DPOS0))
                    if isd and SPLITD:
                        g=pend.pop(0)
                        for l in g[:2]:
                            if l!="s_nop 0": A.i(l)
                    A.i(f"v_mfma_f32_16x16x32_bf16 {vr(d,4)}, {vr(a,4)}, {vr(b,4)}, {vr(d,4) if step else 0}")
                    if isd and SPLITD==2: A.i(g[3])
                    for q,p in enumerate(rpos):
                        if p==n and rd: A.i(rd[q])
                    if isd and SPLITD==1:
                        for l in g[3:]: A.i(l)
                    if isd and not SPLITD:
                        for l in pend.pop(0): A.i(l)
                    n+=1
            step+=1

_pl={}
def getplan(m):
    if m not in _pl:
        if W112: _pl[m]=qkperm112.plan(m>>1,m&1)
        else: _pl[m]=qkperm16.plan(m)[:3]+([],)
    return _pl[m]
def NPAT(): return 10 if W112 else 9
def singles(m):
    info,tab,slots,extra=getplan(m)
    out=[]
    for (p,c),it in slots.items():
        if it[0]=='S':
            assert c>=2
            for j in range(2): out.append((2*p+j,c,info[it[1][j]]))
    return out+list(extra)
def qk_scalars112(A):
    A.i("s_cmp_eq_u32 s98, 1")
    csel(A,33,WS_KVA,WS_QA)
    csel(A,38,WS_KVB,WS_QB)
    csel(A,34,KV_HEAD,64*QT_B)
    csel(A,35,TILE_B,QT_B)
    csel(A,36,OFF_KR,1024)
    A.i(f"s_cselect_b32 s37, 1.0, {f32bits(C_SCALE)}")
    A.i("s_cselect_b32 s78, 1, 0")
    A.i("s_cmp_eq_u32 s26, 1")
    A.i("s_cselect_b32 s33, s38, s33")
    A.i("s_lshl_b32 s6, s3, 3")
    A.i("s_lshl_b32 s7, s28, 1")
    A.i("s_add_u32 s6, s6, s7")
    A.i("s_mul_i32 s38, s6, s35")
    A.i("s_add_u32 s39, s38, s35")
    A.i("s_lshl_b32 s79, s4, 1")
    A.i("s_add_u32 s79, s79, s29")
SS=84
def qk_setup(A,name):
    A.i("s_mov_b32 s72, 0x76543210")
    A.i("s_mov_b32 s73, 0xfedcba98")
    A.i("s_cmp_eq_u32 s27, 1")
    A.i(f"s_cbranch_scc1 {name}_vsetup")
    if W112:
        qk_scalars112(A)
        A.i(f"v_mov_b32 v{AM+1}, {OOB}")
        A.i(f"v_mov_b32 v{AL}, {OOB}")
    else:
        K.qk_scalars(A)
        A.i("s_lshr_b32 s79, s32, 4")
    if KRG:
        A.i("s_and_b32 s99, s78, s26")
        A.i("s_lshl_b32 s6, s3, 1")
        A.i("s_lshr_b32 s7, s28, 1")
        A.i("s_add_u32 s6, s6, s7")
        A.i(f"s_mul_i32 s6, s6, {4*TILE_B}")
        A.i("s_and_b32 s7, s28, 1")
        A.i("s_lshl_b32 s30, s7, 3")
        A.i("s_add_u32 s30, s30, s6")
        A.i("s_mul_i32 s7, s7, 4480")
        A.i("s_add_u32 s6, s6, s7")
        A.i("s_add_u32 s6, s6, 512")
        A.i("s_add_u32 s31, s38, s36")
        A.i("s_cmp_eq_u32 s99, 1")
        A.i("s_cselect_b32 s38, s6, s38")
        A.i("s_cselect_b32 s35, 2240, s35")
        A.i("s_cselect_b32 s100, s30, s31")
        A.i("s_add_u32 s39, s38, s35")
    A.i("s_mov_b32 s74, 0xffff0000")
    A.i("s_mov_b32 s75, 0")
    A.i("s_mov_b32 s92, 0")
    A.i("s_mov_b32 s93, 0xffff")
    A.i("s_mov_b32 s94, 0")
    A.i("s_mov_b32 s95, 0xffff0000")
    A.i(f"v_and_b32 v{T0}, 15, v{V_LANE}")
    A.i(f"v_lshlrev_b32 v{T1}, 4, v{T0}")
    A.i(f"v_lshrrev_b32 v{T2}, 5, v{V_LANE}")
    A.i(f"v_mul_lo_u32 v{T2}, v{T2}, s35")
    A.i(f"v_and_b32 v{T0}, 31, v{V_LANE}")
    A.i(f"v_lshl_add_u32 v{L16}, v{T0}, 4, v{T2}")
    A.i(f"v_lshl_add_u32 v{L4}, v{T0}, 2, v{T2}")
    if KRG:
        A.i(f"v_lshrrev_b32 v{T2}, 5, v{V_LANE}")
        A.i(f"v_lshlrev_b32 v{T2}, 2, v{T2}")
        A.i(f"v_lshl_add_u32 v{T2}, v{T0}, 4, v{T2}")
        A.i("s_cmp_eq_u32 s99, 1")
        A.i("s_cselect_b64 vcc, -1, 0")
        A.i(f"v_cndmask_b32 v{L4}, v{L4}, v{T2}, vcc")
    for m in range(NPAT()):
        if m<NPAT()-1:
            A.i(f"s_cmp_lg_u32 s79, {m}")
            A.i(f"s_cbranch_scc1 {name}_setup{m+1}")
        info,tab,slots,extra=getplan(m)
        for h in range(2):
            v=0
            for q in range(2):
                for c in range(4): v|=tab[2*h+q][c]<<(4*(4*q+c))
            A.i(f"s_mov_b32 s{72+h}, {hex(v)}")
        for p in range(2):
            if (p,0) not in slots: continue
            for c in range(4):
                it=slots[(p,c)]; r=80+c
                if it[0]=='G':
                    _,head,sl=info[it[1][0]]
                    A.i(f"s_mul_i32 s{r}, s34, {head}")
                    A.i(f"s_add_u32 s{r}, s{r}, s33")
                    if sl>>1: A.i(f"s_add_u32 s{r}, s{r}, {(sl>>1)*512}")
                else: A.i(f"s_mov_b32 s{r}, {OOB}")
            A.i(f"v_mov_b32 v{T3}, s80")
            A.i(f"v_mov_b32 v{T4}, s81")
            A.i(f"v_cndmask_b32 v{T3}, v{T3}, v{T4}, s[74:75]")
            A.i(f"v_mov_b32 v{T4}, s82")
            A.i(f"v_cndmask_b32 v{T3}, v{T3}, v{T4}, s[92:93]")
            A.i(f"v_mov_b32 v{T4}, s83")
            A.i(f"v_cndmask_b32 v{T3}, v{T3}, v{T4}, s[94:95]")
            A.i(f"v_add_u32 v{AM+p}, v{T3}, v{T1}")
        k=SS
        for (ct,c,inf) in singles(m):
            if inf[0]=='M':
                A.i(f"s_mul_i32 s{k}, s34, {inf[1]}")
                A.i(f"s_add_u32 s{k}, s{k}, s33")
                A.i(f"s_add_u32 s{k}, s{k}, s38")
                cst=(inf[2]>>1)*512+(inf[2]&1)*8
                if cst: A.i(f"s_add_u32 s{k}, s{k}, {cst}")
                k+=1
            else:
                A.i(f"s_mul_i32 s{k}, s34, {2*inf[1]}")
                A.i(f"s_add_u32 s{k}, s{k}, s33")
                if KRG: A.i(f"s_add_u32 s{k}, s{k}, s100")
                else:
                    A.i(f"s_add_u32 s{k}, s{k}, s38")
                    A.i(f"s_add_u32 s{k}, s{k}, s36")
                A.i(f"s_add_u32 s{k+1}, s{k}, s34")
                k+=2
        assert k<=92
        if W112 and (m&1) and (m>>1)<4:
            i=m>>1
            A.i(f"v_lshrrev_b32 v{T3}, 5, v{V_LANE}")
            A.i(f"v_lshlrev_b32 v{T3}, 9, v{T3}")
            A.i(f"v_bfe_u32 v{T4}, v{V_LANE}, 4, 1")
            A.i(f"v_lshl_add_u32 v{T3}, v{T4}, 3, v{T3}")
            A.i(f"v_add_u32 v{AL}, v{T3}, v{T1}")
            A.i(f"s_mul_i32 s{SL}, s34, 31")
            A.i(f"s_add_u32 s{SL}, s{SL}, s33")
            A.i(f"s_add_u32 s{SL}, s{SL}, s{38+(i>>1)}")
            if i&1: A.i(f"s_add_u32 s{SL}, s{SL}, 256")
        A.i(f"s_branch {name}_setup_done")
        if m<NPAT()-1: A.label(f"{name}_setup{m+1}")
    A.label(f"{name}_vsetup")
    if W112:
        A.i("s_mul_i32 s6, s4, 112")
        A.i("s_lshl_b32 s7, s29, 6")
        A.i("s_add_u32 s32, s6, s7")
    else:
        A.i("s_lshl_b32 s6, s4, 7")
        A.i(f"s_lshl_b32 s7, s{97 if K.MIX else 29}, 6")
        A.i("s_add_u32 s6, s6, s7")
        A.i("s_sub_u32 s32, s6, 1152")
    A.i("s_cmp_eq_u32 s26, 1")
    csel(A,33,WS_KVB+OFF_V,WS_KVA+OFF_V)
    A.i("s_lshl_b32 s6, s3, 3")
    A.i("s_lshl_b32 s7, s28, 1")
    A.i("s_add_u32 s6, s6, s7")
    A.i(f"s_mul_i32 s38, s6, {TILE_B}")
    if KRG:
        A.i("s_lshr_b32 s7, s6, 2")
        A.i(f"s_mul_i32 s7, s7, {4*TILE_B}")
        A.i("s_and_b32 s6, s6, 3")
        A.i("s_mul_i32 s6, s6, 2240")
        A.i("s_add_u32 s6, s6, s7")
        A.i("s_add_u32 s6, s6, 512")
        A.i("s_cmp_eq_u32 s26, 1")
        A.i("s_cselect_b32 s38, s6, s38")
        A.i(f"s_mov_b32 s35, {TILE_B}")
        A.i("s_cselect_b32 s35, 2240, s35")
        A.i("s_add_u32 s39, s38, s35")
    else: A.i(f"s_add_u32 s39, s38, {TILE_B}")
    A.i(f"s_mov_b32 s34, {KV_HEAD}")
    A.i(f"v_lshrrev_b32 v{T1}, 5, v{V_LANE}")
    A.i(f"v_mul_u32_u24 v{T1}, 608, v{T1}")
    A.i(f"v_bfe_u32 v{T2}, v{V_LANE}, 4, 1")
    A.i(f"v_mul_u32_u24 v{T2}, 304, v{T2}")
    A.i(f"v_add3_u32 v{T1}, v{T1}, v{T2}, s33")
    A.i(f"v_and_b32 v{T0}, 15, v{V_LANE}")
    A.i(f"v_add_u32 v{T0}, s32, v{T0}")
    for ct in range(4):
        A.i(f"v_add_u32 v{T2}, {16*ct}, v{T0}")
        if W112 and ct==3:
            A.i("s_add_u32 s6, s32, 48")
            A.i("s_cmp_eq_u32 s29, 1")
            A.i("s_cselect_b32 s6, 560, s6")
            A.i(f"v_and_b32 v{T2}, 15, v{V_LANE}")
            A.i(f"v_add_u32 v{T2}, s6, v{T2}")
        A.i(f"v_mul_u32_u24 v{T3}, 3641, v{T2}")
        A.i(f"v_lshrrev_b32 v{T3}, 16, v{T3}")
        A.i(f"v_mul_u32_u24 v{T4}, 18, v{T3}")
        A.i(f"v_sub_u32 v{T4}, v{T2}, v{T4}")
        A.i(f"v_mul_lo_u32 v{T3}, v{T3}, s34")
        A.i(f"v_lshl_add_u32 v{T3}, v{T4}, 4, v{T3}")
        A.i(f"v_add_u32 v{AD+ct}, v{T1}, v{T3}")
    if W112:
        A.i("s_and_b32 s6, s4, 1")
        A.i("s_lshl_b32 s6, s6, 3")
        A.i("s_cmp_eq_u32 s4, 4")
        A.i(f"s_cselect_b32 s6, {OOB}, s6")
        A.i("s_cmp_eq_u32 s29, 1")
        A.i("s_cselect_b32 s6, s6, 0")
        A.i(f"v_add_u32 v{AD+3}, s6, v{AD+3}")
        A.i("s_bfe_u32 s6, s4, 0x10001")
        A.i(f"s_mul_i32 s6, s6, {TILE_B}")
        A.i(f"s_add_u32 s{SL}, s38, s6")
    if FAKEV:
        if K.MIX:
            A.i("s_lshl_b32 s6, s4, 1")
            A.i("s_add_u32 s6, s6, s97")
            A.i("s_sub_u32 s6, s6, 18")
        else:
            A.i("s_mul_i32 s6, s26, 5")
            A.i("s_add_u32 s6, s6, s4")
            A.i("s_sub_u32 s6, s6, 9")
        A.i("s_lshl_b32 s6, s6, 3")
        A.i("s_add_u32 s6, s6, s3")
        A.i("s_lshl_b32 s6, s6, 3")
        A.i("s_add_u32 s6, s6, s5")
        A.i("s_lshl_b32 s6, s6, 13")
        A.i("s_add_u32 s6, s6, 0x1900000")
        for ct in range(4):
            A.i(f"v_lshlrev_b32 v{T2}, 4, v{V_LANE}")
            A.i(f"v_add_u32 v{T2}, {1024*ct}, v{T2}")
            A.i(f"v_add_u32 v{AD+ct}, s6, v{T2}")
        A.i("s_mov_b32 s38, 0")
        A.i("s_mov_b32 s39, 4096")
    A.i("s_mul_i32 s6, s32, 3641")
    A.i("s_lshr_b32 s6, s6, 16")
    A.i(f"v_lshrrev_b32 v{T0}, 3, v{V_LANE}")
    A.i(f"v_add_u32 v{T0}, s6, v{T0}")
    A.i(f"v_mul_u32_u24 v{T1}, 18, v{T0}")
    A.i(f"v_add_u32 v{T1}, 17, v{T1}")
    A.i(f"v_mul_lo_u32 v{T0}, v{T0}, s34")
    A.i(f"v_bfe_u32 v{T2}, v{V_LANE}, 2, 1")
    if KRG: A.i(f"v_mul_lo_u32 v{T2}, v{T2}, s35")
    else: A.i(f"v_mul_u32_u24 v{T2}, {TILE_B}, v{T2}")
    A.i(f"v_add_u32 v{T0}, v{T0}, v{T2}")
    A.i(f"v_bfe_u32 v{T2}, v{V_LANE}, 1, 1")
    A.i(f"v_mul_u32_u24 v{T2}, 608, v{T2}")
    A.i(f"v_add_u32 v{T0}, v{T0}, v{T2}")
    A.i(f"v_and_b32 v{T2}, 1, v{V_LANE}")
    A.i(f"v_mul_u32_u24 v{T2}, 304, v{T2}")
    A.i(f"v_add3_u32 v{T0}, v{T0}, v{T2}, s33")
    A.i(f"v_add_u32 v{T0}, {18*16}, v{T0}")
    if W112:
        A.i("s_cmp_eq_u32 s4, 4")
        A.i("s_cselect_b32 s7, 64, 48")
        A.i("s_cmp_eq_u32 s29, 1")
        A.i("s_cselect_b32 s7, s7, 64")
        A.i("s_add_u32 s6, s32, s7")
    else: A.i("s_add_u32 s6, s32, 64")
    A.i(f"v_mov_b32 v{T2}, {OOB}")
    A.i(f"v_cmp_gt_u32 vcc, s6, v{T1}")
    for r in range(4): A.i(f"v_mov_b32 v{ONE+r}, 0x3f803f80")
    A.i(f"v_cndmask_b32 v{AO}, v{T2}, v{T0}, vcc")
    A.label(f"{name}_setup_done")

def qk_epilogue(A,name,prof):
    if not EPI: qk_epilogue_main(A,name)
    qk_epilogue_singles(A,name,prof)
def qk_epilogue_narrow(A,name):
    A.i("s_nop 7")
    valid=[4*i+ct for i in range(4) for ct in range(4) if ct<3 or i==0]
    A.i("s_cmp_eq_u32 s78, 1")
    A.i(f"s_cbranch_scc1 {name}_noscale_n")
    A.i("s_mov_b32 s36, s37")
    for n in valid:
        for q in range(2): A.i(f"v_pk_mul_f32 {vr(ACC+4*n+2*q,2)}, {vr(ACC+4*n+2*q,2)}, s[36:37]")
    A.label(f"{name}_noscale_n")
    for i in range(4):
        for ct in range(4):
            n=4*i+ct
            if n not in valid: continue
            for q in range(2): A.i(f"v_cvt_pk_bf16_f32 v{ACC+2*n+q}, v{ACC+4*n+2*q}, v{ACC+4*n+2*q+1}")
        A.i(f"buffer_store_dwordx4 {vr(ACC+8*i,4)}, v{AM}, s[16:19], s{38+(i>>1)} offen offset:{(i&1)*256} {K.QK_MOD}".rstrip())
def qk_epilogue_main(A,name):
    A.i("s_nop 7")
    mods=K.TMOD
    def body(mod):
        for i in range(4):
            for ct in range(4):
                n=4*i+ct
                for q in range(2): A.i(f"v_cvt_pk_bf16_f32 v{ACC+2*n+q}, v{ACC+4*n+2*q}, v{ACC+4*n+2*q+1}")
            for p in range(2):
                md=mod if not QKI else ('sc1' if QKI[1+2*i+p]=='1' else '')
                A.i(f"buffer_store_dwordx4 {vr(ACC+8*i+4*p,4)}, v{AM+p}, s[16:19], s{38+(i>>1)} offen offset:{(i&1)*256} {md}".rstrip())
    A.i("s_cmp_eq_u32 s78, 1")
    A.i(f"s_cbranch_scc1 {name}_noscale")
    A.i("s_mov_b32 s36, s37")
    for r in range(0,64,2): A.i(f"v_pk_mul_f32 {vr(ACC+r,2)}, {vr(ACC+r,2)}, s[36:37]")
    if mods:
        m=[x.replace('-','') for x in mods]
        A.i("s_cmp_eq_u32 s26, 1")
        A.i(f"s_cbranch_scc1 {name}_qb")
        body(m[0]); A.i(f"s_branch {name}_qkdone")
        A.label(f"{name}_qb")
        body(m[1]); A.i(f"s_branch {name}_qkdone")
        A.label(f"{name}_noscale")
        A.i("s_cmp_eq_u32 s26, 1")
        A.i(f"s_cbranch_scc1 {name}_kb")
        body(m[2]); A.i(f"s_branch {name}_qkdone")
        A.label(f"{name}_kb")
        body(m[3])
        A.label(f"{name}_qkdone")
        return
    A.label(f"{name}_noscale")
    body(K.QK_MOD)
def qk_epilogue_singles(A,name,prof):
    for m in range(NPAT()):
        if m<NPAT()-1:
            A.i(f"s_cmp_lg_u32 s79, {m}")
            A.i(f"s_cbranch_scc1 {name}_epi{m+1}")
        if W112 and (m&1) and (m>>1)<4:
            A.i(f"buffer_store_dwordx2 {vr(ACC+6,2)}, v{AL}, s[16:19], s{SL} offen {K.SM_MOD}".rstrip())
        S=singles(m)
        cts=sorted(set(x[0] for x in S))
        X=lambda i,ct,d: ACC+2*(4*i+ct)+d
        A.i("s_nop 1")
        for ct in cts:
            for d in range(2):
                A.i(f"v_permlane32_swap_b32 v{X(0,ct,d)}, v{X(2,ct,d)}")
                A.i(f"v_permlane32_swap_b32 v{X(1,ct,d)}, v{X(3,ct,d)}")
        A.i("s_nop 1")
        for ct in cts:
            for d in range(2):
                A.i(f"v_permlane16_swap_b32 v{X(2,ct,d)}, v{X(3,ct,d)}")
                if any(x[0]==ct and x[1]<2 for x in S): A.i(f"v_permlane16_swap_b32 v{X(0,ct,d)}, v{X(1,ct,d)}")
        A.i("s_nop 1")
        k=SS
        for (ct,c,inf) in ([] if NOS else S):
            b=X(c,ct,0)
            if inf[0]=='M':
                A.i(f"buffer_store_dwordx2 {vr(b,2)}, v{L16}, s[16:19], s{k} offen {K.SM_MOD}"); k+=1
            else:
                A.i(f"buffer_store_dword v{b}, v{L4}, s[16:19], s{k} offen {K.SR_MOD}")
                A.i(f"buffer_store_dword v{b+1}, v{L4}, s[16:19], s{k+1} offen {K.SR_MOD}"); k+=2
        if K.MONO: A.i(f"s_mov_b32 s97, {8+sum(1 if x[2][0]=='M' else 2 for x in S)}")
        if m<NPAT()-1:
            A.i(f"s_branch {name}_epi_done")
            A.label(f"{name}_epi{m+1}")
    A.label(f"{name}_epi_done")
    if K.MONO:
        mono_next(A,name)
        return
    if prof: A.i("s_waitcnt vmcnt(0)")
    stamp(A,3,prof)
    stamp_store(A,6,prof,name)
    A.i("s_endpgm")

def mono_next(A,name):
    A.i("s_cmp_eq_u32 s96, 0")
    A.i(f"s_cbranch_scc1 {name}_trans")
    A.i(f"s_branch {name}_cont")
def mono_defer(A,name,kind):
    A.i(f"s_mov_b32 s96, {kind}")
    A.i("s_cmp_eq_u32 s26, 0")
    A.i(f"s_cbranch_scc1 {name}_trans")
    A.i("s_mov_b32 s96, 0")
    A.label(f"{name}_epi_{'qk' if kind==1 else 'v'}")
def v_epilogue_narrow(A,name,prof):
    A.i(f"buffer_store_dwordx4 {vr(ONE,4)}, v{AO}, s[16:19], s38 offen {K.V_MOD}".rstrip())
    A.i("s_nop 7")
    for tp in range(2):
        for ct in range(3):
            n=(tp*4+ct)*2
            for q in range(4): A.i(f"v_cvt_pk_bf16_f32 v{ACC+2*n+q}, v{ACC+4*n+2*q}, v{ACC+4*n+2*q+1}")
            A.i(f"buffer_store_dwordx4 {vr(ACC+2*n,4)}, v{AD+ct}, s[16:19], s{38+tp} offen {K.V_MOD}".rstrip())
        if tp==0:
            for q in range(2): A.i(f"v_cvt_pk_bf16_f32 v{ACC+12+q}, v{ACC+24+2*q}, v{ACC+24+2*q+1}")
            A.i(f"buffer_store_dwordx2 {vr(ACC+12,2)}, v{AD+3}, s[16:19], s{SL} offen {K.V_MOD}".rstrip())
    if prof: A.i("s_waitcnt vmcnt(0)")
    stamp(A,3,prof)
    stamp_store(A,6,prof,name+"_vn")
    A.i("s_endpgm")
def v_epilogue(A,name,prof):
    if not EPI:
        A.i(f"buffer_store_dwordx4 {vr(ONE,4)}, v{AO}, s[16:19], s38 offen {K.V_MOD}")
        A.i("s_nop 7")
        for tp in range(2):
            for l in epi_v(tp): A.i(l)
    if K.MONO:
        A.i("s_mov_b32 s97, 9")
        mono_next(A,name)
        return
    if prof: A.i("s_waitcnt vmcnt(0)")
    stamp(A,3,prof)
    stamp_store(A,6,prof,name)
    A.i("s_endpgm")

def gen_k1(A,name="k1_qkv_kernel",prof=False):
    if LOADERS: K.LAUNCH=[(name,256,768,147456)]
    if W4: K.LAUNCH=[(name,256,512,163840)]
    kernel_header(A,name)
    A.i("s_cmp_ge_u32 s2, 256")
    A.i(f"s_cbranch_scc1 {name}_end")
    A.i(f"s_load_dwordx2 s[20:21], s[0:1], {KA_WS}")
    A.i(f"s_load_dwordx2 s[8:9], s[0:1], {KA_X}")
    if prof: A.i("s_memrealtime s[58:59]")
    stamp(A,0,prof)
    A.i(f"v_and_b32 v{V_LANE}, 63, v0")
    A.i(f"v_lshrrev_b32 v{T0}, 6, v0")
    A.i("s_nop 0")
    A.i(f"v_readfirstlane_b32 s5, v{T0}")
    if AUXDIE>=0:
        A.i("s_and_b32 s6, s2, 7")
        A.i("s_lshr_b32 s7, s2, 3")
        A.i(f"s_cmp_gt_u32 s6, {AUXDIE}")
        A.i("s_cselect_b32 s30, 1, 0")
        A.i("s_sub_u32 s30, s6, s30")
        A.i("s_lshl_b32 s30, s30, 3")
        A.i("s_lshr_b32 s31, s7, 2")
        A.i("s_add_u32 s30, s30, s31")
        A.i("s_cmp_ge_u32 s30, 28")
        A.i("s_cselect_b32 s31, 1, 0")
        A.i("s_cselect_b32 s3, 28, 0")
        A.i("s_sub_u32 s30, s30, s3")
        A.i("s_mul_i32 s3, s30, 37")
        A.i("s_lshr_b32 s3, s3, 8")
        A.i("s_mul_i32 s4, s3, 7")
        A.i("s_sub_u32 s30, s30, s4")
        A.i("s_lshl_b32 s30, s30, 5")
        A.i("s_lshl_b32 s3, s3, 1")
        A.i("s_or_b32 s30, s30, s3")
        A.i("s_or_b32 s30, s30, s31")
        A.i("s_and_b32 s3, s7, 3")
        A.i("s_lshl_b32 s3, s3, 3")
        A.i("s_or_b32 s30, s30, s3")
        A.i("s_add_u32 s7, s7, 224")
        A.i(f"s_cmp_eq_u32 s6, {AUXDIE}")
        A.i("s_cselect_b32 s2, s7, s30")
    if CPF1:
        A.i("s_nop 3")
        code_touch(A,name+"_ct1",name,name+"_gate0",5,62,60,72,True)
    A.i(f"s_cmp_ge_u32 s2, {240 if W112 else 224}")
    A.i(f"s_cbranch_scc1 {name}_gate0")
    A.i(f"s_load_dwordx2 s[12:13], s[0:1], {KA_AWQKV}")
    A.i(f"s_load_dwordx2 s[14:15], s[0:1], {KA_BWQKV}")
    if EPRIO: A.i("s_setprio 1")
    A.i("s_mov_b32 s70, s5")
    if W112:
        A.i("s_and_b32 s6, s2, 7")
        A.i("s_lshr_b32 s7, s2, 3")
        A.i("s_lshr_b32 s26, s6, 2")
        A.i("s_and_b32 s3, s6, 1")
        A.i("s_lshl_b32 s3, s3, 2")
        A.i("s_bfe_u32 s31, s6, 0x10001")
        A.i("s_lshl_b32 s4, s31, 3")
        A.i("s_lshr_b32 s30, s7, 2")
        A.i("s_add_u32 s4, s4, s30")
        A.i("s_and_b32 s30, s7, 3")
        A.i("s_lshl_b32 s31, s31, 1")
        A.i("s_cmp_ge_u32 s7, 28")
        A.i("s_cselect_b32 s4, 7, s4")
        A.i("s_cselect_b32 s31, s31, 0")
        A.i("s_add_u32 s30, s30, s31")
        A.i("s_add_u32 s3, s3, s30")
        A.i("s_mul_i32 s6, s4, 52")
        A.i("s_lshr_b32 s98, s6, 8")
        A.i("s_mul_i32 s6, s98, 5")
        A.i("s_sub_u32 s4, s4, s6")
        A.i("s_cmp_eq_u32 s98, 2")
    else:
        A.i("s_and_b32 s6, s2, 7")
        A.i("s_lshr_b32 s7, s2, 3")
        A.i("s_and_b32 s3, s6, 1")
        A.i("s_lshl_b32 s3, s3, 2")
        A.i("s_and_b32 s30, s7, 3")
        A.i("s_add_u32 s3, s3, s30")
        A.i("s_lshr_b32 s6, s6, 1")
        if CGMAP:
            A.i("s_lshl_b32 s6, s6, 2")
            A.i(f"s_lshr_b32 s6, {hex(sum(c<<(4*k) for k,c in enumerate(CGMAP)))}, s6")
            A.i("s_and_b32 s6, s6, 3")
        if CBTAB:
            assert sorted(x for g in CBTAB for x in g)==list(range(28))
            A.i("s_lshr_b32 s7, s7, 2")
            A.i("s_lshl_b32 s7, s7, 3")
            for p in range(4):
                v=sum(c<<(8*k) for k,c in enumerate(CBTAB[p]))
                if p: A.i(f"s_cmp_eq_u32 s6, {p}")
                for h in range(2):
                    w=(v>>(32*h))&0xffffffff
                    if p==0: A.i(f"s_mov_b32 s{80+h}, {hex(w)}")
                    else: A.i(f"s_cselect_b32 s{80+h}, {hex(w)}, s{80+h}")
            A.i("s_lshr_b64 s[80:81], s[80:81], s7")
            A.i("s_and_b32 s4, s80, 0xff")
        else:
            A.i("s_mul_i32 s6, s6, 7")
            A.i("s_lshr_b32 s7, s7, 2")
            A.i("s_add_u32 s4, s6, s7")
        if K.MIX:
            A.i("s_cmp_ge_u32 s4, 27")
            A.i(f"s_cbranch_scc1 {name}_idle")
            A.i("s_cmp_lt_u32 s5, 4")
            A.i("s_cselect_b32 s26, 1, 0")
            if K.MONO: A.i("s_mov_b32 s67, 1")
            A.i("s_lshl_b32 s96, s4, 7")
            A.i("s_and_b32 s97, s4, 1")
            A.i("s_lshr_b32 s4, s4, 1")
        else:
            A.i("s_cmp_ge_u32 s4, 14")
            A.i("s_cselect_b32 s26, 1, 0")
            A.i("s_mul_i32 s6, s26, 14")
            A.i("s_sub_u32 s4, s4, s6")
        A.i("s_cmp_ge_u32 s4, 9")
    A.i("s_cselect_b32 s27, 1, 0")
    A.i("s_cselect_b32 s30, 0, 64")
    A.i("s_cselect_b32 s31, 64, 0")
    A.i("s_and_b32 s28, s5, 3")
    A.i("s_lshr_b32 s29, s5, 2")
    if LOADERS:
        A.i("s_cmp_ge_u32 s5, 8")
        A.i(f"s_cbranch_scc1 {name}_loader")
    else: startup_dma(A,prof)
    startup_rest(A,name,prof)
    if LOADERS:
        A.label(f"{name}_loader")
        loader(A,name,prof)
    if K.MIX and not K.MONO:
        A.label(f"{name}_idle")
        A.i("s_endpgm")
    A.label(f"{name}_gate0")
    if LOADERS:
        A.i("s_cmp_ge_u32 s5, 8")
        A.i(f"s_cbranch_scc1 {name}_end")
    if W112: k1aux.aux16(A,name,prof,DAFD)
    else: K.gen_gate(A,name,prof)
    if not K.MONO: kernel_footer(A,name,244 if W112 else (168 if NARROW else (192 if EPI==2 else (248 if EPI==3 else NV))))

def ws_srd(A):
    A.i("s_mov_b32 s16, s20")
    A.i("s_and_b32 s17, s21, 0xffff")
    A.i("s_mov_b32 s18, 0x2000000")
    A.i("s_mov_b32 s19, 0x20000")
def startup_dma(A,prof):
    A.i(f"v_lshrrev_b32 v{T0}, 3, v{V_LANE}")
    A.i(f"v_mul_u32_u24 v{T0}, 1152, v{T0}")
    A.i(f"v_and_b32 v{T1}, 7, v{V_LANE}")
    A.i(f"v_lshrrev_b32 v{T2}, 4, v{V_LANE}")
    A.i(f"v_xor_b32 v{T1}, v{T1}, v{T2}")
    A.i(f"v_lshl_add_u32 v{DXE}, v{T1}, 4, v{T0}")
    A.i(f"v_xor_b32 v{DXO}, 64, v{DXE}")
    A.i(f"v_xor_b32 v{DX1}, s30, v{DXE}")
    A.i(f"v_xor_b32 v{DX2}, s31, v{DXE}")
    A.i(f"v_mul_u32_u24 v{T0}, 3456, v{T2}")
    A.i(f"v_and_b32 v{T1}, 15, v{V_LANE}")
    A.i(f"v_lshlrev_b32 v{T2}, 2, v{T2}")
    A.i(f"v_xor_b32 v{T1}, v{T1}, v{T2}")
    A.i("s_and_b32 s6, s5, 1")
    A.i("s_lshl_b32 s6, s6, 1")
    A.i(f"v_xor_b32 v{T1}, s6, v{T1}")
    if K.MIX:
        A.i(f"v_cmp_gt_u32 vcc, 8, v{T1}")
        A.i(f"v_and_b32 v{T1}, 7, v{T1}")
    A.i(f"v_lshl_add_u32 v{DW}, v{T1}, 4, v{T0}")
    if W112:
        A.i("s_mul_i32 s6, s4, 224")
        A.i("s_sub_u32 s7, 896, s6")
        A.i(f"v_mov_b32 v{T0}, s7")
        A.i(f"v_cmp_le_u32 vcc, 14, v{T1}")
        A.i(f"v_cndmask_b32 v{T0}, 0, v{T0}, vcc")
        if not WAL: A.i(f"v_add_u32 v{DW}, v{DW}, v{T0}")
        if WAL==1:
            A.i("s_lshl_b32 s6, s4, 8")
            A.i("s_min_u32 s6, s6, 896")
        A.i("s_mul_i32 s7, s98, 1152")
        A.i("s_add_u32 s96, s6, s7")
    A.i("s_lshl_b32 s6, s3, 8")
    A.i("s_lshl_b32 s7, s5, 5")
    A.i("s_add_u32 s6, s6, s7")
    A.i("s_mul_i32 s22, s6, 1152")
    A.i(f"s_mul_i32 s23, s5, {8*3456}")
    if K.MIX:
        A.i("s_add_u32 s23, s23, s96")
        A.i(f"v_add_u32 v{DW}, s23, v{DW}")
    elif W112:
        A.i("s_add_u32 s23, s23, s96")
    else:
        A.i("s_lshl_b32 s6, s4, 8")
        A.i("s_add_u32 s23, s23, s6")
    A.i("s_lshl_b32 s24, s5, 12")
    A.i("s_lshl_b32 s25, s5, 11")
    A.i(f"s_add_u32 s25, s25, {woff()}")
    A.i("s_waitcnt lgkmcnt(0)")
    A.i("s_and_b32 s9, s9, 0xffff")
    A.i(f"s_mov_b32 s10, {2048*1152}")
    A.i("s_mov_b32 s11, 0x20000")
    if K.MIX:
        A.i(f"v_mov_b32 v{T0}, s12")
        A.i(f"v_mov_b32 v{T1}, s14")
        A.i(f"v_mov_b32 v{T2}, s13")
        A.i(f"v_mov_b32 v{T3}, s15")
        A.i(f"v_cndmask_b32 v{T0}, v{T0}, v{T1}, vcc")
        A.i(f"v_cndmask_b32 v{T2}, v{T2}, v{T3}, vcc")
        A.i(f"v_add_co_u32 v{WP}, vcc, v{T0}, v{DW}")
        A.i(f"v_addc_co_u32 v{WP+1}, vcc, 0, v{T2}, vcc")
        A.i(f"v_add_co_u32 v{WP+2}, vcc, {4*3456}, v{WP}")
        A.i(f"v_addc_co_u32 v{WP+3}, vcc, 0, v{WP+1}, vcc")
    else:
        A.i("s_cmp_eq_u32 s26, 1")
        A.i("s_cselect_b32 s12, s14, s12")
        A.i("s_cselect_b32 s13, s15, s13")
        A.i("s_and_b32 s13, s13, 0xffff")
        A.i(f"s_mov_b32 s14, {576*3456}")
        A.i("s_mov_b32 s15, 0x20000")
    stamp(A,4,prof)
    for n,g in enumerate((xdma(0)+wdma(0)+(wdma(1)+xdma(1)+wdma(2))[:K.NPRE]) if W4 else dma_list(0)+dma_list(1)[:K.NPRE]):
        if ORD and n==6: A.i("s_barrier")
        if EPRIO and n==6: A.i("s_setprio 0")
        for l in g: A.i(l)
    if PFW: prefetch_w(A)
    if W112 and DAFD:
        ws_srd(A)
        k1aux.daf_marks(A,64)
    stamp(A,5,prof)

def startup_rest(A,name,prof):
    if LOADERS:
        stamp(A,4,prof);
    else: ws_srd(A)
    A.i(f"v_and_b32 v{T0}, 15, v{V_LANE}")
    A.i(f"v_and_b32 v{T3}, 8, v{V_LANE}")
    A.i(f"v_mul_u32_u24 v{T3}, s27, v{T3}")
    A.i(f"v_add_u32 v{T0}, v{T0}, v{T3}")
    A.i(f"v_lshrrev_b32 v{T1}, 4, v{V_LANE}")
    A.i(f"v_bfe_u32 v{T2}, v{V_LANE}, 1, 3")
    A.i(f"v_xor_b32 v{T2}, v{T1}, v{T2}")
    A.i(f"v_lshlrev_b32 v{T2}, 4, v{T2}")
    A.i(f"v_lshl_add_u32 v{T2}, v{T0}, 7, v{T2}")
    A.i("s_lshl_b32 s6, s28, 13")
    A.i(f"v_add_u32 v{XA}, s6, v{T2}")
    A.i(f"v_xor_b32 v{XA+1}, 64, v{XA}")
    if W112 or NARROW:
        A.i("s_and_b32 s6, s4, 3")
        A.i("s_lshl_b32 s7, s6, 11")
        A.i("s_lshr_b32 s30, s6, 1")
        A.i("s_lshl_b32 s30, s30, 12")
        A.i("s_and_b32 s6, s6, 1")
        A.i("s_lshl_b32 s6, s6, 10")
        A.i("s_add_u32 s6, s6, s30")
        A.i("s_cmp_eq_u32 s27, 1")
        A.i("s_cselect_b32 s6, s6, s7")
        A.i(f"v_add_u32 v{XLA}, s6, v{XA}")
        A.i(f"v_add_u32 v{XLA+1}, s6, v{XA+1}")
    qk_setup(A,name)
    A.i(f"v_lshrrev_b32 v{T1}, 4, v{V_LANE}")
    A.i(f"v_bfe_u32 v{T0}, v{V_LANE}, 2, 2")
    A.i(f"v_lshl_add_u32 v{T2}, v{T1}, 3, v{T0}")
    A.i(f"v_lshlrev_b32 v{T2}, 8, v{T2}")
    A.i(f"v_add_u32 v{T2}, {woff()}, v{T2}")
    A.i(f"v_and_b32 v{T1}, 1, v{T1}")
    A.i(f"v_lshlrev_b32 v{T1}, 2, v{T1}")
    A.i(f"v_lshl_or_b32 v{T0}, v{T0}, 3, v{T1}")
    A.i("s_lshl_b32 s6, s29, 4")
    A.i(f"v_xor_b32 v{T0}, s6, v{T0}")
    A.i(f"v_and_b32 v{T1}, 3, v{V_LANE}")
    A.i(f"v_lshlrev_b32 v{T1}, 2, v{T1}")
    for ct in range(4):
        A.i(f"v_add_u32 v{T3}, {16*(ct&1)}, v{T1}")
        A.i(f"v_lshrrev_b32 v{T3}, v{T3}, s{72+(ct>>1)}")
        A.i(f"v_and_b32 v{T3}, 15, v{T3}")
        A.i(f"v_xor_b32 v{T3}, v{T3}, v{T0}")
        A.i(f"v_lshl_add_u32 v{WA+ct}, v{T3}, 3, v{T2}")
    if K.MONO:
        A.i("s_lshr_b32 s6, s96, 7")
        A.i("s_mul_i32 s7, s6, 57")
        A.i("s_lshr_b32 s7, s7, 9")
        A.i("s_mul_i32 s30, s7, 9")
        A.i("s_sub_u32 s6, s6, s30")
        A.i("s_lshl_b32 s7, s7, 4")
        A.i("s_add_u32 s7, s7, s3")
        A.i(f"s_add_u32 s7, s7, {WS_FLAGB}")
        A.i(f"s_mul_i32 s30, s6, {64*3641}")
        A.i("s_lshr_b32 s30, s30, 16")
        A.i(f"v_add_u32 v{T0}, s30, v{V_LANE}")
        A.i(f"v_mul_u32_u24 v{T1}, 18, v{T0}")
        A.i(f"v_lshrrev_b32 v{T2}, 6, v{T1}")
        A.i(f"v_cmp_ne_u32 vcc, s6, v{T2}")
        A.i(f"v_cndmask_b32 v{T2}, 0, 8, vcc")
        A.i(f"v_lshl_add_u32 v{T2}, v{T0}, 7, v{T2}")
        A.i(f"v_add_u32 v{T2}, s7, v{T2}")
        A.i("s_add_u32 s6, s6, 1")
        A.i("s_lshl_b32 s6, s6, 6")
        A.i("s_min_u32 s6, s6, 576")
        A.i(f"v_cmp_gt_u32 vcc, s6, v{T1}")
        A.i(f"v_mov_b32 v{T3}, {OOB}")
        A.i(f"v_cndmask_b32 v{K.FLV}, v{T3}, v{T2}, vcc")
    if LOADERS:
        A.i("s_waitcnt lgkmcnt(0)")
        ws_srd(A)
        stamp(A,5,prof)
    else: A.i(f"s_waitcnt vmcnt({K.NPRE+(1 if (PFW and not PFL) else 0)+(2 if (W112 and DAFD) else 0)})")
    A.i("s_barrier")
    stamp(A,1,prof)
    A.i("s_cmp_eq_u32 s27, 1")
    A.i(f"s_cbranch_scc1 {name}_vtype")
    if W112 or NARROW:
        A.i("s_cmp_eq_u32 s29, 1" if NARROW!=2 else "s_cmp_eq_u32 s29, s29")
        A.i(f"s_cbranch_scc1 {name}_qkn")
        mainloop(A,False,name=name)
        stamp(A,2,prof)
        qk_epilogue_main(A,name)
        A.i(f"s_branch {name}_qks")
        A.label(f"{name}_qkn")
        mainloop(A,False,name=name,narrow=True)
        stamp(A,2,prof)
        qk_epilogue_narrow(A,name)
        A.label(f"{name}_qks")
        qk_epilogue_singles(A,name,prof)
        A.label(f"{name}_vtype")
        A.i("s_cmp_eq_u32 s29, 1" if NARROW!=2 else "s_cmp_eq_u32 s29, s29")
        A.i(f"s_cbranch_scc1 {name}_vn")
        mainloop(A,True,name=name)
        stamp(A,2,prof)
        v_epilogue(A,name,prof)
        A.label(f"{name}_vn")
        mainloop(A,True,name=name,narrow=True)
        stamp(A,2,prof)
        v_epilogue_narrow(A,name,prof)
        return
    mainloop(A,False,name=name)
    if PRIO: A.i("s_setprio 0")
    stamp(A,2,prof)
    if NOA:
        A.i("s_cmp_eq_u32 s26, 0" if NOA==1 else "s_cmp_eq_u32 s29, 1")
        A.i(f"s_cbranch_scc1 {name}_noa")
    if K.MONO: mono_defer(A,name,1)
    qk_epilogue(A,name,prof)
    A.label(f"{name}_vtype")
    if SKIPPAD and not K.MIX:
        A.i("s_cmp_ge_u32 s32, 576")
        A.i(f"s_cbranch_scc1 {name}_pad")
    mainloop(A,True,name=name)
    if PRIO: A.i("s_setprio 0")
    stamp(A,2,prof)
    if not SKIPPAD and not K.MIX:
        A.i("s_cmp_ge_u32 s32, 576")
        A.i(f"s_cbranch_scc1 {name}_end")
    if NOA:
        A.i("s_cmp_eq_u32 s26, 0" if NOA==1 else "s_cmp_eq_u32 s29, 1")
        A.i(f"s_cbranch_scc1 {name}_noa")
    if K.MONO: mono_defer(A,name,2)
    v_epilogue(A,name,prof)
    if NOA:
        A.label(f"{name}_noa")
        stamp(A,3,prof)
        stamp_store(A,6,prof,name+"_x")
        A.i("s_endpgm")
    if SKIPPAD and not K.MIX:
        A.label(f"{name}_pad")
        mainloop(A,True,nomfma=True)
        A.i("s_endpgm")
```

```python
from asmlib import *
from k2 import stamp, stamp_store
import k1 as K
import qkperm16
import qkperm112
import k1aux
from k1 import C_SCALE,f32bits,csel,STAGE,WOFF,OOB
V_LANE=1; XA=2; WA=4; DXE=8; DXO=9; DW=10; T0=11; T1=12; T2=13; T3=14; T4=15
XB=[16,32]; WB=[64+64,64+64+16]
DX1=48; DX2=49; AM=50; L16=52; L4=53; AD=50; AO=54; ONE=56
ACC=64
NV=160
RPOS=[0,1,2,3,4,5,6,7,8,9,10,11]
RORD=[0,1,2,3,4,5,6,7,8,9,10,11]
DPOS=[4,9,14]
DPOS0=[2,7,12]
SKIPPAD=1
CGMAP=None
CBTAB=None
SPLITD=0
PRIO=0
EPI=0
ORD=0
FAKEV=0
NOA=0
EPRIO=0
QKI=None; VI=None
NOS=0
W112=0
CPF1=0
KRG=0
WAL=0
DAFD=1
NARROW=0
XLB=[160,164]; XLA=60; AL=62; SL=96
DPOSN=[3,7,11]; DPOS0N=[1,5,9]; RPOSN=[0,0,1,1,2,2,3,3,4,5,6,7,8]
LOADERS=0; LPRE=1; DW1=60
def ldma(c):
    sb=(c%3)*STAGE
    L=[]
    for i in range(4):
        L.append([f"s_add_u32 s30, s23, {(c*64+4*i)*3456}",f"s_add_u32 m0, s25, {sb+i*1024}","s_nop 0",
                  f"buffer_load_dwordx4 v{DW1 if i>>1 else DW}, s[12:15], s30 offen {K.W_MOD} lds"])
    X=[]
    for i in range(8):
        X.append([f"s_add_u32 s30, s22, {8*i*1152+c*128}",f"s_add_u32 m0, s24, {sb+i*1024}","s_nop 0",
                  f"buffer_load_dwordx4 v{[DXE,DX1,DX2,DXO][i&3]}, s[8:11], s30 offen {K.X_MOD} lds"])
    return [X[0],L[0],X[1],X[2],L[1],X[3],X[4],L[2],X[5],X[6],L[3],X[7]]
def loader(A,name,prof):
    A.i("s_sub_u32 s6, s5, 8")
    A.i(f"v_lshrrev_b32 v{T0}, 3, v{V_LANE}")
    A.i(f"v_mul_u32_u24 v{T0}, 1152, v{T0}")
    A.i(f"v_and_b32 v{T1}, 7, v{V_LANE}")
    A.i(f"v_lshrrev_b32 v{T2}, 4, v{V_LANE}")
    A.i(f"v_xor_b32 v{T1}, v{T1}, v{T2}")
    A.i(f"v_lshl_add_u32 v{DXE}, v{T1}, 4, v{T0}")
    A.i(f"v_xor_b32 v{DXO}, 64, v{DXE}")
    A.i(f"v_xor_b32 v{DX1}, s30, v{DXE}")
    A.i(f"v_xor_b32 v{DX2}, s31, v{DXE}")
    A.i(f"v_mul_u32_u24 v{T0}, 3456, v{T2}")
    A.i(f"v_and_b32 v{T1}, 15, v{V_LANE}")
    A.i(f"v_lshlrev_b32 v{T2}, 2, v{T2}")
    A.i(f"v_xor_b32 v{T1}, v{T1}, v{T2}")
    A.i(f"v_lshl_add_u32 v{DW}, v{T1}, 4, v{T0}")
    A.i(f"v_xor_b32 v{DW1}, 32, v{DW}")
    A.i("s_lshl_b32 s7, s3, 8")
    A.i("s_lshl_b32 s31, s6, 6")
    A.i("s_add_u32 s7, s7, s31")
    A.i("s_mul_i32 s22, s7, 1152")
    A.i(f"s_mul_i32 s23, s6, {16*3456}")
    A.i("s_lshl_b32 s7, s4, 8")
    A.i("s_add_u32 s23, s23, s7")
    A.i("s_lshl_b32 s24, s6, 13")
    A.i("s_lshl_b32 s25, s6, 12")
    A.i(f"s_add_u32 s25, s25, {WOFF}")
    A.i("s_waitcnt lgkmcnt(0)")
    A.i("s_and_b32 s9, s9, 0xffff")
    A.i(f"s_mov_b32 s10, {2048*1152}")
    A.i("s_mov_b32 s11, 0x20000")
    A.i("s_cmp_eq_u32 s26, 1")
    A.i("s_cselect_b32 s12, s14, s12")
    A.i("s_cselect_b32 s13, s15, s13")
    A.i("s_and_b32 s13, s13, 0xffff")
    A.i(f"s_mov_b32 s14, {576*3456}")
    A.i("s_mov_b32 s15, 0x20000")
    for c in range(LPRE+1):
        for g in ldma(c):
            for l in g: A.i(l)
    A.i(f"s_waitcnt vmcnt({12*LPRE})")
    A.i("s_barrier")
    for c in range(LPRE+1,3):
        for g in ldma(c):
            for l in g: A.i(l)
    for c in range(8):
        A.i(f"s_waitcnt vmcnt({12 if c<7 else 0})")
        A.i("s_barrier")
        if c+3<9:
            for g in ldma(c+3):
                for l in g: A.i(l)
    A.i("s_endpgm")
AUXDIE=-1
VS=0
E2D=0; E2P=0; E2R=0; E2S=0; E2I=0
W2=160; W3=176
NODMA=0; NORD=0; NOBAR=0; OLDDMA=0
FIXW=0; FIXX=0
W4=0; XST=32768; WBASE=98304; WST=16384
def woff(): return WBASE if W4 else WOFF
def wdma(c):
    sb=(c%4)*WST
    return [[f"s_add_u32 s30, s23, {(c*64+4*i)*3456}",f"s_add_u32 m0, s25, {sb+i*1024}","s_nop 0",
             f"buffer_load_dwordx4 v{DW}, s[12:15], s30 offen {K.W_MOD} lds"] for i in range(2)]
def xdma(c):
    sb=(c%3)*XST
    return [[f"s_add_u32 s30, s22, {8*i*1152+c*128}",f"s_add_u32 m0, s24, {sb+i*1024}","s_nop 0",
             f"buffer_load_dwordx4 v{[DXE,DX1,DX2,DXO][i]}, s[8:11], s30 offen {K.X_MOD} lds"] for i in range(4)]
def batch(c):
    return (xdma(c+3) if c+3<9 else [])+(wdma(c+4) if c+4<9 else [])
PFW=0
PFV=61
WP=60
PFL=0
def prefetch_w(A,issue=True):
    rows=576-64*PFW
    per=(rows*2+31)//32
    assert per<=64
    A.i("s_and_b32 s6, s3, 3")
    A.i("s_lshl_b32 s6, s6, 3")
    A.i("s_add_u32 s6, s6, s5")
    A.i(f"s_mul_i32 s6, s6, {per}")
    A.i(f"v_add_u32 v{T0}, s6, v{V_LANE}")
    A.i(f"v_lshrrev_b32 v{T1}, 1, v{T0}")
    A.i(f"v_mul_u32_u24 v{T1}, 3456, v{T1}")
    A.i(f"v_and_b32 v{T0}, 1, v{T0}")
    A.i(f"v_lshl_add_u32 v{T1}, v{T0}, 7, v{T1}")
    A.i(f"v_mov_b32 v{T2}, {OOB}")
    A.i(f"v_cmp_gt_u32 vcc, {per}, v{V_LANE}")
    A.i("s_lshl_b32 s6, s4, 8")
    A.i(f"s_add_u32 s6, s6, {64*PFW*3456}")
    if PFL:
        A.i(f"v_cndmask_b32 v{PFV}, v{T2}, v{T1}, vcc")
        A.i("s_mov_b32 s96, s6")
        return
    A.i(f"v_cndmask_b32 v{T1}, v{T2}, v{T1}, vcc")
    A.i(f"buffer_load_dword v{PFV}, v{T1}, s[12:15], s6 offen")
def dma_list(c):
    sb=(c%3)*STAGE
    L=[]
    cw=0 if FIXW else c
    cx=0 if FIXX else c
    for i in range(2):
        if K.MIX:
            a=WP+2*i
            L.append([f"s_add_u32 m0, s25, {sb+i*1024}","s_nop 0","s_nop 0",
                      f"global_load_lds_dwordx4 v[{a}:{a+1}], off {K.W_MOD}".rstrip()]+
                     ([f"v_add_co_u32 v{a}, vcc, {64*3456}, v{a}",f"v_addc_co_u32 v{a+1}, vcc, 0, v{a+1}, vcc"] if c<8 else []))
            continue
        L.append([f"s_add_u32 s30, s23, {(cw*64+4*i)*3456}",f"s_add_u32 m0, s25, {sb+i*1024}","s_nop 0",
                  f"buffer_load_dwordx4 v{DW}, s[12:15], s30 offen {K.W_MOD} lds"])
    for i in range(4):
        L.append([f"s_add_u32 s30, s22, {8*i*1152+cx*128}",f"s_add_u32 m0, s24, {sb+i*1024}","s_nop 0",
                  f"buffer_load_dwordx4 v{[DXE,DX1,DX2,DXO][i]}, s[8:11], s30 offen {K.X_MOD} lds"])
    return L
def accn(vtype,i,ct):
    return (((i>>1)*4+ct)*2+(i&1)) if vtype else (4*i+ct)
def epi_qk(i,scale):
    L=[]
    if scale:
        for ct in range(4):
            for q in range(2):
                r=ACC+4*(4*i+ct)+2*q
                L.append(f"v_pk_mul_f32 {vr(r,2)}, {vr(r,2)}, s[36:37]")
    for ct in range(4):
        n=4*i+ct
        for q in range(2): L.append(f"v_cvt_pk_bf16_f32 v{ACC+2*n+q}, v{ACC+4*n+2*q}, v{ACC+4*n+2*q+1}")
    for p in range(2):
        md=K.QK_MOD if not QKI else ('sc1' if QKI[1+2*i+p]=='1' else '')
        L.append(f"buffer_store_dwordx4 {vr(ACC+8*i+4*p,4)}, v{AM+p}, s[16:19], s{38+(i>>1)} offen offset:{(i&1)*256} {md}")
    return L
def epi_v(tp):
    L=[]
    for ct in range(4):
        n=(tp*4+ct)*2
        for q in range(4): L.append(f"v_cvt_pk_bf16_f32 v{ACC+2*n+q}, v{ACC+4*n+2*q}, v{ACC+4*n+2*q+1}")
        md=K.V_MOD if not VI else ('sc1' if VI[1+4*tp+ct]=='1' else '')
        L.append(f"buffer_store_dwordx4 {vr(ACC+2*n,4)}, v{AD+ct}, s[16:19], s{38+tp} offen {md}")
    return L
def last_step(A,vtype,par,scale):
    def M(i,j):
        ct=j if i%2==0 else 3-j
        xf=XB[par]+4*i; wf=WB[par]+4*ct
        d=ACC+accn(vtype,i,ct)*4
        a,b=(xf,wf) if vtype else (wf,xf)
        A.i(f"v_mfma_f32_16x16x32_bf16 {vr(d,4)}, {vr(a,4)}, {vr(b,4)}, {vr(d,4)}")
    if vtype:
        for i in range(2):
            for j in range(4): M(i,j)
        for j in range(4): M(2,j)
        e=epi_v(0)
        A.i("s_nop 3")
        q=(len(e)+3)//4
        for j in range(4):
            M(3,j)
            for l in e[j*q:(j+1)*q]: A.i(l)
        A.i("s_nop 7")
        for l in epi_v(1): A.i(l)
        return
    for i in range(2):
        for j in range(4): M(i,j)
    for i in (2,3):
        e=epi_qk(i-2,scale)
        q=(len(e)+3)//4
        if i==2: A.i("s_nop 3")
        for j in range(4):
            M(i,j)
            for l in e[j*q:(j+1)*q]: A.i(l)
    for l in epi_qk(2,scale): A.i(l)
    A.i("s_nop 3")
    for l in epi_qk(3,scale): A.i(l)

def e2_wreads(dst,chunk8,s2):
    o=STAGE if chunk8 else 0
    return [f"ds_read_b64_tr_b16 {vr(dst+ct*4+2*u,2)}, v{WA+ct} offset:{o+s2*8192+u*1024}" for ct in range(4) for u in range(2)]
def e2_xreads(vtype,dst,chunk8,tp):
    o=STAGE if chunk8 else 0
    L=[]
    for s2 in range(2):
        for r in range(2):
            i=2*tp+r
            L.append(f"ds_read_b128 {vr(dst+4*(2*r+s2),4)}, v{XA+s2} offset:{o+(((i>>1)*4096+(i&1)*1024) if vtype else i*2048)}")
    return L
def spread(A,mf,extra,first,last):
    n=last-first+1
    k=0; tail=0
    for q,m in enumerate(mf):
        for l in (m if isinstance(m,list) else [m]): A.i(l)
        tail=0
        if extra and first<=q<=last:
            upto=(len(extra)*(q-first+1)+n-1)//n
            while k<upto:
                A.i(extra[k]); k+=1; tail+=1
    assert k==len(extra)
    return tail
def final_two_rows(A,vtype,tag,WS,M,phase):
    if vtype:
        phase(0,1,XB[1],e2_xreads(True,XB[0],False,1),[0,1,2,3],True)
        if E2S: stamp(A,4,E2S)
        A.i("s_waitcnt lgkmcnt(0)")
        rd=e2_xreads(True,XB[1],True,1)
        mf=[]
        for s2 in range(2):
            for r in range(2):
                for j in range(4):
                    m=[M(XB[0],WS[s2],2+r,j if r==0 else 3-j,s2)]
                    if len(mf)<4: m.append(rd[len(mf)])
                    mf.append(m)
        spread(A,mf,epi_v(0),2,13)
        if E2S: stamp(A,5,E2S)
        A.i("s_waitcnt lgkmcnt(0)")
        phase(1,1,XB[1],[],[],True)
        A.i("s_nop 1")
        for l in epi_v(1): A.i(l)
        return
    def rowreads(dst,i):
        return [f"ds_read_b128 {vr(dst+4*(2*ch+s2),4)}, v{XA+s2} offset:{ch*STAGE+i*2048}" for ch in range(2) for s2 in range(2)]
    def rowm(xset,i,rd):
        mf=[]
        for k in range(4):
            for ct in range(4):
                d=ACC+accn(False,i,ct)*4
                m=[f"v_mfma_f32_16x16x32_bf16 {vr(d,4)}, {vr(WS[k]+4*ct,4)}, {vr(xset+4*k,4)}, {vr(d,4)}"]
                if len(mf)<len(rd): m.append(rd[len(mf)])
                mf.append(m)
        return mf
    phase(0,1,XB[1],rowreads(XB[0],2),[0,1,2,3],True)
    if E2S: stamp(A,4,E2S)
    A.i("s_cmp_eq_u32 s78, 1")
    A.i(f"s_cbranch_scc1 {tag}_k")
    for scale in (True,False):
        if not scale: A.label(f"{tag}_k")
        A.i("s_waitcnt lgkmcnt(0)")
        spread(A,rowm(XB[0],2,rowreads(XB[1],3)),epi_qk(0,scale)+epi_qk(1,scale),0 if E2I==1 else 1,15 if E2I==1 else 13)
        if E2S: stamp(A,5,E2S)
        A.i("s_waitcnt lgkmcnt(0)")
        t=spread(A,rowm(XB[1],3,[]),epi_qk(2,scale),7,15)
        if t<6: A.i(f"s_nop {5-t}")
        for l in epi_qk(3,scale): A.i(l)
        if scale: A.i(f"s_branch {tag}_d")
    A.label(f"{tag}_d")
W4R=192; W5R=208; XE=224; XA8=240; WA8=242
def e3_w(dst,ch,s2):
    base,o=(WA8,0) if ch==2 else (WA,ch*STAGE)
    return [f"ds_read_b64_tr_b16 {vr(dst+ct*4+2*u,2)}, v{base+ct} offset:{o+s2*8192+u*1024}" for ct in range(4) for u in range(2)]
def e3_xo(vtype,i): return ((i>>1)*4096+(i&1)*1024) if vtype else i*2048
def e3_x1(vtype,dst,ch,s2,i):
    base,o=(XA8,0) if ch==2 else (XA,ch*STAGE)
    return f"ds_read_b128 {vr(dst,4)}, v{base+s2} offset:{o+e3_xo(vtype,i)}"
def e3_x(vtype,dst,ch,tp):
    return [e3_x1(vtype,dst+4*(2*r+s2),ch,s2,2*tp+r) for s2 in range(2) for r in range(2)]
def final_three(A,vtype,name,pend):
    tag=name+("_e3v" if vtype else "_e3q")
    WS=[WB[0],W2,W3,WB[1],W4R,W5R]
    def mm(xf,wf,i,ct):
        d=ACC+accn(vtype,i,ct)*4
        a,b=(xf,wf) if vtype else (wf,xf)
        return f"v_mfma_f32_16x16x32_bf16 {vr(d,4)}, {vr(a,4)}, {vr(b,4)}, {vr(d,4)}"
    def pseq(tp,ch,xset,fin):
        seq=[]
        if not fin:
            for s2 in range(2):
                for r in range(2):
                    for j in range(4): seq.append((r,j if r==0 else 3-j,s2))
        elif vtype:
            for r in range(2):
                for j in range(4): seq.append((r,j,0))
            for ct in range(4):
                for r in range(2): seq.append((r,ct,1))
        else:
            for r in range(2):
                for s2 in range(2):
                    for j in range(4): seq.append((r,j,s2))
        return [mm(xset+4*(2*r+s2),WS[2*ch+s2]+4*ct,2*tp+r,ct) for r,ct,s2 in seq]
    def withreads(mf,reads,pos):
        out=[]
        for n,m in enumerate(mf):
            out.append([m]+[reads[q] for q,p in enumerate(pos) if p==n])
        return out
    P20=[0,0,1,1,2,2,3,3,4,5,6,7,8,9,10,11,12,13,14,15]
    def big(ch,wa,wb,xd):
        w0=e3_w(wa,ch,0); w1=e3_w(wb,ch,1); x=e3_x(vtype,xd,ch,0)
        return w0[:2]+x[:2]+w0[2:]+w1[:2]+x[2:]+w1[2:]
    A.i("s_waitcnt lgkmcnt(0)")
    while pend:
        for l in pend.pop(0): A.i(l)
    A.i("s_waitcnt vmcnt(6)")
    A.i("s_barrier")
    if E2S: stamp(A,1,E2S)
    for r in range(2): A.i(f"v_add_u32 v{XA8+r}, {2*STAGE}, v{XA+r}")
    for r in range(4): A.i(f"v_add_u32 v{WA8+r}, {2*STAGE}, v{WA+r}")
    spread(A,withreads(pseq(0,0,XB[0],False),big(1,W3,WB[1],XB[1]),P20),[],0,15)
    A.i("s_waitcnt lgkmcnt(0)")
    A.i("s_waitcnt vmcnt(0)")
    A.i("s_barrier")
    if E2P:
        A.i("s_cmp_lt_u32 s70, 4")
        A.i(f"s_cbranch_scc0 {tag}_yp")
        A.i(f"s_setprio {E2P}")
        A.label(f"{tag}_yp")
    if vtype: A.i(f"buffer_store_dwordx4 {vr(ONE,4)}, v{AO}, s[16:19], s38 offen {K.V_MOD}")
    else: A.i("s_mov_b32 s36, s37")
    spread(A,withreads(pseq(0,1,XB[1],False),big(2,W4R,W5R,XB[0]),P20),[],0,15)
    A.i("s_waitcnt lgkmcnt(0)")
    if vtype:
        spread(A,withreads(pseq(0,2,XB[0],True),e3_x(True,XB[1],0,1),[0,1,2,3]),[],0,15)
        if E2S: stamp(A,4,E2S)
        A.i("s_waitcnt lgkmcnt(0)")
        spread(A,withreads(pseq(1,0,XB[1],False),e3_x(True,XB[0],1,1),[0,1,2,3]),epi_v(0),2,13)
        if E2S: stamp(A,5,E2S)
        A.i("s_waitcnt lgkmcnt(0)")
        spread(A,withreads(pseq(1,1,XB[0],False),e3_x(True,XB[1],2,1),[0,1,2,3]),[],0,15)
        A.i("s_waitcnt lgkmcnt(0)")
        spread(A,withreads(pseq(1,2,XB[1],True),[],[]),[],0,15)
        A.i("s_nop 1")
        for l in epi_v(1): A.i(l)
        return
    def rowregs(xa,xe): return [xa,xa+4,xa+8,xa+12,xe,xe+4]
    def rowreads(regs,i): return [e3_x1(False,regs[k],k>>1,k&1,i) for k in range(6)]
    def rowm(regs,i): return [mm(regs[k],WS[k]+4*ct,i,ct) for k in range(6) for ct in range(4)]
    r2=rowregs(XB[1],XE); r3=rowregs(XB[0],XE+8)
    spread(A,withreads(pseq(0,2,XB[0],True),rowreads(r2,2),[0,1,2,3,4,5]),[],0,15)
    if E2S: stamp(A,4,E2S)
    A.i("s_cmp_eq_u32 s78, 1")
    A.i(f"s_cbranch_scc1 {tag}_k")
    for scale in (True,False):
        if not scale: A.label(f"{tag}_k")
        A.i("s_waitcnt lgkmcnt(0)")
        spread(A,withreads(rowm(r2,2),rowreads(r3,3),[0,1,2,3,4,5]),epi_qk(0,scale)+epi_qk(1,scale),0,E3L)
        if E2S: stamp(A,5,E2S)
        A.i("s_waitcnt lgkmcnt(0)")
        t=spread(A,rowm(r3,3),epi_qk(2,scale),7,23 if E3L==23 else 19)
        if t<6: A.i(f"s_nop {5-t}")
        for l in epi_qk(3,scale): A.i(l)
        if scale: A.i(f"s_branch {tag}_d")
    A.label(f"{tag}_d")
E3L=23
def final_two(A,vtype,name):
    tag=name+("_e2v" if vtype else "_e2q")
    WS=[WB[0],W2,W3,WB[1]]
    def M(xset,wset,i,ct,s2):
        xf=xset+4*(2*(i&1)+s2); wf=wset+4*ct
        d=ACC+accn(vtype,i,ct)*4
        a,b=(xf,wf) if vtype else (wf,xf)
        return f"v_mfma_f32_16x16x32_bf16 {vr(d,4)}, {vr(a,4)}, {vr(b,4)}, {vr(d,4)}"
    def phase(tp,ch,xset,reads,pos,fin):
        seq=[]
        if not fin:
            for s2 in range(2):
                for r in range(2):
                    for j in range(4): seq.append((2*tp+r,j if r==0 else 3-j,s2))
        elif vtype:
            for r in range(2):
                for j in range(4): seq.append((2*tp+r,j,0))
            for ct in range(4):
                for r in range(2): seq.append((2*tp+r,ct,1))
        else:
            for r in range(2):
                for s2 in range(2):
                    for j in range(4): seq.append((2*tp+r,j,s2))
        for n,(i,ct,s2) in enumerate(seq):
            A.i(M(xset,WS[2*ch+s2],i,ct,s2))
            for q,p in enumerate(pos):
                if p==n: A.i(reads[q])
    def epi(tp):
        if vtype:
            A.i("s_nop 1")
            for l in epi_v(tp): A.i(l)
            return
        for r in range(2):
            i=2*tp+r
            e=epi_qk(i,True)
            A.i("s_cmp_eq_u32 s78, 1")
            A.i(f"s_cbranch_scc1 {tag}_ns{i}")
            for l in e[:8]: A.i(l)
            A.label(f"{tag}_ns{i}")
            for l in e[8:]: A.i(l)
    A.i("s_waitcnt lgkmcnt(0)")
    A.i("s_waitcnt vmcnt(0)")
    A.i("s_barrier")
    if E2S: stamp(A,1,E2S)
    if E2P:
        A.i("s_cmp_lt_u32 s70, 4")
        A.i(f"s_cbranch_scc0 {tag}_yp")
        A.i(f"s_setprio {E2P}")
        A.label(f"{tag}_yp")
    if vtype: A.i(f"buffer_store_dwordx4 {vr(ONE,4)}, v{AO}, s[16:19], s38 offen {K.V_MOD}")
    else: A.i("s_mov_b32 s36, s37")
    x8=e2_xreads(vtype,XB[1],True,0)
    w80=e2_wreads(W3,True,0); w81=e2_wreads(WB[1],True,1)
    rd=w80[:2]+x8[:2]+w80[2:]+w81[:2]+x8[2:]+w81[2:]
    pos=[[0,0,1,1,2,2,3,3,4,5,6,7,8,9,10,11,12,13,14,15],[0,0,0,1,1,1,2,2,3,3,4,4,5,5,6,6,7,7,8,8]][E2R]
    phase(0,0,XB[0],rd,pos,False)
    A.i("s_waitcnt lgkmcnt(0)")
    if E2I:
        final_two_rows(A,vtype,tag,WS,M,phase)
        return
    phase(0,1,XB[1],e2_xreads(vtype,XB[0],False,1),[0,1,2,3],True)
    if E2S: stamp(A,4,E2S)
    epi(0)
    if E2S: stamp(A,5,E2S)
    A.i("s_waitcnt lgkmcnt(0)")
    phase(1,0,XB[0],e2_xreads(vtype,XB[1],True,1),[0,1,2,3],False)
    A.i("s_waitcnt lgkmcnt(0)")
    phase(1,1,XB[1],[],[],True)
    epi(1)

def mainloop(A,vtype,nomfma=False,name=None,narrow=False):
    def rds(s2,par):
        xs=[f"ds_read_b128 {vr(XB[par]+4*i,4)}, v{XA+s2} offset:{((i>>1)*4096+(i&1)*1024) if vtype else i*2048}" for i in range(4)]
        ws=[f"ds_read_b64_tr_b16 {vr(WB[par]+ct*4+2*u,2)}, v{WA+ct} offset:{s2*8192+u*1024}" for ct in range(4) for u in range(2)]
        r=[ws[0],ws[1],xs[0]]+ws[2:]+xs[1:]
        r=[r[q] for q in RORD]
        if narrow: r.append(f"ds_read_b128 {vr(XLB[par],4)}, v{XLA+s2}")
        return r
    if not nomfma:
        for l in rds(0,0): A.i(l)
    A0=A
    class F:
        def i(self,x):
            if NODMA and ('lds' in x and x.startswith('buffer') or x.startswith('s_add_u32 s30') or x.startswith('s_add_u32 m0') or x=='s_nop 0'): return
            if NORD and x.startswith('ds_read') : return
            if NOBAR and x.startswith('s_barrier'): return
            A0.i(x)
    A=F()
    pend=[] if LOADERS else dma_list(1)[K.NPRE:]+dma_list(2)
    if W4: pend=(wdma(1)+xdma(1)+wdma(2))[K.NPRE:]+batch(-1)
    step=0
    for c in range(9):
        for s2 in range(2):
            par=step&1
            last=(c==8 and s2==1)
            if EPI==2 and not nomfma and c==7:
                assert not pend and not narrow and not W4 and not PFW and not LOADERS and par==0
                final_two(A0,vtype,name)
                return
            if EPI==3 and not nomfma and c==6:
                assert not narrow and not W4 and not PFW and not LOADERS and par==0
                final_three(A0,vtype,name,pend)
                return
            if not nomfma: A.i("s_waitcnt lgkmcnt(0)")
            if s2==1 and c<8:
                while pend:
                    for l in pend.pop(0): A.i(l)
                if PFW and PFL and c==PFL-1:
                    A.i(f"buffer_load_dword v{PFV}, v{PFV}, s[12:15], s96 offen")
                if W4: A.i(f"s_waitcnt vmcnt({8 if c<6 else (6 if c==6 else 0)})")
                elif not LOADERS: A.i(f"s_waitcnt vmcnt({(6 if c<7 else 0)+(1 if (PFW and PFL and PFL-1<=c<=PFL) else 0)+(2 if (W112 and DAFD and c==0) else 0)})")
                A.i("s_barrier")
                if c+3<9 and not LOADERS: pend=dma_list(c+3)
                if W4: pend=batch(c)
                d = STAGE if (c+1)%3!=0 else -2*STAGE
                if not nomfma:
                    for r in [XA,XA+1]+list(range(WA,WA+4))+([XLA,XLA+1] if narrow else []):
                        if W4:
                            if r<WA: d = XST if (c+1)%3!=0 else -2*XST
                            else: d = WST if (c+1)%4!=0 else -3*WST
                        if d>0: A.i(f"v_add_u32 v{r}, {d}, v{r}")
                        else: A.i(f"v_subrev_u32 v{r}, {-d}, v{r}")
            if nomfma:
                k=3
                while pend and k:
                    for l in pend.pop(0): A.i(l)
                    k-=1
                step+=1
                continue
            if last and EPI==1:
                if vtype:
                    A0.i(f"buffer_store_dwordx4 {vr(ONE,4)}, v{AO}, s[16:19], s38 offen {K.V_MOD}")
                    last_step(A0,True,par,False)
                else:
                    A0.i("s_mov_b32 s36, s37")
                    A0.i("s_cmp_eq_u32 s78, 1")
                    A0.i(f"s_cbranch_scc1 {name}_last_k")
                    last_step(A0,False,par,True)
                    A0.i(f"s_branch {name}_last_done")
                    A0.label(f"{name}_last_k")
                    last_step(A0,False,par,False)
                    A0.label(f"{name}_last_done")
                return
            rd=[] if last else rds((s2+1)%2,par^1)
            rpos=RPOS; dpos=DPOS
            if EPI==2 and c==6 and s2==1:
                x7=e2_xreads(vtype,XB[0],False,0)
                w70=e2_wreads(WB[0],False,0); w71=e2_wreads(W2,False,1)
                rd=w70[:2]+x7[:2]+w70[2:]+w71[:2]+x7[2:]+w71[2:]
                rpos=[0,0,1,1,2,2,3,3,4,5,6,7,8,9,10,11,12,13,14,15]
            if EPI in (2,3) and E2D and c==5 and s2==1: dpos=[1,4,6,9,11,14]
            if EPI==3 and c==5 and s2==1:
                x6=e3_x(vtype,XB[0],0,0)
                w0=e3_w(WB[0],0,0); w1=e3_w(W2,0,1)
                rd=w0[:2]+x6[:2]+w0[2:]+w1[:2]+x6[2:]+w1[2:]
                rpos=[0,0,1,1,2,2,3,3,4,5,6,7,8,9,10,11,12,13,14,15]
            n=0
            if narrow:
                seq=[(i,(j if i%2==0 else 2-j)) for i in range(4) for j in range(3)]+[(4,3)]
                for i,ct in seq:
                    xf=XB[par]+4*i if i<4 else XLB[par]; wf=WB[par]+4*ct
                    d=ACC+accn(vtype,i&3,ct)*4
                    a,b=(xf,wf) if vtype else (wf,xf)
                    isd = bool(pend) and (n in DPOSN or (c==0 and n in DPOS0N))
                    if isd and SPLITD:
                        g=pend.pop(0)
                        for l in g[:2]:
                            if l!="s_nop 0": A.i(l)
                    A.i(f"v_mfma_f32_16x16x32_bf16 {vr(d,4)}, {vr(a,4)}, {vr(b,4)}, {vr(d,4) if step else 0}")
                    for q,p in enumerate(RPOSN):
                        if p==n and rd: A.i(rd[q])
                    if isd and SPLITD==1:
                        for l in g[3:]: A.i(l)
                    if isd and not SPLITD:
                        for l in pend.pop(0): A.i(l)
                    n+=1
                step+=1
                continue
            for i in range(4):
                for j in range(4):
                    ct=j if i%2==0 else 3-j
                    xf=XB[par]+4*i; wf=WB[par]+4*ct
                    d=ACC+accn(vtype,i,ct)*4
                    a,b=(xf,wf) if vtype else (wf,xf)
                    if PRIO==1 and n==0: A.i(f"s_setprio {1 if s2==1 else 0}")
                    if PRIO==2 and n in (0,8): A.i(f"s_setprio {(3 if n==0 else 2) if s2==1 else (1 if n==0 else 0)}")
                    if PRIO==3 and ((s2==1 and n==0) or (s2==0 and n==8)): A.i(f"s_setprio {1 if s2==1 else 0}")
                    if PRIO==4 and ((s2==1 and n in (0,12)) or (s2==0 and n==8)): A.i(f"s_setprio {(2 if n==0 else 1) if s2==1 else 0}")
                    isd = bool(pend) and (n in dpos or (c==0 and n in DPOS0))
                    if isd and SPLITD:
                        g=pend.pop(0)
                        for l in g[:2]:
                            if l!="s_nop 0": A.i(l)
                    A.i(f"v_mfma_f32_16x16x32_bf16 {vr(d,4)}, {vr(a,4)}, {vr(b,4)}, {vr(d,4) if step else 0}")
                    if isd and SPLITD==2: A.i(g[3])
                    for q,p in enumerate(rpos):
                        if p==n and rd: A.i(rd[q])
                    if isd and SPLITD==1:
                        for l in g[3:]: A.i(l)
                    if isd and not SPLITD:
                        for l in pend.pop(0): A.i(l)
                    n+=1
            step+=1

_pl={}
def getplan(m):
    if m not in _pl:
        if W112: _pl[m]=qkperm112.plan(m>>1,m&1)
        else: _pl[m]=qkperm16.plan(m)[:3]+([],)
    return _pl[m]
def NPAT(): return 10 if W112 else 9
def singles(m):
    info,tab,slots,extra=getplan(m)
    out=[]
    for (p,c),it in slots.items():
        if it[0]=='S':
            assert c>=2
            for j in range(2): out.append((2*p+j,c,info[it[1][j]]))
    return out+list(extra)
def qk_scalars112(A):
    A.i("s_cmp_eq_u32 s98, 1")
    csel(A,33,WS_KVA,WS_QA)
    csel(A,38,WS_KVB,WS_QB)
    csel(A,34,KV_HEAD,64*QT_B)
    csel(A,35,TILE_B,QT_B)
    csel(A,36,OFF_KR,1024)
    A.i(f"s_cselect_b32 s37, 1.0, {f32bits(C_SCALE)}")
    A.i("s_cselect_b32 s78, 1, 0")
    A.i("s_cmp_eq_u32 s26, 1")
    A.i("s_cselect_b32 s33, s38, s33")
    A.i("s_lshl_b32 s6, s3, 3")
    A.i("s_lshl_b32 s7, s28, 1")
    A.i("s_add_u32 s6, s6, s7")
    A.i("s_mul_i32 s38, s6, s35")
    A.i("s_add_u32 s39, s38, s35")
    A.i("s_lshl_b32 s79, s4, 1")
    A.i("s_add_u32 s79, s79, s29")
SS=84
def qk_setup(A,name):
    A.i("s_mov_b32 s72, 0x76543210")
    A.i("s_mov_b32 s73, 0xfedcba98")
    A.i("s_cmp_eq_u32 s27, 1")
    A.i(f"s_cbranch_scc1 {name}_vsetup")
    if W112:
        qk_scalars112(A)
        A.i(f"v_mov_b32 v{AM+1}, {OOB}")
        A.i(f"v_mov_b32 v{AL}, {OOB}")
    else:
        K.qk_scalars(A)
        A.i("s_lshr_b32 s79, s32, 4")
    if KRG:
        A.i("s_and_b32 s99, s78, s26")
        A.i("s_lshl_b32 s6, s3, 1")
        A.i("s_lshr_b32 s7, s28, 1")
        A.i("s_add_u32 s6, s6, s7")
        A.i(f"s_mul_i32 s6, s6, {4*TILE_B}")
        A.i("s_and_b32 s7, s28, 1")
        A.i("s_lshl_b32 s30, s7, 3")
        A.i("s_add_u32 s30, s30, s6")
        A.i("s_mul_i32 s7, s7, 4480")
        A.i("s_add_u32 s6, s6, s7")
        A.i("s_add_u32 s6, s6, 512")
        A.i("s_add_u32 s31, s38, s36")
        A.i("s_cmp_eq_u32 s99, 1")
        A.i("s_cselect_b32 s38, s6, s38")
        A.i("s_cselect_b32 s35, 2240, s35")
        A.i("s_cselect_b32 s100, s30, s31")
        A.i("s_add_u32 s39, s38, s35")
    A.i("s_mov_b32 s74, 0xffff0000")
    A.i("s_mov_b32 s75, 0")
    A.i("s_mov_b32 s92, 0")
    A.i("s_mov_b32 s93, 0xffff")
    A.i("s_mov_b32 s94, 0")
    A.i("s_mov_b32 s95, 0xffff0000")
    A.i(f"v_and_b32 v{T0}, 15, v{V_LANE}")
    A.i(f"v_lshlrev_b32 v{T1}, 4, v{T0}")
    A.i(f"v_lshrrev_b32 v{T2}, 5, v{V_LANE}")
    A.i(f"v_mul_lo_u32 v{T2}, v{T2}, s35")
    A.i(f"v_and_b32 v{T0}, 31, v{V_LANE}")
    A.i(f"v_lshl_add_u32 v{L16}, v{T0}, 4, v{T2}")
    A.i(f"v_lshl_add_u32 v{L4}, v{T0}, 2, v{T2}")
    if KRG:
        A.i(f"v_lshrrev_b32 v{T2}, 5, v{V_LANE}")
        A.i(f"v_lshlrev_b32 v{T2}, 2, v{T2}")
        A.i(f"v_lshl_add_u32 v{T2}, v{T0}, 4, v{T2}")
        A.i("s_cmp_eq_u32 s99, 1")
        A.i("s_cselect_b64 vcc, -1, 0")
        A.i(f"v_cndmask_b32 v{L4}, v{L4}, v{T2}, vcc")
    for m in range(NPAT()):
        if m<NPAT()-1:
            A.i(f"s_cmp_lg_u32 s79, {m}")
            A.i(f"s_cbranch_scc1 {name}_setup{m+1}")
        info,tab,slots,extra=getplan(m)
        for h in range(2):
            v=0
            for q in range(2):
                for c in range(4): v|=tab[2*h+q][c]<<(4*(4*q+c))
            A.i(f"s_mov_b32 s{72+h}, {hex(v)}")
        for p in range(2):
            if (p,0) not in slots: continue
            for c in range(4):
                it=slots[(p,c)]; r=80+c
                if it[0]=='G':
                    _,head,sl=info[it[1][0]]
                    A.i(f"s_mul_i32 s{r}, s34, {head}")
                    A.i(f"s_add_u32 s{r}, s{r}, s33")
                    if sl>>1: A.i(f"s_add_u32 s{r}, s{r}, {(sl>>1)*512}")
                else: A.i(f"s_mov_b32 s{r}, {OOB}")
            A.i(f"v_mov_b32 v{T3}, s80")
            A.i(f"v_mov_b32 v{T4}, s81")
            A.i(f"v_cndmask_b32 v{T3}, v{T3}, v{T4}, s[74:75]")
            A.i(f"v_mov_b32 v{T4}, s82")
            A.i(f"v_cndmask_b32 v{T3}, v{T3}, v{T4}, s[92:93]")
            A.i(f"v_mov_b32 v{T4}, s83")
            A.i(f"v_cndmask_b32 v{T3}, v{T3}, v{T4}, s[94:95]")
            A.i(f"v_add_u32 v{AM+p}, v{T3}, v{T1}")
        k=SS
        for (ct,c,inf) in singles(m):
            if inf[0]=='M':
                A.i(f"s_mul_i32 s{k}, s34, {inf[1]}")
                A.i(f"s_add_u32 s{k}, s{k}, s33")
                A.i(f"s_add_u32 s{k}, s{k}, s38")
                cst=(inf[2]>>1)*512+(inf[2]&1)*8
                if cst: A.i(f"s_add_u32 s{k}, s{k}, {cst}")
                k+=1
            else:
                A.i(f"s_mul_i32 s{k}, s34, {2*inf[1]}")
                A.i(f"s_add_u32 s{k}, s{k}, s33")
                if KRG: A.i(f"s_add_u32 s{k}, s{k}, s100")
                else:
                    A.i(f"s_add_u32 s{k}, s{k}, s38")
                    A.i(f"s_add_u32 s{k}, s{k}, s36")
                A.i(f"s_add_u32 s{k+1}, s{k}, s34")
                k+=2
        assert k<=92
        if W112 and (m&1) and (m>>1)<4:
            i=m>>1
            A.i(f"v_lshrrev_b32 v{T3}, 5, v{V_LANE}")
            A.i(f"v_lshlrev_b32 v{T3}, 9, v{T3}")
            A.i(f"v_bfe_u32 v{T4}, v{V_LANE}, 4, 1")
            A.i(f"v_lshl_add_u32 v{T3}, v{T4}, 3, v{T3}")
            A.i(f"v_add_u32 v{AL}, v{T3}, v{T1}")
            A.i(f"s_mul_i32 s{SL}, s34, 31")
            A.i(f"s_add_u32 s{SL}, s{SL}, s33")
            A.i(f"s_add_u32 s{SL}, s{SL}, s{38+(i>>1)}")
            if i&1: A.i(f"s_add_u32 s{SL}, s{SL}, 256")
        A.i(f"s_branch {name}_setup_done")
        if m<NPAT()-1: A.label(f"{name}_setup{m+1}")
    A.label(f"{name}_vsetup")
    if W112:
        A.i("s_mul_i32 s6, s4, 112")
        A.i("s_lshl_b32 s7, s29, 6")
        A.i("s_add_u32 s32, s6, s7")
    else:
        A.i("s_lshl_b32 s6, s4, 7")
        A.i(f"s_lshl_b32 s7, s{97 if K.MIX else 29}, 6")
        A.i("s_add_u32 s6, s6, s7")
        A.i("s_sub_u32 s32, s6, 1152")
    A.i("s_cmp_eq_u32 s26, 1")
    csel(A,33,WS_KVB+OFF_V,WS_KVA+OFF_V)
    A.i("s_lshl_b32 s6, s3, 3")
    A.i("s_lshl_b32 s7, s28, 1")
    A.i("s_add_u32 s6, s6, s7")
    A.i(f"s_mul_i32 s38, s6, {TILE_B}")
    if KRG:
        A.i("s_lshr_b32 s7, s6, 2")
        A.i(f"s_mul_i32 s7, s7, {4*TILE_B}")
        A.i("s_and_b32 s6, s6, 3")
        A.i("s_mul_i32 s6, s6, 2240")
        A.i("s_add_u32 s6, s6, s7")
        A.i("s_add_u32 s6, s6, 512")
        A.i("s_cmp_eq_u32 s26, 1")
        A.i("s_cselect_b32 s38, s6, s38")
        A.i(f"s_mov_b32 s35, {TILE_B}")
        A.i("s_cselect_b32 s35, 2240, s35")
        A.i("s_add_u32 s39, s38, s35")
    else: A.i(f"s_add_u32 s39, s38, {TILE_B}")
    A.i(f"s_mov_b32 s34, {KV_HEAD}")
    if VS:
        assert not W112 and not KRG
        A.i(f"v_lshrrev_b32 v{T1}, 4, v{V_LANE}")
    else:
        A.i(f"v_lshrrev_b32 v{T1}, 5, v{V_LANE}")
        A.i(f"v_mul_u32_u24 v{T1}, 608, v{T1}")
        A.i(f"v_bfe_u32 v{T2}, v{V_LANE}, 4, 1")
        A.i(f"v_mul_u32_u24 v{T2}, 304, v{T2}")
        A.i(f"v_add3_u32 v{T1}, v{T1}, v{T2}, s33")
    A.i(f"v_and_b32 v{T0}, 15, v{V_LANE}")
    A.i(f"v_add_u32 v{T0}, s32, v{T0}")
    for ct in range(4):
        A.i(f"v_add_u32 v{T2}, {16*ct}, v{T0}")
        if W112 and ct==3:
            A.i("s_add_u32 s6, s32, 48")
            A.i("s_cmp_eq_u32 s29, 1")
            A.i("s_cselect_b32 s6, 560, s6")
            A.i(f"v_and_b32 v{T2}, 15, v{V_LANE}")
            A.i(f"v_add_u32 v{T2}, s6, v{T2}")
        A.i(f"v_mul_u32_u24 v{T3}, 3641, v{T2}")
        A.i(f"v_lshrrev_b32 v{T3}, 16, v{T3}")
        A.i(f"v_mul_u32_u24 v{T4}, 18, v{T3}")
        A.i(f"v_sub_u32 v{T4}, v{T2}, v{T4}")
        A.i(f"v_mul_lo_u32 v{T3}, v{T3}, s34")
        if VS:
            A.i(f"v_lshl_add_u32 v{T3}, v{T4}, 6, v{T3}")
            A.i(f"v_lshrrev_b32 v{T2}, 2, v{T4}")
            A.i(f"v_add_u32 v{T2}, v{T2}, v{T1}")
            A.i(f"v_and_b32 v{T2}, 3, v{T2}")
            A.i(f"v_lshlrev_b32 v{T2}, 4, v{T2}")
            A.i(f"v_add3_u32 v{AD+ct}, v{T2}, v{T3}, s33")
            continue
        A.i(f"v_lshl_add_u32 v{T3}, v{T4}, 4, v{T3}")
        A.i(f"v_add_u32 v{AD+ct}, v{T1}, v{T3}")
    if W112:
        A.i("s_and_b32 s6, s4, 1")
        A.i("s_lshl_b32 s6, s6, 3")
        A.i("s_cmp_eq_u32 s4, 4")
        A.i(f"s_cselect_b32 s6, {OOB}, s6")
        A.i("s_cmp_eq_u32 s29, 1")
        A.i("s_cselect_b32 s6, s6, 0")
        A.i(f"v_add_u32 v{AD+3}, s6, v{AD+3}")
        A.i("s_bfe_u32 s6, s4, 0x10001")
        A.i(f"s_mul_i32 s6, s6, {TILE_B}")
        A.i(f"s_add_u32 s{SL}, s38, s6")
    if FAKEV:
        if K.MIX:
            A.i("s_lshl_b32 s6, s4, 1")
            A.i("s_add_u32 s6, s6, s97")
            A.i("s_sub_u32 s6, s6, 18")
        else:
            A.i("s_mul_i32 s6, s26, 5")
            A.i("s_add_u32 s6, s6, s4")
            A.i("s_sub_u32 s6, s6, 9")
        A.i("s_lshl_b32 s6, s6, 3")
        A.i("s_add_u32 s6, s6, s3")
        A.i("s_lshl_b32 s6, s6, 3")
        A.i("s_add_u32 s6, s6, s5")
        A.i("s_lshl_b32 s6, s6, 13")
        A.i("s_add_u32 s6, s6, 0x1900000")
        for ct in range(4):
            A.i(f"v_lshlrev_b32 v{T2}, 4, v{V_LANE}")
            A.i(f"v_add_u32 v{T2}, {1024*ct}, v{T2}")
            A.i(f"v_add_u32 v{AD+ct}, s6, v{T2}")
        A.i("s_mov_b32 s38, 0")
        A.i("s_mov_b32 s39, 4096")
    A.i("s_mul_i32 s6, s32, 3641")
    A.i("s_lshr_b32 s6, s6, 16")
    A.i(f"v_lshrrev_b32 v{T0}, 3, v{V_LANE}")
    A.i(f"v_add_u32 v{T0}, s6, v{T0}")
    A.i(f"v_mul_u32_u24 v{T1}, 18, v{T0}")
    A.i(f"v_add_u32 v{T1}, 17, v{T1}")
    A.i(f"v_mul_lo_u32 v{T0}, v{T0}, s34")
    A.i(f"v_bfe_u32 v{T2}, v{V_LANE}, 2, 1")
    if KRG: A.i(f"v_mul_lo_u32 v{T2}, v{T2}, s35")
    else: A.i(f"v_mul_u32_u24 v{T2}, {TILE_B}, v{T2}")
    A.i(f"v_add_u32 v{T0}, v{T0}, v{T2}")
    if VS:
        A.i(f"v_and_b32 v{T2}, 3, v{V_LANE}")
        A.i(f"v_lshlrev_b32 v{T2}, 4, v{T2}")
        A.i(f"v_add3_u32 v{T0}, v{T0}, v{T2}, s33")
        A.i(f"v_add_u32 v{T0}, {18*64}, v{T0}")
    else:
        A.i(f"v_bfe_u32 v{T2}, v{V_LANE}, 1, 1")
        A.i(f"v_mul_u32_u24 v{T2}, 608, v{T2}")
        A.i(f"v_add_u32 v{T0}, v{T0}, v{T2}")
        A.i(f"v_and_b32 v{T2}, 1, v{V_LANE}")
        A.i(f"v_mul_u32_u24 v{T2}, 304, v{T2}")
        A.i(f"v_add3_u32 v{T0}, v{T0}, v{T2}, s33")
        A.i(f"v_add_u32 v{T0}, {18*16}, v{T0}")
    if W112:
        A.i("s_cmp_eq_u32 s4, 4")
        A.i("s_cselect_b32 s7, 64, 48")
        A.i("s_cmp_eq_u32 s29, 1")
        A.i("s_cselect_b32 s7, s7, 64")
        A.i("s_add_u32 s6, s32, s7")
    else: A.i("s_add_u32 s6, s32, 64")
    A.i(f"v_mov_b32 v{T2}, {OOB}")
    A.i(f"v_cmp_gt_u32 vcc, s6, v{T1}")
    for r in range(4): A.i(f"v_mov_b32 v{ONE+r}, 0x3f803f80")
    A.i(f"v_cndmask_b32 v{AO}, v{T2}, v{T0}, vcc")
    A.label(f"{name}_setup_done")

def qk_epilogue(A,name,prof):
    if not EPI: qk_epilogue_main(A,name)
    qk_epilogue_singles(A,name,prof)
def qk_epilogue_narrow(A,name):
    A.i("s_nop 7")
    valid=[4*i+ct for i in range(4) for ct in range(4) if ct<3 or i==0]
    A.i("s_cmp_eq_u32 s78, 1")
    A.i(f"s_cbranch_scc1 {name}_noscale_n")
    A.i("s_mov_b32 s36, s37")
    for n in valid:
        for q in range(2): A.i(f"v_pk_mul_f32 {vr(ACC+4*n+2*q,2)}, {vr(ACC+4*n+2*q,2)}, s[36:37]")
    A.label(f"{name}_noscale_n")
    for i in range(4):
        for ct in range(4):
            n=4*i+ct
            if n not in valid: continue
            for q in range(2): A.i(f"v_cvt_pk_bf16_f32 v{ACC+2*n+q}, v{ACC+4*n+2*q}, v{ACC+4*n+2*q+1}")
        A.i(f"buffer_store_dwordx4 {vr(ACC+8*i,4)}, v{AM}, s[16:19], s{38+(i>>1)} offen offset:{(i&1)*256} {K.QK_MOD}".rstrip())
def qk_epilogue_main(A,name):
    A.i("s_nop 7")
    mods=K.TMOD
    def body(mod):
        for i in range(4):
            for ct in range(4):
                n=4*i+ct
                for q in range(2): A.i(f"v_cvt_pk_bf16_f32 v{ACC+2*n+q}, v{ACC+4*n+2*q}, v{ACC+4*n+2*q+1}")
            for p in range(2):
                md=mod if not QKI else ('sc1' if QKI[1+2*i+p]=='1' else '')
                A.i(f"buffer_store_dwordx4 {vr(ACC+8*i+4*p,4)}, v{AM+p}, s[16:19], s{38+(i>>1)} offen offset:{(i&1)*256} {md}".rstrip())
    A.i("s_cmp_eq_u32 s78, 1")
    A.i(f"s_cbranch_scc1 {name}_noscale")
    A.i("s_mov_b32 s36, s37")
    for r in range(0,64,2): A.i(f"v_pk_mul_f32 {vr(ACC+r,2)}, {vr(ACC+r,2)}, s[36:37]")
    if mods:
        m=[x.replace('-','') for x in mods]
        A.i("s_cmp_eq_u32 s26, 1")
        A.i(f"s_cbranch_scc1 {name}_qb")
        body(m[0]); A.i(f"s_branch {name}_qkdone")
        A.label(f"{name}_qb")
        body(m[1]); A.i(f"s_branch {name}_qkdone")
        A.label(f"{name}_noscale")
        A.i("s_cmp_eq_u32 s26, 1")
        A.i(f"s_cbranch_scc1 {name}_kb")
        body(m[2]); A.i(f"s_branch {name}_qkdone")
        A.label(f"{name}_kb")
        body(m[3])
        A.label(f"{name}_qkdone")
        return
    A.label(f"{name}_noscale")
    body(K.QK_MOD)
def qk_epilogue_singles(A,name,prof):
    for m in range(NPAT()):
        if m<NPAT()-1:
            A.i(f"s_cmp_lg_u32 s79, {m}")
            A.i(f"s_cbranch_scc1 {name}_epi{m+1}")
        if W112 and (m&1) and (m>>1)<4:
            A.i(f"buffer_store_dwordx2 {vr(ACC+6,2)}, v{AL}, s[16:19], s{SL} offen {K.SM_MOD}".rstrip())
        S=singles(m)
        cts=sorted(set(x[0] for x in S))
        X=lambda i,ct,d: ACC+2*(4*i+ct)+d
        A.i("s_nop 1")
        for ct in cts:
            for d in range(2):
                A.i(f"v_permlane32_swap_b32 v{X(0,ct,d)}, v{X(2,ct,d)}")
                A.i(f"v_permlane32_swap_b32 v{X(1,ct,d)}, v{X(3,ct,d)}")
        A.i("s_nop 1")
        for ct in cts:
            for d in range(2):
                A.i(f"v_permlane16_swap_b32 v{X(2,ct,d)}, v{X(3,ct,d)}")
                if any(x[0]==ct and x[1]<2 for x in S): A.i(f"v_permlane16_swap_b32 v{X(0,ct,d)}, v{X(1,ct,d)}")
        A.i("s_nop 1")
        k=SS
        for (ct,c,inf) in ([] if NOS else S):
            b=X(c,ct,0)
            if inf[0]=='M':
                A.i(f"buffer_store_dwordx2 {vr(b,2)}, v{L16}, s[16:19], s{k} offen {K.SM_MOD}"); k+=1
            else:
                A.i(f"buffer_store_dword v{b}, v{L4}, s[16:19], s{k} offen {K.SR_MOD}")
                A.i(f"buffer_store_dword v{b+1}, v{L4}, s[16:19], s{k+1} offen {K.SR_MOD}"); k+=2
        if K.MONO: A.i(f"s_mov_b32 s97, {8+sum(1 if x[2][0]=='M' else 2 for x in S)}")
        if m<NPAT()-1:
            A.i(f"s_branch {name}_epi_done")
            A.label(f"{name}_epi{m+1}")
    A.label(f"{name}_epi_done")
    if K.MONO:
        mono_next(A,name)
        return
    if prof: A.i("s_waitcnt vmcnt(0)")
    stamp(A,3,prof)
    stamp_store(A,6,prof,name)
    A.i("s_endpgm")

def mono_next(A,name):
    A.i("s_cmp_eq_u32 s96, 0")
    A.i(f"s_cbranch_scc1 {name}_trans")
    A.i(f"s_branch {name}_cont")
def mono_defer(A,name,kind):
    A.i(f"s_mov_b32 s96, {kind}")
    A.i("s_cmp_eq_u32 s26, 0")
    A.i(f"s_cbranch_scc1 {name}_trans")
    A.i("s_mov_b32 s96, 0")
    A.label(f"{name}_epi_{'qk' if kind==1 else 'v'}")
def v_epilogue_narrow(A,name,prof):
    A.i(f"buffer_store_dwordx4 {vr(ONE,4)}, v{AO}, s[16:19], s38 offen {K.V_MOD}".rstrip())
    A.i("s_nop 7")
    for tp in range(2):
        for ct in range(3):
            n=(tp*4+ct)*2
            for q in range(4): A.i(f"v_cvt_pk_bf16_f32 v{ACC+2*n+q}, v{ACC+4*n+2*q}, v{ACC+4*n+2*q+1}")
            A.i(f"buffer_store_dwordx4 {vr(ACC+2*n,4)}, v{AD+ct}, s[16:19], s{38+tp} offen {K.V_MOD}".rstrip())
        if tp==0:
            for q in range(2): A.i(f"v_cvt_pk_bf16_f32 v{ACC+12+q}, v{ACC+24+2*q}, v{ACC+24+2*q+1}")
            A.i(f"buffer_store_dwordx2 {vr(ACC+12,2)}, v{AD+3}, s[16:19], s{SL} offen {K.V_MOD}".rstrip())
    if prof: A.i("s_waitcnt vmcnt(0)")
    stamp(A,3,prof)
    stamp_store(A,6,prof,name+"_vn")
    A.i("s_endpgm")
def v_epilogue(A,name,prof):
    if not EPI:
        A.i(f"buffer_store_dwordx4 {vr(ONE,4)}, v{AO}, s[16:19], s38 offen {K.V_MOD}")
        A.i("s_nop 7")
        for tp in range(2):
            for l in epi_v(tp): A.i(l)
    if K.MONO:
        A.i("s_mov_b32 s97, 9")
        mono_next(A,name)
        return
    if prof: A.i("s_waitcnt vmcnt(0)")
    stamp(A,3,prof)
    stamp_store(A,6,prof,name)
    A.i("s_endpgm")

def gen_k1(A,name="k1_qkv_kernel",prof=False):
    if LOADERS: K.LAUNCH=[(name,256,768,147456)]
    if W4: K.LAUNCH=[(name,256,512,163840)]
    kernel_header(A,name)
    A.i("s_cmp_ge_u32 s2, 256")
    A.i(f"s_cbranch_scc1 {name}_end")
    A.i(f"s_load_dwordx2 s[20:21], s[0:1], {KA_WS}")
    A.i(f"s_load_dwordx2 s[8:9], s[0:1], {KA_X}")
    if prof: A.i("s_memrealtime s[58:59]")
    stamp(A,0,prof)
    A.i(f"v_and_b32 v{V_LANE}, 63, v0")
    A.i(f"v_lshrrev_b32 v{T0}, 6, v0")
    A.i("s_nop 0")
    A.i(f"v_readfirstlane_b32 s5, v{T0}")
    if AUXDIE>=0:
        A.i("s_and_b32 s6, s2, 7")
        A.i("s_lshr_b32 s7, s2, 3")
        A.i(f"s_cmp_gt_u32 s6, {AUXDIE}")
        A.i("s_cselect_b32 s30, 1, 0")
        A.i("s_sub_u32 s30, s6, s30")
        A.i("s_lshl_b32 s30, s30, 3")
        A.i("s_lshr_b32 s31, s7, 2")
        A.i("s_add_u32 s30, s30, s31")
        A.i("s_cmp_ge_u32 s30, 28")
        A.i("s_cselect_b32 s31, 1, 0")
        A.i("s_cselect_b32 s3, 28, 0")
        A.i("s_sub_u32 s30, s30, s3")
        A.i("s_mul_i32 s3, s30, 37")
        A.i("s_lshr_b32 s3, s3, 8")
        A.i("s_mul_i32 s4, s3, 7")
        A.i("s_sub_u32 s30, s30, s4")
        A.i("s_lshl_b32 s30, s30, 5")
        A.i("s_lshl_b32 s3, s3, 1")
        A.i("s_or_b32 s30, s30, s3")
        A.i("s_or_b32 s30, s30, s31")
        A.i("s_and_b32 s3, s7, 3")
        A.i("s_lshl_b32 s3, s3, 3")
        A.i("s_or_b32 s30, s30, s3")
        A.i("s_add_u32 s7, s7, 224")
        A.i(f"s_cmp_eq_u32 s6, {AUXDIE}")
        A.i("s_cselect_b32 s2, s7, s30")
    if CPF1:
        A.i("s_nop 3")
        code_touch(A,name+"_ct1",name,name+"_gate0",5,62,60,72,True)
    A.i(f"s_cmp_ge_u32 s2, {240 if W112 else 224}")
    A.i(f"s_cbranch_scc1 {name}_gate0")
    A.i(f"s_load_dwordx2 s[12:13], s[0:1], {KA_AWQKV}")
    A.i(f"s_load_dwordx2 s[14:15], s[0:1], {KA_BWQKV}")
    if EPRIO: A.i("s_setprio 1")
    A.i("s_mov_b32 s70, s5")
    if W112:
        A.i("s_and_b32 s6, s2, 7")
        A.i("s_lshr_b32 s7, s2, 3")
        A.i("s_lshr_b32 s26, s6, 2")
        A.i("s_and_b32 s3, s6, 1")
        A.i("s_lshl_b32 s3, s3, 2")
        A.i("s_bfe_u32 s31, s6, 0x10001")
        A.i("s_lshl_b32 s4, s31, 3")
        A.i("s_lshr_b32 s30, s7, 2")
        A.i("s_add_u32 s4, s4, s30")
        A.i("s_and_b32 s30, s7, 3")
        A.i("s_lshl_b32 s31, s31, 1")
        A.i("s_cmp_ge_u32 s7, 28")
        A.i("s_cselect_b32 s4, 7, s4")
        A.i("s_cselect_b32 s31, s31, 0")
        A.i("s_add_u32 s30, s30, s31")
        A.i("s_add_u32 s3, s3, s30")
        A.i("s_mul_i32 s6, s4, 52")
        A.i("s_lshr_b32 s98, s6, 8")
        A.i("s_mul_i32 s6, s98, 5")
        A.i("s_sub_u32 s4, s4, s6")
        A.i("s_cmp_eq_u32 s98, 2")
    else:
        A.i("s_and_b32 s6, s2, 7")
        A.i("s_lshr_b32 s7, s2, 3")
        A.i("s_and_b32 s3, s6, 1")
        A.i("s_lshl_b32 s3, s3, 2")
        A.i("s_and_b32 s30, s7, 3")
        A.i("s_add_u32 s3, s3, s30")
        A.i("s_lshr_b32 s6, s6, 1")
        if CGMAP:
            A.i("s_lshl_b32 s6, s6, 2")
            A.i(f"s_lshr_b32 s6, {hex(sum(c<<(4*k) for k,c in enumerate(CGMAP)))}, s6")
            A.i("s_and_b32 s6, s6, 3")
        if CBTAB:
            assert sorted(x for g in CBTAB for x in g)==list(range(28))
            A.i("s_lshr_b32 s7, s7, 2")
            A.i("s_lshl_b32 s7, s7, 3")
            for p in range(4):
                v=sum(c<<(8*k) for k,c in enumerate(CBTAB[p]))
                if p: A.i(f"s_cmp_eq_u32 s6, {p}")
                for h in range(2):
                    w=(v>>(32*h))&0xffffffff
                    if p==0: A.i(f"s_mov_b32 s{80+h}, {hex(w)}")
                    else: A.i(f"s_cselect_b32 s{80+h}, {hex(w)}, s{80+h}")
            A.i("s_lshr_b64 s[80:81], s[80:81], s7")
            A.i("s_and_b32 s4, s80, 0xff")
        else:
            A.i("s_mul_i32 s6, s6, 7")
            A.i("s_lshr_b32 s7, s7, 2")
            A.i("s_add_u32 s4, s6, s7")
        if K.MIX:
            A.i("s_cmp_ge_u32 s4, 27")
            A.i(f"s_cbranch_scc1 {name}_idle")
            A.i("s_cmp_lt_u32 s5, 4")
            A.i("s_cselect_b32 s26, 1, 0")
            if K.MONO: A.i("s_mov_b32 s67, 1")
            A.i("s_lshl_b32 s96, s4, 7")
            A.i("s_and_b32 s97, s4, 1")
            A.i("s_lshr_b32 s4, s4, 1")
        else:
            A.i("s_cmp_ge_u32 s4, 14")
            A.i("s_cselect_b32 s26, 1, 0")
            A.i("s_mul_i32 s6, s26, 14")
            A.i("s_sub_u32 s4, s4, s6")
        A.i("s_cmp_ge_u32 s4, 9")
    A.i("s_cselect_b32 s27, 1, 0")
    A.i("s_cselect_b32 s30, 0, 64")
    A.i("s_cselect_b32 s31, 64, 0")
    A.i("s_and_b32 s28, s5, 3")
    A.i("s_lshr_b32 s29, s5, 2")
    if LOADERS:
        A.i("s_cmp_ge_u32 s5, 8")
        A.i(f"s_cbranch_scc1 {name}_loader")
    else: startup_dma(A,prof)
    startup_rest(A,name,prof)
    if LOADERS:
        A.label(f"{name}_loader")
        loader(A,name,prof)
    if K.MIX and not K.MONO:
        A.label(f"{name}_idle")
        A.i("s_endpgm")
    A.label(f"{name}_gate0")
    if LOADERS:
        A.i("s_cmp_ge_u32 s5, 8")
        A.i(f"s_cbranch_scc1 {name}_end")
    if W112: k1aux.aux16(A,name,prof,DAFD)
    else: K.gen_gate(A,name,prof)
    if not K.MONO: kernel_footer(A,name,244 if W112 else (168 if NARROW else (192 if EPI==2 else (248 if EPI==3 else NV))))

def ws_srd(A):
    A.i("s_mov_b32 s16, s20")
    A.i("s_and_b32 s17, s21, 0xffff")
    A.i("s_mov_b32 s18, 0x2000000")
    A.i("s_mov_b32 s19, 0x20000")
def startup_dma(A,prof):
    A.i(f"v_lshrrev_b32 v{T0}, 3, v{V_LANE}")
    A.i(f"v_mul_u32_u24 v{T0}, 1152, v{T0}")
    A.i(f"v_and_b32 v{T1}, 7, v{V_LANE}")
    A.i(f"v_lshrrev_b32 v{T2}, 4, v{V_LANE}")
    A.i(f"v_xor_b32 v{T1}, v{T1}, v{T2}")
    A.i(f"v_lshl_add_u32 v{DXE}, v{T1}, 4, v{T0}")
    A.i(f"v_xor_b32 v{DXO}, 64, v{DXE}")
    A.i(f"v_xor_b32 v{DX1}, s30, v{DXE}")
    A.i(f"v_xor_b32 v{DX2}, s31, v{DXE}")
    A.i(f"v_mul_u32_u24 v{T0}, 3456, v{T2}")
    A.i(f"v_and_b32 v{T1}, 15, v{V_LANE}")
    A.i(f"v_lshlrev_b32 v{T2}, 2, v{T2}")
    A.i(f"v_xor_b32 v{T1}, v{T1}, v{T2}")
    A.i("s_and_b32 s6, s5, 1")
    A.i("s_lshl_b32 s6, s6, 1")
    A.i(f"v_xor_b32 v{T1}, s6, v{T1}")
    if K.MIX:
        A.i(f"v_cmp_gt_u32 vcc, 8, v{T1}")
        A.i(f"v_and_b32 v{T1}, 7, v{T1}")
    A.i(f"v_lshl_add_u32 v{DW}, v{T1}, 4, v{T0}")
    if W112:
        A.i("s_mul_i32 s6, s4, 224")
        A.i("s_sub_u32 s7, 896, s6")
        A.i(f"v_mov_b32 v{T0}, s7")
        A.i(f"v_cmp_le_u32 vcc, 14, v{T1}")
        A.i(f"v_cndmask_b32 v{T0}, 0, v{T0}, vcc")
        if not WAL: A.i(f"v_add_u32 v{DW}, v{DW}, v{T0}")
        if WAL==1:
            A.i("s_lshl_b32 s6, s4, 8")
            A.i("s_min_u32 s6, s6, 896")
        A.i("s_mul_i32 s7, s98, 1152")
        A.i("s_add_u32 s96, s6, s7")
    A.i("s_lshl_b32 s6, s3, 8")
    A.i("s_lshl_b32 s7, s5, 5")
    A.i("s_add_u32 s6, s6, s7")
    A.i("s_mul_i32 s22, s6, 1152")
    A.i(f"s_mul_i32 s23, s5, {8*3456}")
    if K.MIX:
        A.i("s_add_u32 s23, s23, s96")
        A.i(f"v_add_u32 v{DW}, s23, v{DW}")
    elif W112:
        A.i("s_add_u32 s23, s23, s96")
    else:
        A.i("s_lshl_b32 s6, s4, 8")
        A.i("s_add_u32 s23, s23, s6")
    A.i("s_lshl_b32 s24, s5, 12")
    A.i("s_lshl_b32 s25, s5, 11")
    A.i(f"s_add_u32 s25, s25, {woff()}")
    A.i("s_waitcnt lgkmcnt(0)")
    A.i("s_and_b32 s9, s9, 0xffff")
    A.i(f"s_mov_b32 s10, {2048*1152}")
    A.i("s_mov_b32 s11, 0x20000")
    if K.MIX:
        A.i(f"v_mov_b32 v{T0}, s12")
        A.i(f"v_mov_b32 v{T1}, s14")
        A.i(f"v_mov_b32 v{T2}, s13")
        A.i(f"v_mov_b32 v{T3}, s15")
        A.i(f"v_cndmask_b32 v{T0}, v{T0}, v{T1}, vcc")
        A.i(f"v_cndmask_b32 v{T2}, v{T2}, v{T3}, vcc")
        A.i(f"v_add_co_u32 v{WP}, vcc, v{T0}, v{DW}")
        A.i(f"v_addc_co_u32 v{WP+1}, vcc, 0, v{T2}, vcc")
        A.i(f"v_add_co_u32 v{WP+2}, vcc, {4*3456}, v{WP}")
        A.i(f"v_addc_co_u32 v{WP+3}, vcc, 0, v{WP+1}, vcc")
    else:
        A.i("s_cmp_eq_u32 s26, 1")
        A.i("s_cselect_b32 s12, s14, s12")
        A.i("s_cselect_b32 s13, s15, s13")
        A.i("s_and_b32 s13, s13, 0xffff")
        A.i(f"s_mov_b32 s14, {576*3456}")
        A.i("s_mov_b32 s15, 0x20000")
    stamp(A,4,prof)
    for n,g in enumerate((xdma(0)+wdma(0)+(wdma(1)+xdma(1)+wdma(2))[:K.NPRE]) if W4 else dma_list(0)+dma_list(1)[:K.NPRE]):
        if ORD and n==6: A.i("s_barrier")
        if EPRIO and n==6: A.i("s_setprio 0")
        for l in g: A.i(l)
    if PFW: prefetch_w(A)
    if W112 and DAFD:
        ws_srd(A)
        k1aux.daf_marks(A,64)
    stamp(A,5,prof)

def startup_rest(A,name,prof):
    if LOADERS:
        stamp(A,4,prof);
    else: ws_srd(A)
    A.i(f"v_and_b32 v{T0}, 15, v{V_LANE}")
    A.i(f"v_and_b32 v{T3}, 8, v{V_LANE}")
    A.i(f"v_mul_u32_u24 v{T3}, s27, v{T3}")
    A.i(f"v_add_u32 v{T0}, v{T0}, v{T3}")
    A.i(f"v_lshrrev_b32 v{T1}, 4, v{V_LANE}")
    A.i(f"v_bfe_u32 v{T2}, v{V_LANE}, 1, 3")
    A.i(f"v_xor_b32 v{T2}, v{T1}, v{T2}")
    A.i(f"v_lshlrev_b32 v{T2}, 4, v{T2}")
    A.i(f"v_lshl_add_u32 v{T2}, v{T0}, 7, v{T2}")
    A.i("s_lshl_b32 s6, s28, 13")
    A.i(f"v_add_u32 v{XA}, s6, v{T2}")
    A.i(f"v_xor_b32 v{XA+1}, 64, v{XA}")
    if W112 or NARROW:
        A.i("s_and_b32 s6, s4, 3")
        A.i("s_lshl_b32 s7, s6, 11")
        A.i("s_lshr_b32 s30, s6, 1")
        A.i("s_lshl_b32 s30, s30, 12")
        A.i("s_and_b32 s6, s6, 1")
        A.i("s_lshl_b32 s6, s6, 10")
        A.i("s_add_u32 s6, s6, s30")
        A.i("s_cmp_eq_u32 s27, 1")
        A.i("s_cselect_b32 s6, s6, s7")
        A.i(f"v_add_u32 v{XLA}, s6, v{XA}")
        A.i(f"v_add_u32 v{XLA+1}, s6, v{XA+1}")
    qk_setup(A,name)
    A.i(f"v_lshrrev_b32 v{T1}, 4, v{V_LANE}")
    A.i(f"v_bfe_u32 v{T0}, v{V_LANE}, 2, 2")
    A.i(f"v_lshl_add_u32 v{T2}, v{T1}, 3, v{T0}")
    A.i(f"v_lshlrev_b32 v{T2}, 8, v{T2}")
    A.i(f"v_add_u32 v{T2}, {woff()}, v{T2}")
    A.i(f"v_and_b32 v{T1}, 1, v{T1}")
    A.i(f"v_lshlrev_b32 v{T1}, 2, v{T1}")
    A.i(f"v_lshl_or_b32 v{T0}, v{T0}, 3, v{T1}")
    A.i("s_lshl_b32 s6, s29, 4")
    A.i(f"v_xor_b32 v{T0}, s6, v{T0}")
    A.i(f"v_and_b32 v{T1}, 3, v{V_LANE}")
    A.i(f"v_lshlrev_b32 v{T1}, 2, v{T1}")
    for ct in range(4):
        A.i(f"v_add_u32 v{T3}, {16*(ct&1)}, v{T1}")
        A.i(f"v_lshrrev_b32 v{T3}, v{T3}, s{72+(ct>>1)}")
        A.i(f"v_and_b32 v{T3}, 15, v{T3}")
        A.i(f"v_xor_b32 v{T3}, v{T3}, v{T0}")
        A.i(f"v_lshl_add_u32 v{WA+ct}, v{T3}, 3, v{T2}")
    if K.MONO:
        A.i("s_lshr_b32 s6, s96, 7")
        A.i("s_mul_i32 s7, s6, 57")
        A.i("s_lshr_b32 s7, s7, 9")
        A.i("s_mul_i32 s30, s7, 9")
        A.i("s_sub_u32 s6, s6, s30")
        A.i("s_lshl_b32 s7, s7, 4")
        A.i("s_add_u32 s7, s7, s3")
        A.i(f"s_add_u32 s7, s7, {WS_FLAGB}")
        A.i(f"s_mul_i32 s30, s6, {64*3641}")
        A.i("s_lshr_b32 s30, s30, 16")
        A.i(f"v_add_u32 v{T0}, s30, v{V_LANE}")
        A.i(f"v_mul_u32_u24 v{T1}, 18, v{T0}")
        A.i(f"v_lshrrev_b32 v{T2}, 6, v{T1}")
        A.i(f"v_cmp_ne_u32 vcc, s6, v{T2}")
        A.i(f"v_cndmask_b32 v{T2}, 0, 8, vcc")
        A.i(f"v_lshl_add_u32 v{T2}, v{T0}, 7, v{T2}")
        A.i(f"v_add_u32 v{T2}, s7, v{T2}")
        A.i("s_add_u32 s6, s6, 1")
        A.i("s_lshl_b32 s6, s6, 6")
        A.i("s_min_u32 s6, s6, 576")
        A.i(f"v_cmp_gt_u32 vcc, s6, v{T1}")
        A.i(f"v_mov_b32 v{T3}, {OOB}")
        A.i(f"v_cndmask_b32 v{K.FLV}, v{T3}, v{T2}, vcc")
    if LOADERS:
        A.i("s_waitcnt lgkmcnt(0)")
        ws_srd(A)
        stamp(A,5,prof)
    else: A.i(f"s_waitcnt vmcnt({K.NPRE+(1 if (PFW and not PFL) else 0)+(2 if (W112 and DAFD) else 0)})")
    A.i("s_barrier")
    stamp(A,1,prof)
    A.i("s_cmp_eq_u32 s27, 1")
    A.i(f"s_cbranch_scc1 {name}_vtype")
    if W112 or NARROW:
        A.i("s_cmp_eq_u32 s29, 1" if NARROW!=2 else "s_cmp_eq_u32 s29, s29")
        A.i(f"s_cbranch_scc1 {name}_qkn")
        mainloop(A,False,name=name)
        stamp(A,2,prof)
        qk_epilogue_main(A,name)
        A.i(f"s_branch {name}_qks")
        A.label(f"{name}_qkn")
        mainloop(A,False,name=name,narrow=True)
        stamp(A,2,prof)
        qk_epilogue_narrow(A,name)
        A.label(f"{name}_qks")
        qk_epilogue_singles(A,name,prof)
        A.label(f"{name}_vtype")
        A.i("s_cmp_eq_u32 s29, 1" if NARROW!=2 else "s_cmp_eq_u32 s29, s29")
        A.i(f"s_cbranch_scc1 {name}_vn")
        mainloop(A,True,name=name)
        stamp(A,2,prof)
        v_epilogue(A,name,prof)
        A.label(f"{name}_vn")
        mainloop(A,True,name=name,narrow=True)
        stamp(A,2,prof)
        v_epilogue_narrow(A,name,prof)
        return
    mainloop(A,False,name=name)
    if PRIO: A.i("s_setprio 0")
    stamp(A,2,prof)
    if NOA:
        A.i("s_cmp_eq_u32 s26, 0" if NOA==1 else "s_cmp_eq_u32 s29, 1")
        A.i(f"s_cbranch_scc1 {name}_noa")
    if K.MONO: mono_defer(A,name,1)
    qk_epilogue(A,name,prof)
    A.label(f"{name}_vtype")
    if SKIPPAD and not K.MIX:
        A.i("s_cmp_ge_u32 s32, 576")
        A.i(f"s_cbranch_scc1 {name}_pad")
    mainloop(A,True,name=name)
    if PRIO: A.i("s_setprio 0")
    stamp(A,2,prof)
    if not SKIPPAD and not K.MIX:
        A.i("s_cmp_ge_u32 s32, 576")
        A.i(f"s_cbranch_scc1 {name}_end")
    if NOA:
        A.i("s_cmp_eq_u32 s26, 0" if NOA==1 else "s_cmp_eq_u32 s29, 1")
        A.i(f"s_cbranch_scc1 {name}_noa")
    if K.MONO: mono_defer(A,name,2)
    v_epilogue(A,name,prof)
    if NOA:
        A.label(f"{name}_noa")
        stamp(A,3,prof)
        stamp_store(A,6,prof,name+"_x")
        A.i("s_endpgm")
    if SKIPPAD and not K.MIX:
        A.label(f"{name}_pad")
        mainloop(A,True,nomfma=True)
        A.i("s_endpgm")
```

```python
from asmlib import *

V_LANE=1; A_KM=2; A_KR=3; A_V=4; T0=5; T1=6; T2=7
QM=8; QR=12; QR0=14
KM=16; KR=20; V0=24; V1=28; P=32; O=40; S0=56; S1=72
X0=88
NV=104

def mfma16(A,d,a,b,c):
    cs = "0" if c is None else vr(c,16)
    A.i(f"v_mfma_f32_32x32x16_bf16 {vr(d,16)}, {vr(a,4)}, {vr(b,4)}, {cs}")
def mfma8(A,d,a,b,c):
    cs = "0" if c is None else vr(c,16)
    A.i(f"v_mfma_f32_32x32x8_bf16 {vr(d,16)}, {vr(a,2)}, {vr(b,2)}, {cs}")

def exps(A,s,lo,p):
    A.i(f"v_exp_f32 v{s+lo}, v{s+lo}")
    A.i(f"v_exp_f32 v{s+lo+1}, v{s+lo+1}")
    A.i(f"v_exp_f32 v{s+lo+2}, v{s+lo+2}")
    A.i(f"v_cvt_pk_bf16_f32 v{P+p}, v{s+lo}, v{s+lo+1}")
    A.i(f"v_exp_f32 v{s+lo+3}, v{s+lo+3}")
    return f"v_cvt_pk_bf16_f32 v{P+p+1}, v{s+lo+2}, v{s+lo+3}"

OPT={}
def v1a(off):
    return f"v{T1} offset:{off}" if OPT.get('vs') else f"v{A_V} offset:{off+608}"
def v1upd(A):
    if OPT.get('vs'): A.i(f"v_xor_b32 v{T1}, 32, v{A_V}")
def v1ld(dst,sreg):
    if OPT.get('vs'): return f"v_xor_b32 v{dst}, 32, v{LAV}\n  buffer_load_dwordx4 {vr(dst,4)}, v{dst}, s[24:27], s{sreg} offen"
    return f"buffer_load_dwordx4 {vr(dst,4)}, v{LAV}, s[24:27], s{sreg} offen offset:608"
GRP_B=4*TILE_B; KG=[20,96]; QRO=118
def toff(t):
    if OPT.get('krg'): return (t>>2)*GRP_B+512+(t&3)*2240
    return t*TILE_B
_it=[0]
KMB=192; KRB=196; V0B=198; V1B=202
def step(A0,tau,cur,nxt,dma=None,ins=None):
    class F:
        def i(self,x):
            if OPT.get('nods') and x.startswith('ds_'): return
            if OPT.get('nowait') and x.startswith('s_waitcnt'): return
            if OPT.get('nomfma') and x.startswith('v_mfma'): return
            if OPT.get('nopv') and x.startswith('v_mfma') and f'v[{O}:' in x.split(',')[0]: return
            if OPT.get('nocvt') and x.startswith('v_cvt'): return
            if OPT.get('nov') and x.startswith('ds_read_b64_tr'): return
            A0.i(x)
    A=F()
    def cv(p,a):
        if OPT.get('perm'): return f"v_perm_b32 v{P+p}, v{a+1}, v{a}, s71"
        return f"v_cvt_pk_bf16_f32 v{P+p}, v{a}, v{a+1}"
    def ex(i): return f"v_exp_f32 v{cur+i}, v{cur+i}"
    M1=lambda: mfma16(A,nxt,KM,QM,None)
    M2=lambda: mfma16(A,O,V1,P+4,O)
    M3=lambda: mfma8(A,nxt,KR,QR,nxt)
    M4=lambda: mfma16(A,O,V0,P,O)
    R1=f"ds_read_b128 {vr(KM,4)}, v{A_KM} offset:{(tau+2)*TILE_B}"
    R2=f"ds_read_b128 {vr(V1,4)}, {v1a(tau*TILE_B)}"
    R3=f"ds_read_b32 v{KR}, v{A_KR} offset:{(tau+2)*TILE_B}"
    R4=f"ds_read_b128 {vr(V0,4)}, v{A_V} offset:{(tau+1)*TILE_B}"
    W="s_waitcnt lgkmcnt(3)"
    order=OPT.get('order',0)
    if order==0:
        A.i(W); M1(); A.i(R1)
        for x in (ex(0),ex(1),ex(2),cv(0,cur),ex(3),W,cv(1,cur+2)): A.i(x)
        M2(); A.i(R2)
        for x in (ex(4),ex(5),ex(6),cv(2,cur+4),ex(7),W,cv(3,cur+6)): A.i(x)
        M3(); A.i(R3)
        for x in (ex(8),ex(9),ex(10),cv(4,cur+8),ex(11),W,cv(5,cur+10)): A.i(x)
        M4(); A.i(R4)
        if dma:
            for l in dma: A.i(l)
        for x in (ex(12),ex(13),ex(14),cv(6,cur+12),ex(15),"s_nop 0",cv(7,cur+14)): A.i(x)
    elif order==1:
        A.i(W); M1(); A.i(R1)
        for x in (ex(0),ex(1),ex(2),ex(3),W): A.i(x)
        M2(); A.i(R2)
        for x in (cv(0,cur),cv(1,cur+2),ex(4),ex(5),ex(6),ex(7),W): A.i(x)
        M3(); A.i(R3)
        for x in (cv(2,cur+4),cv(3,cur+6),ex(8),ex(9),ex(10),ex(11),W): A.i(x)
        M4(); A.i(R4)
        if dma:
            for l in dma: A.i(l)
        for x in (cv(4,cur+8),cv(5,cur+10),ex(12),ex(13),ex(14),ex(15),cv(6,cur+12),cv(7,cur+14)): A.i(x)
    elif order==2:
        A.i(W); M1(); A.i(R1)
        for x in (ex(0),ex(1),ex(2),ex(3),W): A.i(x)
        M2(); A.i(R2)
        for x in (ex(4),cv(0,cur),ex(5),cv(1,cur+2),ex(6),ex(7),W): A.i(x)
        M3(); A.i(R3)
        for x in (ex(8),cv(2,cur+4),ex(9),cv(3,cur+6),ex(10),ex(11),W): A.i(x)
        M4(); A.i(R4)
        if dma:
            for l in dma: A.i(l)
        for x in (ex(12),cv(4,cur+8),ex(13),cv(5,cur+10),ex(14),ex(15),cv(6,cur+12),cv(7,cur+14)): A.i(x)
    elif order in (4,5,6):
        par=tau&1
        KMa=[KM,KMB][par]; KRa=[KR,KRB][par]; V0a=[V0,V0B][par]; V1a=[V1,V1B][par]
        KMn=[KM,KMB][par^1]; KRn=[KR,KRB][par^1]; V0n=[V0,V0B][par^1]; V1n=[V1,V1B][par^1]
        rd=[f"ds_read_b128 {vr(KMn,4)}, v{A_KM} offset:{toff(tau+2)}",
            f"ds_read_b128 {vr(V1n,4)}, {v1a(toff(tau))}",
            f"ds_read_b32 v{KRn}, v{A_KR} offset:{(tau+2)*TILE_B}",
            f"ds_read_b128 {vr(V0n,4)}, v{A_V} offset:{toff(tau+1)}"]
        QRa=QR
        if OPT.get('krg'):
            rd[2]=f"ds_read_b128 {vr(KG[((tau+2)>>2)&1],4)}, v{A_KR} offset:{((tau+2)>>2)*GRP_B}" if tau%4==2 else None
            KRa=KG[((tau+1)>>2)&1]+2*(((tau+1)>>1)&1); QRa=QRO if (tau+1)&1 else QR
        if OPT.get('halfds') and _it[0]>1 and (tau%2==1 or OPT['halfds']==2): rd=["s_nop 0"]*4 if OPT.get('dsnop') else [None]*4
        class G:
            def i(self,x,A=A):
                if x is not None: A.i(x)
        A=G()
        def seg(L,k):
            h=ins[k] if ins else []
            pos=OPT.get('tpos',[3,5,5,5])[k]
            for n,x in enumerate(L):
                if n==pos:
                    for y in h: A.i(y)
                A.i(x)
            if pos>=len(L):
                for y in h: A.i(y)
        if order!=6: A.i("s_waitcnt lgkmcnt(0)")
        mfma16(A,nxt,KMa,QM,None)
        if order==4:
            for x in rd: A.i(x)
        else:
            A.i(rd[0]); A.i(rd[1])
        seg((ex(0),ex(1),ex(2),ex(3)),0)
        mfma16(A,O,V1a,P+4,O)
        if order>=5:
            A.i(rd[2]); A.i(rd[3])
        seg((cv(0,cur),cv(1,cur+2),ex(4),ex(5),ex(6),ex(7)),1)
        mfma8(A,nxt,KRa,QRa,nxt)
        seg((cv(2,cur+4),cv(3,cur+6),ex(8),ex(9),ex(10),ex(11)),2)
        mfma16(A,O,V0a,P,O)
        if dma:
            for l in dma: A.i(l)
        if order==6:
            for x in (cv(4,cur+8),cv(5,cur+10),ex(12),ex(13),ex(14),"s_waitcnt lgkmcnt(0)",ex(15),cv(6,cur+12),cv(7,cur+14)): A.i(x)
        else:
            seg((cv(4,cur+8),cv(5,cur+10),ex(12),ex(13),ex(14),ex(15),cv(6,cur+12),cv(7,cur+14)),3)
    elif order==3:
        A.i("s_waitcnt lgkmcnt(0)"); M1()
        for x in (ex(0),ex(1),ex(2),ex(3)): A.i(x)
        M2(); A.i(R1); A.i(R2)
        for x in (cv(0,cur),cv(1,cur+2),ex(4),ex(5),ex(6),ex(7)): A.i(x)
        M3(); A.i(R3)
        for x in (cv(2,cur+4),cv(3,cur+6),ex(8),ex(9),ex(10),ex(11)): A.i(x)
        M4(); A.i(R4)
        if dma:
            for l in dma: A.i(l)
        for x in (cv(4,cur+8),cv(5,cur+10),ex(12),ex(13),ex(14),ex(15),cv(6,cur+12),cv(7,cur+14)): A.i(x)

def set_bias(A,m,tmp):
    a,b,c=tmp,tmp+1,tmp+2
    A.i(f"v_sub_f32 v{a}, 0, v{m}")
    A.i(f"v_and_b32 v{b}, 0xffff0000, v{a}")
    A.i(f"v_sub_f32 v{a}, v{a}, v{b}")
    A.i(f"v_and_b32 v{c}, 0xffff0000, v{a}")
    A.i(f"v_sub_f32 v{a}, v{a}, v{c}")
    A.i(f"v_lshrrev_b32 v{b}, 16, v{b}")
    A.i(f"v_or_b32 v{b}, v{b}, v{c}")
    A.i(f"v_lshrrev_b32 v{a}, 16, v{a}")
    A.i(f"v_cmp_gt_u32 vcc, 32, v{V_LANE}")
    if OPT.get('krg'):
        A.i(f"v_mov_b32 v{c}, 0")
        A.i("s_nop 0")
        A.i(f"v_cndmask_b32 v{QR}, v{b}, v{QR0}, vcc")
        A.i(f"v_cndmask_b32 v{QR+1}, v{a}, v{c}, vcc")
        A.i(f"v_cndmask_b32 v{QRO}, v{b}, v{c}, vcc")
        A.i(f"v_cndmask_b32 v{QRO+1}, v{a}, v{QR0}, vcc")
        return
    A.i("s_nop 1")
    A.i(f"v_cndmask_b32 v{QR+1}, v{a}, v{b}, vcc")

def xhalf_max(A,m,t):
    A.i(f"v_mov_b32 v{t}, v{m}")
    A.i("s_nop 1")
    A.i(f"v_permlane32_swap_b32 v{m}, v{t}")
    A.i("s_nop 1")
    A.i(f"v_max_f32 v{m}, v{m}, v{t}")

def max16(A,dst,s,first):
    if first:
        A.i(f"v_max3_f32 v{dst}, v{s}, v{s+1}, v{s+2}")
        k=3
        A.i(f"v_max_f32 v{dst}, v{dst}, v{s+3}")
        k=4
    else:
        k=0
    while k<16:
        A.i(f"v_max3_f32 v{dst}, v{dst}, v{s+k}, v{s+k+1}")
        k+=2

def stamp(A,i,prof):
    if prof:
        A.i(f"s_memtime s[{40+2*i}:{41+2*i}]")
        A.i("s_waitcnt lgkmcnt(0)")
XR=[86,88,90,92,94,96,52]
def xp(A,k):
    if OPT.get('xst')==2:
        A.i(f"s_memtime s[{XR[k]}:{XR[k]+1}]")
def xs(A,k):
    if OPT.get('xst')==1:
        A.i(f"s_memtime s[{XR[k]}:{XR[k]+1}]")
def stamp_store(A,n,prof,name,base=0):
    if prof:
        A.i("s_memrealtime s[60:61]")
        A.i("s_waitcnt lgkmcnt(0)")
        A.i("s_lshl_b32 s6, s2, 4")
        A.i("s_add_u32 s6, s6, s70")
        A.i("s_lshl_b32 s6, s6, 6")
        A.i(f"s_add_u32 s6, s6, {WS_PROF+base}")
        A.i("s_add_u32 s64, s20, s6")
        A.i("s_addc_u32 s65, s21, 0")
        A.i(f"v_mov_b32 v{X0+8}, 0")
        for i in range(n):
            A.i(f"v_mov_b32 v{X0+9}, s{40+2*i if i<7 else (XR[i-7] if OPT.get('xst') else 84+2*(i-7))}")
            A.i(f"global_store_dword v{X0+8}, v{X0+9}, s[64:65] offset:{4*i}")
        if OPT.get('daf') and name.startswith('k2'):
            for k,r in ((11,99),(12,100)):
                A.i(f"v_mov_b32 v{X0+9}, s{r}")
                A.i(f"global_store_dword v{X0+8}, v{X0+9}, s[64:65] offset:{4*k}")
        A.i("s_getreg_b32 s6, hwreg(HW_REG_XCC_ID, 0, 4)")
        A.i(f"v_mov_b32 v{X0+9}, s6")
        A.i(f"global_store_dword v{X0+8}, v{X0+9}, s[64:65] offset:{52}")
        A.i(f"v_mov_b32 v{X0+9}, s58")
        A.i(f"global_store_dword v{X0+8}, v{X0+9}, s[64:65] offset:{56}")
        A.i(f"v_mov_b32 v{X0+9}, s60")
        A.i(f"global_store_dword v{X0+8}, v{X0+9}, s[64:65] offset:{60}")
def lane_mask(f):
    m=0
    for l in range(64):
        if f(l): m|=1<<l
    return m
class LSet:
    def __init__(s,b):
        s.Q=b; s.QR=b+4; s.KM0=b+6; s.KM1=b+10; s.KR0=b+14; s.KR1=b+16; s.V0=b+18; s.V1=b+22; s.V2=b+26
LA=LSet(104); LB=LSet(134)
DMAV=100; LNEG=101; PFJ=164
BIAS0=168; BIAS1=184
NV=208

def finish_store(A,srd,PK,qt_s,h_s,O_MOD=''):
    A.i(f"v_rcp_f32 v{X0}, v{X0}")
    A.i("s_nop 0")
    if OPT.get('pk'):
        for r in range(0,10,2): A.i(f"v_pk_mul_f32 {vr(O+r,2)}, {vr(O+r,2)}, {vr(X0,2)} op_sel_hi:[1,0]")
    else:
        for r in range(10):
            A.i(f"v_mul_f32 v{O+r}, v{O+r}, v{X0}")
    for r in range(5):
        A.i(f"v_cvt_pk_bf16_f32 v{PK+r}, v{O+2*r}, v{O+2*r+1}")
    A.i(f"v_and_b32 v{T0}, 31, v{V_LANE}")
    A.i(f"s_lshl_b32 s6, s{qt_s}, 5")
    A.i(f"v_add_u32 v{T0}, s6, v{T0}")
    A.i(f"v_mul_u32_u24 v{T0}, 1152, v{T0}")
    A.i(f"s_mul_i32 s6, s{h_s}, 36")
    A.i(f"v_lshrrev_b32 v{T1}, 5, v{V_LANE}")
    A.i(f"v_lshlrev_b32 v{T1}, 3, v{T1}")
    A.i(f"v_add3_u32 v{T0}, v{T0}, v{T1}, s6")
    A.i(f"buffer_store_dwordx2 {vr(PK,2)}, v{T0}, {sr(srd,4)}, 0 offen {O_MOD}")
    A.i(f"buffer_store_dwordx2 {vr(PK+2,2)}, v{T0}, {sr(srd,4)}, 0 offen offset:16 {O_MOD}")
    A.i(f"v_cmp_gt_u32 vcc, 32, v{V_LANE}")
    A.i("s_and_saveexec_b64 s[24:25], vcc")
    A.i(f"buffer_store_dword v{PK+4}, v{T0}, {sr(srd,4)}, 0 offen offset:32 {O_MOD}")
    A.i("s_mov_b64 exec, s[24:25]")

def make_bias(A):
    A.i(f"v_mov_b32 v{LNEG}, 0xf149f2ca")
    A.i(f"v_mov_b32 v{T2}, 0")
    def msk(reg,m):
        A.i(f"s_mov_b32 s32, {m&0xffffffff}")
        A.i(f"s_mov_b32 s33, {m>>32}")
        A.i(f"v_cndmask_b32 v{reg}, v{LNEG}, v{T2}, s[32:33]")
    for i in range(16):
        def ok(l,i=i):
            key=8*(i//4)+4*(l//32)+i%4; d=(l%32)-key
            return d>=0 and d<=14 and d%2==0
        msk(BIAS0+i,lane_mask(ok))
    for i in range(8,16):
        def ok(l,i=i):
            key=8*(i//4)+4*(l//32)+i%4; d=(l%32)+32-key
            return d>=0 and d<=14 and d%2==0
        msk(BIAS1+i-8,lane_mask(ok))

def local_loads(A,L,qt_s,t):
    A.i(f"s_lshl_b32 s30, s3, 6")
    A.i(f"s_add_u32 s30, s30, s{qt_s}")
    A.i(f"s_mul_i32 s30, s30, {QT_B}")
    A.i(f"s_add_u32 s30, s30, {WS_QA-WS_KVA}")
    A.i(f"s_mul_i32 s6, s3, {KV_HEAD}")
    A.i(f"s_mul_i32 s31, s{qt_s}, {TILE_B}")
    A.i(f"s_add_u32 s31, s31, s6")
    A.i(f"s_sub_u32 s35, s31, {TILE_B}")
    A.i(f"s_cmp_eq_u32 s{qt_s}, 0")
    A.i(f"s_cselect_b32 s35, s31, s35")
    A.i(f"buffer_load_dwordx4 {vr(L.Q,4)}, v{DMAV}, s[24:27], s30 offen")
    A.i(f"buffer_load_dword v{L.QR}, v{LAQ}, s[24:27], s30 offen offset:1024")
    A.i(f"buffer_load_dwordx4 {vr(L.KM0,4)}, v{DMAV}, s[24:27], s31 offen")
    A.i(f"buffer_load_dword v{L.KR0}, v{LAR}, s[24:27], s31 offen")
    A.i(f"buffer_load_dwordx4 {vr(L.KM1,4)}, v{DMAV}, s[24:27], s35 offen")
    A.i(f"buffer_load_dword v{L.KR1}, v{LAR}, s[24:27], s35 offen")
    A.i(f"buffer_load_dwordx4 {vr(L.V0,4)}, v{LAV}, s[24:27], s31 offen")
    A.i(v1ld(L.V1,31))
    A.i(v1ld(L.V2,35))
def local_loads_l(L,qt_s,sq,sk,sp):
    pre=["s_lshl_b32 s30, s3, 6", f"s_add_u32 s30, s30, s{qt_s}", f"s_mul_i32 s30, s30, {QT_B}", f"s_add_u32 s{sq}, s30, {WS_QA-WS_KVA}",
         f"s_mul_i32 s6, s3, {KV_HEAD}", f"s_mul_i32 s30, s{qt_s}, {TILE_B}", f"s_add_u32 s{sk}, s30, s6", f"s_sub_u32 s{sp}, s{sk}, {TILE_B}",
         f"s_cmp_eq_u32 s{qt_s}, 0", f"s_cselect_b32 s{sp}, s{sk}, s{sp}"]
    ld=[f"buffer_load_dwordx4 {vr(L.Q,4)}, v{DMAV}, s[24:27], s{sq} offen",
        f"buffer_load_dword v{L.QR}, v{LAQ}, s[24:27], s{sq} offen offset:1024",
        f"buffer_load_dwordx4 {vr(L.KM0,4)}, v{DMAV}, s[24:27], s{sk} offen",
        f"buffer_load_dword v{L.KR0}, v{LAR}, s[24:27], s{sk} offen",
        f"buffer_load_dwordx4 {vr(L.KM1,4)}, v{DMAV}, s[24:27], s{sp} offen",
        f"buffer_load_dword v{L.KR1}, v{LAR}, s[24:27], s{sp} offen",
        f"buffer_load_dwordx4 {vr(L.V0,4)}, v{LAV}, s[24:27], s{sk} offen",
        v1ld(L.V1,sk),
        v1ld(L.V2,sp)]
    return pre,ld
def local_attn_mid(A,L,qt_s):
    global S0,S1,P,O
    sv=(S0,S1,P,O)
    S0,S1,P,O=sv[1],208,240,224
    local_attn(A,L,qt_s)
    S0,S1,P,O=sv
LAQ=102; LAR=103; LAV=165

def local_attn(A,L,qt_s,mid=None):
    A.i(f"v_cmp_gt_u32 vcc, 32, v{V_LANE}")
    A.i(f"v_mov_b32 v{L.QR+1}, 0")
    A.i(f"v_mov_b32 v{L.KR0+1}, 0")
    A.i(f"v_mov_b32 v{L.KR1+1}, 0")
    A.i(f"v_cndmask_b32 v{L.QR}, 0, v{L.QR}, vcc")
    mfma16(A,S0,L.KM0,L.Q,BIAS0)
    mfma16(A,S1,L.KM1,L.Q,BIAS1-8)
    A.i("s_nop 9")
    mfma8(A,S0,L.KR0,L.QR,S0)
    mfma8(A,S1,L.KR1,L.QR,S1)
    A.i("s_nop 11")
    max16(A,X0,S0,True)
    for k in range(8,16,2):
        A.i(f"v_max3_f32 v{X0}, v{X0}, v{S1+k}, v{S1+k+1}")
    xhalf_max(A,X0,X0+1)
    regs=[S0+i for i in range(16)]+[S1+i for i in range(8,16)]
    if OPT.get('pk'):
        for r in regs[::2]: A.i(f"v_pk_add_f32 {vr(r,2)}, {vr(r,2)}, {vr(X0,2)} op_sel_hi:[1,0] neg_lo:[0,1] neg_hi:[0,1]")
    else:
        for r in regs: A.i(f"v_sub_f32 v{r}, v{r}, v{X0}")
    for r in regs: A.i(f"v_exp_f32 v{r}, v{r}")
    A.i("s_nop 0")
    for r in range(8): A.i(f"v_cvt_pk_bf16_f32 v{P+r}, v{S0+2*r}, v{S0+2*r+1}")
    for r in range(4): A.i(f"v_cvt_pk_bf16_f32 v{X0+4+r}, v{S1+8+2*r}, v{S1+8+2*r+1}")
    if mid: mid()
    A.i("s_nop 1")
    mfma16(A,O,L.V0,P,None)
    mfma16(A,O,L.V1,P+4,O)
    mfma16(A,O,L.V2,X0+4,O)
    A.i("s_nop 11")
    A.i("s_nop 7")
    A.i(f"v_mov_b32 v{X0}, v{O+10}")
    A.i(f"v_mov_b32 v{X0+1}, v{O+10}")
    A.i("s_nop 1")
    A.i(f"v_permlane32_swap_b32 v{X0}, v{X0+1}")
    A.i("s_nop 1")
    if OPT.get('ag'): finish_frag(A,L.Q,qt_s)
    else: finish_store(A,36,L.Q,qt_s,3,OPT.get('omod',''))

VOA=206; POLL=207; GB0=120; GB1=16; GACC=232; GV=220; GV8=221; GONE=222; GJ=223
def ag_regs():
    global KMB,KRB,V0B,V1B,LA,LB,BIAS0,BIAS1,PFJ,LAV,NV
    KMB=104; KRB=108; V0B=110; V1B=114
    LA=LSet(120); LB=LSet(150); BIAS0=180; BIAS1=196; PFJ=204; LAV=205; NV=256

def finish_frag(A,PK,qt_s):
    A.i(f"v_rcp_f32 v{X0}, v{X0}")
    A.i("s_nop 0")
    for r in range(0,10,2): A.i(f"v_pk_mul_f32 {vr(O+r,2)}, {vr(O+r,2)}, {vr(X0,2)} op_sel_hi:[1,0]")
    for r in range(5):
        A.i(f"v_cvt_pk_bf16_f32 v{PK+r}, v{O+2*r}, v{O+2*r+1}")
    A.i(f"s_lshl_b32 s6, s{qt_s}, 15")
    A.i("s_lshl_b32 s30, s3, 9")
    A.i("s_add_u32 s6, s6, s30")
    A.i(f"s_add_u32 s6, s6, {WS_OA}")
    A.i(f"s_lshl_b32 s31, s{qt_s}, 12")
    A.i("s_lshl_b32 s30, s3, 7")
    A.i("s_add_u32 s31, s31, s30")
    A.i(f"s_add_u32 s31, s31, {WS_OAR-OFF_KR}")
    A.i(f"buffer_store_dwordx4 {vr(PK,4)}, v{VOA}, s[36:39], s6 offen {OPT.get('oamod','sc1')}")
    A.i(f"v_cmp_gt_u32 vcc, 32, v{V_LANE}")
    A.i("s_and_saveexec_b64 s[32:33], vcc")
    A.i(f"buffer_store_dword v{PK+4}, v{LAR}, s[36:39], s31 offen {OPT.get('oamod','sc1')}")
    A.i("s_mov_b64 exec, s[32:33]")

def ag_loads(steps,base):
    L=[]; r=base; M=[]
    for st in steps:
        o=[]
        for tt in range(2):
            if st<16:
                L.append([f"s_add_u32 s30, s68, {tt*16384+st*1024}",f"buffer_load_dwordx4 {vr(r,4)}, v{GV}, s[36:39], s30 offen {OPT.get('oamod','sc1')}"])
            else:
                for i in range(4):
                    L.append([f"s_add_u32 s30, s67, {(st-16)*2048}",f"buffer_load_dword v{r+i}, v{GJ}, s[36:39], s30 offen offset:{i*128+tt*64} {OPT.get('oamod','sc1')}"])
            o.append(r); r+=4
        w=[]
        for ct in range(3):
            L.append([f"s_add_u32 s30, s69, {(ct*18+st)*1024}",f"buffer_load_dwordx4 {vr(r,4)}, v{GV}, s[36:39], s30 offen"])
            w.append(r); r+=4
        for tt in range(2):
            for ct in range(3):
                d=GACC+4*(3*tt+ct)
                M.append(f"v_mfma_f32_16x16x32_bf16 {vr(d,4)}, {vr(w[ct],4)}, {vr(o[tt],4)}, {vr(d,4) if st else 0}")
    if OPT.get('agnoload'): L=[[g[0]] for g in L]
    if OPT.get('agnomfma'): M=M[:1]
    if OPT.get('agsp'): M=[x for m in M for x in (m,f"s_nop {OPT['agsp']}")]
    return L,M
AGB=[list(range(0,5)),list(range(5,10)),list(range(10,15)),[15,16,17]]
def ag_step(st):
    r=GB0+20*(st%5); L=[]; M=[]
    mod=OPT.get('oaldmod',OPT.get('oamod','sc1')).replace('-','')
    pre=[]
    if st%4==0 and st>0: pre=[f"s_add_u32 s{80+q}, s{80+q}, 4096" for q in range(5)]
    for tt in range(2):
        if st<16: L.append([f"buffer_load_dwordx4 {vr(r+4*tt,4)}, v{GV}, s[36:39], s{80+tt} offen offset:{(st%4)*1024} {mod}"])
        else:
            for i in range(4): L.append([f"buffer_load_dword v{r+4*tt+i}, v{GJ}, s[36:39], s67 offen offset:{(st-16)*2048+i*128+tt*64} {mod}"])
    for ct in range(3):
        L.append([f"buffer_load_dwordx4 {vr(r+8+4*ct,4)}, v{GV}, s[36:39], s{82+ct} offen offset:{(st%4)*1024}"])
    L[0]=pre+L[0]
    for tt in range(2):
        for ct in range(3):
            d=GACC+4*(3*tt+ct)
            M.append(f"v_mfma_f32_16x16x32_bf16 {vr(d,4)}, {vr(r+8+4*ct,4)}, {vr(r+4*tt,4)}, {vr(d,4) if st else 0}")
    return L,M
def ag_sched(ntiles=32):
    D=OPT.get('agd',5); NPT=OPT.get('agn',4)
    steps=[ag_step(st) for st in range(18)]
    pre=[g for st in range(5) for g in steps[st][0]]
    issued=[st for st in range(5) for g in steps[st][0]]
    slots=[(t,k) for t in range(D,ntiles) for k in ([0,1,2,3] if NPT==4 else [0,1,3])]
    hooks=[[[] for k in range(4)] for t in range(ntiles)]
    tail=[]
    pend=[]
    for u in range(108):
        st,j=divmod(u,6)
        dst = hooks[slots[u][0]][slots[u][1]] if u<len(slots) else tail
        if j==0:
            while any(p[0]==st for p in pend):
                p=pend.pop(0); dst.extend(p[1]); issued.append(p[0])
            last=max(i for i,x in enumerate(issued) if x==st)
            dst.append(f"s_waitcnt vmcnt({len(issued)-1-last})")
        dst.append(steps[st][1][j])
        if u>=len(slots) and OPT.get('agsp'): dst.append(f"s_nop {OPT['agsp']}")
        if j==5 and st+5<18: pend+=[(st+5,g) for g in steps[st+5][0]]
        n=2 if (pend and pend[0][0]>=16) else 1
        for _ in range(n):
            if pend:
                p=pend.pop(0); dst.extend(p[1]); issued.append(p[0])
    assert not pend
    return pre,hooks,tail
def ag_bases(A):
    A.i("s_mov_b32 s80, s68")
    A.i("s_add_u32 s81, s68, 16384")
    A.i("s_mov_b32 s82, s69")
    A.i(f"s_add_u32 s83, s69, {18*1024}")
    A.i(f"s_add_u32 s84, s69, {36*1024}")
def emit(A,L):
    for g in L:
        for l in (g if isinstance(g,list) else [g]): A.i(l)
def ag_setup(A):
    A.i("s_and_b32 s6, s2, 7")
    A.i("s_lshl_b32 s6, s6, 3")
    if OPT.get('amap'):
        A.i("s_lshr_b32 s30, s2, 3")
        A.i("s_mul_i32 s30, s30, 3")
        A.i("s_add_u32 s30, s30, s98")
        A.i("s_lshr_b32 s63, s30, 3")
        A.i("s_and_b32 s30, s30, 7")
        A.i("s_add_u32 s62, s6, s30")
    else:
        A.i("s_lshr_b32 s30, s2, 5")
        A.i("s_add_u32 s62, s6, s30")
        A.i("s_lshr_b32 s30, s2, 3")
        A.i("s_and_b32 s30, s30, 3")
        A.i("s_mul_i32 s30, s30, 3")
        A.i("s_add_u32 s63, s30, s98")
    A.i("s_lshl_b32 s68, s62, 15")
    A.i(f"s_add_u32 s68, s68, {WS_OA}")
    A.i(f"s_mul_i32 s69, s63, {3*18*1024}")
    A.i(f"s_add_u32 s69, s69, {WS_WOT}")
    A.i("s_lshl_b32 s67, s62, 12")
    A.i(f"s_add_u32 s67, s67, {WS_OAR}")
    A.i(f"v_lshlrev_b32 v{GV}, 4, v{V_LANE}")
    A.i(f"v_lshlrev_b32 v{GV8}, 3, v{V_LANE}")
    A.i(f"v_lshrrev_b32 v{GJ}, 4, v{V_LANE}")
    A.i(f"v_lshlrev_b32 v{GJ}, 9, v{GJ}")
    A.i(f"v_and_b32 v{GONE}, 15, v{V_LANE}")
    A.i(f"v_lshl_add_u32 v{GJ}, v{GONE}, 2, v{GJ}")
    A.i(f"v_mov_b32 v{GONE}, 1")
def ag_task(A,name,newer):
    Ls=[];Ms=[]
    for b in range(4):
        L,M=ag_loads(AGB[b],GB0 if b%2==0 else GB1); Ls.append(L); Ms.append(M)
    emit(A,Ls[1])
    A.i(f"s_waitcnt vmcnt({len(Ls[1])+newer})")
    emit(A,Ms[0]); emit(A,Ls[2])
    A.i(f"s_waitcnt vmcnt({len(Ls[2])})")
    emit(A,Ms[1]); emit(A,Ls[3])
    A.i(f"s_waitcnt vmcnt({len(Ls[3])})")
    emit(A,Ms[2])
    A.i("s_waitcnt vmcnt(0)")
    emit(A,Ms[3])
    ag_epi(A)
ABASE=151552
def ag_epi_lds(A):
    A.i("s_mul_i32 s6, s98, 1536")
    A.i(f"s_add_u32 s6, s6, {ABASE}")
    A.i(f"v_add_u32 v{GV8}, s6, v{GV8}")
    A.i("s_nop 3")
    for tt in range(2):
        for ct in range(3):
            d=GACC+4*(3*tt+ct); p=GB0+2*(3*tt+ct)
            A.i(f"v_cvt_pk_bf16_f32 v{p}, v{d}, v{d+1}")
            A.i(f"v_cvt_pk_bf16_f32 v{p+1}, v{d+2}, v{d+3}")
            A.i(f"ds_write_b64 v{GV8}, {vr(p,2)} offset:{(tt*9+ct)*512}")
def ag_epi(A):
    if OPT.get('fuse'): return ag_epi_lds(A)
    A.i("s_lshl_b32 s6, s62, 1")
    A.i("s_mul_i32 s6, s6, 36")
    A.i("s_mul_i32 s30, s63, 3")
    A.i("s_add_u32 s6, s6, s30")
    A.i("s_lshl_b32 s6, s6, 9")
    A.i(f"s_add_u32 s6, s6, {WS_AT}")
    A.i(f"s_add_u32 s30, s6, {36*512}")
    A.i("s_lshl_b32 s31, s62, 4")
    A.i("s_add_u32 s31, s31, s63")
    A.i("s_lshl_b32 s31, s31, 2")
    A.i(f"s_add_u32 s31, s31, {WS_FLAG+0x1000}")
    A.i("s_nop 3")
    for tt in range(2):
        for ct in range(3):
            d=GACC+4*(3*tt+ct); p=GB0+2*(3*tt+ct)
            A.i(f"v_cvt_pk_bf16_f32 v{p}, v{d}, v{d+1}")
            A.i(f"v_cvt_pk_bf16_f32 v{p+1}, v{d+2}, v{d+3}")
            A.i(f"buffer_store_dwordx2 {vr(p,2)}, v{GV8}, s[36:39], s{30 if tt else 6} offen offset:{ct*512} {OPT.get('atmod','')}")
    A.i("s_mov_b64 exec, 1")
    A.i(f"buffer_store_dword v{GONE}, off, s[36:39], s31")
    A.i("s_mov_b64 exec, -1")
def touch(A,srd,base,dst):
    A.i("s_lshr_b32 s6, s2, 3")
    A.i("s_lshl_b32 s6, s6, 2")
    A.i("s_add_u32 s6, s6, s98")
    A.i(f"s_mul_i32 s6, s6, {41*128}")
    if base: A.i(f"s_add_u32 s6, s6, {base}")
    A.i(f"v_lshlrev_b32 v{T0}, 7, v{V_LANE}")
    A.i(f"v_cmp_gt_u32 vcc, 41, v{V_LANE}")
    A.i("s_and_saveexec_b64 s[32:33], vcc")
    A.i(f"buffer_load_dword v{dst}, v{T0}, {sr(srd,4)}, s6 offen")
    A.i("s_mov_b64 exec, s[32:33]")

def prefetch_wo(A):
    A.i("s_lshr_b32 s6, s2, 3")
    A.i("s_lshl_b32 s6, s6, 2")
    A.i("s_add_u32 s6, s6, s5")
    A.i("s_cmp_ge_u32 s6, 64")
    A.i("s_cselect_b32 s72, s78, s76")
    A.i("s_cselect_b32 s73, s79, s77")
    A.i("s_and_b32 s73, s73, 0xffff")
    A.i(f"s_mov_b32 s74, {576*1152}")
    A.i("s_mov_b32 s75, 0x20000")
    A.i("s_and_b32 s6, s6, 63")
    A.i(f"s_mul_i32 s6, s6, {81*128}")
    A.i(f"v_lshlrev_b32 v{PFJ}, 7, v{V_LANE}")
    A.i(f"s_add_u32 s7, s6, 8192")
    A.i(f"buffer_load_dword v{PFJ+0}, v{PFJ}, s[72:75], s6 offen")
    A.i(f"v_lshlrev_b32 v{T0}, 7, v{V_LANE}")
    A.i(f"v_cmp_gt_u32 s[82:83], 17, v{V_LANE}")
    A.i("s_nop 3")
    A.i("s_and_saveexec_b64 s[80:81], s[82:83]")
    A.i(f"buffer_load_dword v{T1}, v{T0}, s[72:75], s7 offen")
    A.i("s_mov_b64 exec, s[80:81]")

LCNT2=163836
SPIN=60000
def xt(A,k,prof):
    if prof and not OPT.get('xst'):
        A.i(f"s_memtime s[{84+2*k}:{85+2*k}]")
        A.i("s_waitcnt lgkmcnt(0)")
def finish_frag_b(A,PK):
    A.i(f"v_rcp_f32 v{X0}, v{X0}")
    A.i(f"v_bfe_u32 v{T0}, v{V_LANE}, 4, 1")
    A.i(f"v_lshlrev_b32 v{T0}, 14, v{T0}")
    A.i(f"v_lshrrev_b32 v{T2}, 5, v{V_LANE}")
    A.i(f"v_lshl_add_u32 v{T0}, v{T2}, 8, v{T0}")
    A.i(f"v_and_b32 v{T2}, 15, v{V_LANE}")
    A.i(f"v_lshl_add_u32 v{T0}, v{T2}, 4, v{T0}")
    for r in range(0,10,2): A.i(f"v_pk_mul_f32 {vr(O+r,2)}, {vr(O+r,2)}, {vr(X0,2)} op_sel_hi:[1,0]")
    for r in range(5):
        A.i(f"v_cvt_pk_bf16_f32 v{PK+r}, v{O+2*r}, v{O+2*r+1}")
    if OPT.get('daf'):
        for r in range(5): A.i(f"v_min_u32 v{PK+r}, -2, v{PK+r}")
    A.i("s_lshl_b32 s6, s7, 15")
    A.i("s_lshl_b32 s30, s3, 9")
    A.i("s_add_u32 s6, s6, s30")
    A.i(f"s_add_u32 s6, s6, {WS_OB}")
    A.i("s_lshl_b32 s31, s7, 12")
    A.i("s_lshl_b32 s30, s3, 7")
    A.i("s_add_u32 s31, s31, s30")
    A.i(f"s_add_u32 s31, s31, {WS_OBR-OFF_KR}")
    A.i(f"buffer_store_dwordx4 {vr(PK,4)}, v{T0}, s[36:39], s6 offen sc1")
    A.i(f"v_cmp_gt_u32 vcc, 32, v{V_LANE}")
    A.i("s_and_saveexec_b64 s[32:33], vcc")
    A.i(f"buffer_store_dword v{PK+4}, v{LAR}, s[36:39], s31 offen sc1")
    A.i("s_mov_b64 exec, s[32:33]")
def spin(A,lab,reg,flagreg,tmp):
    A.i(f"s_mov_b32 s{tmp}, {SPIN}")
    A.label(lab)
    A.i("s_cmp_eq_u32 s6, 32")
    A.i(f"s_cbranch_scc1 {lab}_go")
    A.i(f"s_sub_u32 s{tmp}, s{tmp}, 1")
    A.i(f"s_cbranch_scc1 {lab}_go")
    A.i(f"buffer_load_dword v{reg}, off, s[36:39], s{flagreg} sc1")
    A.i("s_waitcnt vmcnt(0)")
    A.i(f"v_readfirstlane_b32 s6, v{reg}")
    A.i(f"s_branch {lab}")
    A.label(lab+"_go")
EW=120; EG=200; EX=160; PFJ_O=22
TL16=8; TG=9; TOM=11; TOUT=13; TRM=14; TAA=15; TX=16; TACC=40; TW=64; TGA=208; TAP=224; TTMP=56; TDY=60
EGO=118
def WPRE(ci,st):
    return 120+4*(17*ci+st) if st<17 else 104+4*ci
def gen_tail(A,name,prof):
    global TGA,TAP
    sw2=OPT.get('sw2')
    if sw2: TGA,TAP=64,80
    WS_=(lambda ci,st: WPRE(ci,st)) if sw2 else (lambda ci,st: TW+72*ci+4*st)
    WY_=(lambda ci,st: 120+4*st) if sw2 else (lambda ci,st: TW+4*st)
    ptc=OPT.get('ptc')
    daf=OPT.get('daf')
    if daf:
        assert OPT.get('wlate') and not OPT.get('tb') and not sw2
    elif ptc:
        A.i(f"v_mov_b32 v{TTMP+3}, 1")
        A.i("s_lshl_b32 s30, s7, 7")
        A.i(f"s_add_u32 s30, s30, {WS_FLAG+0x2000}")
        A.i("s_waitcnt vmcnt(0) lgkmcnt(0)")
        A.i("s_mov_b64 exec, 1")
        A.i(f"buffer_atomic_add v{TTMP+3}, off, s[36:39], s30 sc1")
        A.i("s_mov_b64 exec, -1")
    else:
      R=OPT.get('prep',1)
      if R>1: A.i(f"v_lshlrev_b32 v{TTMP+1}, 7, v{V_LANE}")
      for l in ["s_waitcnt vmcnt(0) lgkmcnt(0)",
        f"v_mov_b32 v{TTMP}, {LCNT2}",
        f"v_mov_b32 v{TTMP+3}, 1",
        "s_mov_b64 exec, 1",
        f"ds_add_rtn_u32 v{TTMP+2}, v{TTMP}, v{TTMP+3}",
        f"s_mul_i32 s30, s4, {R*128 if R>1 else 256}",
        f"s_add_u32 s30, s30, {WS_FLAG+0x1000}",
        "s_waitcnt lgkmcnt(0)",
        f"v_readfirstlane_b32 s6, v{TTMP+2}",
        "s_mov_b32 s73, s6",
        "s_cmp_eq_u32 s6, 7",
        f"s_cbranch_scc0 {name}_tnosig"]+([f"buffer_atomic_add v{TTMP+3}, off, s[36:39], s30 sc1"] if R==1 else
        [f"s_mov_b32 exec_lo, {hex((1<<R)-1)}", "s_mov_b32 exec_hi, 0", f"buffer_atomic_add v{TTMP+3}, v{TTMP+1}, s[36:39], s30 offen sc1"]): A.i(l)
      A.label(f"{name}_tnosig")
      A.i("s_mov_b64 exec, -1")
    xt(A,0,prof)
    def common_setup():
        A.i("s_and_b32 s74, s2, 7")
        A.i("s_lshl_b32 s74, s74, 3")
        A.i("s_lshr_b32 s6, s2, 5")
        A.i("s_add_u32 s74, s74, s6")
        A.i("s_lshr_b32 s75, s2, 3")
        A.i("s_and_b32 s75, s75, 3")
        A.i(f"v_lshlrev_b32 v{TL16}, 4, v{V_LANE}")
        A.i(f"v_and_b32 v{TTMP}, 15, v{V_LANE}")
        A.i(f"v_lshrrev_b32 v{TTMP+1}, 4, v{V_LANE}")
        A.i(f"v_lshlrev_b32 v{TRM}, 9, v{TTMP+1}")
        A.i(f"v_lshl_add_u32 v{TRM}, v{TTMP}, 2, v{TRM}")
        A.i(f"v_lshlrev_b32 v{TAA}, 3, v{V_LANE}")
        A.i(f"v_add_u32 v{TAA}, {ABASE}, v{TAA}")
        A.i("s_lshl_b32 s6, s74, 5")
        A.i(f"v_add_u32 v{TTMP}, s6, v{TTMP}")
        A.i(f"v_mul_u32_u24 v{TOUT}, 1152, v{TTMP}")
        A.i(f"v_lshl_add_u32 v{TOUT}, v{TTMP+1}, 3, v{TOUT}")
        A.i(f"v_lshlrev_b32 v{TTMP}, 2, v{TTMP}")
    def xload6(p,md,ar=TL16):
        if p<4:
            for k in range(2): A.i(f"buffer_load_dwordx4 {vr(16+8*p+4*k,4)}, v{ar}, s[36:39], s{80+p} offen offset:{k*1024} {md}")
        else: A.i(f"buffer_load_dwordx4 {vr(16+32,4)}, v{ar}, s[36:39], s67 offen {md}")
    if daf==6:
        md6=OPT.get('xmod','sc1').replace('-','')
        A.i("s_cmp_ge_u32 s5, 4")
        A.i(f"s_cbranch_scc0 {name}_tcom")
        A.i(f"s_setprio {OPT.get('dprio',2)}")
        A.i("s_cmp_eq_u32 s5, 7")
        A.i(f"s_cbranch_scc1 {name}_tcom")
        A.i("s_barrier")
        if prof:
            A.i("s_memtime s[100:101]")
            A.i("s_waitcnt lgkmcnt(0)")
            A.i("s_mov_b32 s99, 1")
        for p in range(5): xload6(p,md6,DMAV)
        common_setup()
        A.i(f"s_branch {name}_tl1")
        A.label(f"{name}_tcom")
    common_setup()
    wlate=OPT.get('wlate')
    def gw_loads(two,steps=None,g=True):
        if sw2 and two:
            A.i(f"v_mov_b32 v{TG}, v{EGO}")
            A.i(f"v_mov_b32 v{TG+1}, v{EGO+1}")
        elif g:
            A.i(f"s_mov_b32 s30, {WS_G}")
            A.i(f"buffer_load_dword v{TG}, v{TTMP}, s[36:39], s30 offen")
            A.i(f"buffer_load_dword v{TG+1}, v{TTMP}, s[36:39], s30 offen offset:64")
        A.i("s_lshl_b32 s72, s5, 1")
        A.i("s_min_u32 s72, s72, 8")
        A.i("s_mul_i32 s6, s75, 9")
        A.i("s_add_u32 s6, s6, s72")
        if OPT.get('w64'):
            A.i("s_mul_i32 s31, s75, 288")
            A.i("s_and_b32 s30, s75, 1")
            if two:
                A.i("s_lshl_b32 s30, s30, 5")
                A.i("s_add_u32 s31, s31, s30")
                A.i("s_lshl_b32 s30, s5, 6")
                A.i("s_add_u32 s31, s31, s30")
                A.i(f"v_lshrrev_b32 v{TDY+3}, 4, v{V_LANE}")
                A.i(f"v_lshl_add_u32 v{TOUT}, v{TDY+3}, 3, v{TOUT}")
            else:
                A.i("s_cmp_eq_u32 s30, 0")
                A.i("s_cselect_b32 s30, 256, 0")
                A.i("s_add_u32 s31, s31, s30")
        else: A.i("s_lshl_b32 s31, s6, 5")
        A.i(f"v_add_u32 v{TOUT}, s31, v{TOUT}")
        A.i(f"s_mul_i32 s30, s6, {18*1024}")
        if steps:
            A.i(f"s_add_u32 s30, s30, {WS_WOTB+steps[0]*1024}")
            for k,st in enumerate(steps):
                if k and k%4==0: A.i("s_add_u32 s30, s30, 4096")
                A.i(f"buffer_load_dwordx4 {vr(TW+4*st,4)}, v{TL16}, s[36:39], s30 offen offset:{(k%4)*1024}")
            return
        if sw2 and two:
            A.i(f"s_add_u32 s30, s30, {WS_WOTB+17*1024}")
            A.i(f"buffer_load_dwordx4 {vr(WS_(0,17),4)}, v{TL16}, s[36:39], s30 offen")
            A.i(f"s_add_u32 s30, s30, {18*1024}")
            A.i(f"buffer_load_dwordx4 {vr(WS_(1,17),4)}, v{TL16}, s[36:39], s30 offen")
            return
        A.i(f"s_add_u32 s30, s30, {WS_WOTB}")
        for st in range(18):
            if st and st%4==0: A.i("s_add_u32 s30, s30, 4096")
            A.i(f"buffer_load_dwordx4 {vr(WY_(0,st) if not two else TW+4*st,4)}, v{TL16}, s[36:39], s30 offen offset:{(st%4)*1024}")
        if two=='w':
            A.i("s_cmp_ge_u32 s5, 4")
            A.i(f"s_cbranch_scc1 {name}_tnow")
        if two:
            A.i("s_add_u32 s30, s30, 2048")
            for st in range(18):
                if st and st%4==0: A.i("s_add_u32 s30, s30, 4096")
                A.i(f"buffer_load_dwordx4 {vr(TW+72+4*st,4)}, v{TL16}, s[36:39], s30 offen offset:{(st%4)*1024}")
    def xrd(slot,tt,st):
        r=TX+8*slot
        if st<16: return lambda o: [f"ds_read_b128 {vr(r+o,4)}, v{TL16} offset:{(tt*16+st)*1024}"]
        return lambda o: [f"ds_read_b32 v{r+o+i}, v{TRM} offset:{32768+(st-16)*2048+i*128+tt*64}" for i in range(4)]
    def mix_setup(units,npieces):
        for n,(tt,ct) in enumerate(units):
            if tt=='w': A.i(f"ds_read_b64 {vr(TAP+2*n,2)}, v{TAA}")
            else: A.i(f"ds_read_b64 {vr(TAP+2*n,2)}, v{TAA} offset:{(tt*9+ct)*512}")
        A.i(f"s_waitcnt vmcnt({npieces}) lgkmcnt(0)")
        for n,(tt,ct) in enumerate(units):
            g=TG+(0 if tt=='w' else tt)
            for h in range(2):
                A.i(f"v_lshlrev_b32 v{TGA+4*n+2*h}, 16, v{TAP+2*n+h}")
                A.i(f"v_and_b32 v{TGA+4*n+2*h+1}, 0xffff0000, v{TAP+2*n+h}")
            for r in range(4): A.i(f"v_mul_f32 v{TGA+4*n+r}, v{g}, v{TGA+4*n+r}")
        A.i(f"v_sub_f32 v{TOM}, 1.0, v{TG}")
        A.i(f"v_sub_f32 v{TOM+1}, 1.0, v{TG+1}")
    def gemm(tts,cts,dyn,steps=None,bar=None):
        q=[]
        steps=steps or list(range(18))
        def issue(st):
            for k,tt in enumerate(tts):
                if dyn:
                    r=TX+8*(st%3)
                    if st<16: L=[f"ds_read_b128 {vr(r,4)}, v{TDY} offset:{st*1024}"]
                    else: L=[f"ds_read_b32 v{r+i}, v{TDY+1} offset:{32768+(st-16)*2048+i*128}" for i in range(4)]
                else: L=xrd(st%3,tt,st)(4*k)
                for l in L: A.i(l); q.append(st)
        issue(steps[0]); issue(steps[1])
        for st in steps:
            late=bar is not None and st==bar
            if st+2<=steps[-1] and not late: issue(st+2)
            newer=sum(1 for x in q if x>st)
            A.i(f"s_waitcnt lgkmcnt({min(newer,15)})")
            for ci in range(cts):
                for k,tt in enumerate(tts):
                    d=TACC+4*(ci*len(tts)+k)
                    A.i(f"v_mfma_f32_16x16x32_bf16 {vr(d,4)}, {vr(WY_(0,st) if dyn else WS_(ci,st),4)}, {vr(TX+8*(st%3)+4*k,4)}, {vr(d,4) if st!=steps[0] else 0}")
            if late:
                A.i("s_waitcnt vmcnt(0)")
                A.i("s_barrier")
                issue(st+2)
    def epi(units,pre=()):
        A.i("s_nop 7")
        for l in pre: A.i(l)
        if OPT.get('w64') and len(units)==4:
            for tt in range(2):
                for ci in range(2):
                    n=2*ci+tt; d=TACC+4*n; p=TAP+4*tt+2*ci
                    for r in range(4): A.i(f"v_fma_f32 v{d+r}, v{TOM+tt}, v{d+r}, v{TGA+4*n+r}")
                    A.i(f"v_cvt_pk_bf16_f32 v{p}, v{d}, v{d+1}")
                    A.i(f"v_cvt_pk_bf16_f32 v{p+1}, v{d+2}, v{d+3}")
                A.i(f"buffer_store_dwordx4 {vr(TAP+4*tt,4)}, v{TOUT}, s[16:19], s{72+tt} offen {OPT.get('outmod','')}".rstrip())
            return
        for n,(tt,off) in enumerate(units):
            d=TACC+4*n
            for r in range(4): A.i(f"v_fma_f32 v{d+r}, v{TOM+tt}, v{d+r}, v{TGA+4*n+r}")
            A.i(f"v_cvt_pk_bf16_f32 v{TAP+2*n}, v{d}, v{d+1}")
            A.i(f"v_cvt_pk_bf16_f32 v{TAP+2*n+1}, v{d+2}, v{d+3}")
            if OPT.get('epix') and off: continue
            A.i(f"buffer_store_dwordx2 {vr(TAP+2*n,2)}, v{TOUT}, s[16:19], s{72+tt} offen offset:{off} {OPT.get('outmod','')}".rstrip())
    A.i(f"s_cmp_ge_u32 s5, {4 if wlate else 6}")
    A.i(f"s_cbranch_scc1 {name}_tnow")
    if OPT.get('otouch'):
        A.i("s_mul_i32 s30, s75, 288")
        A.i(f"buffer_load_dword v{TDY+3}, v{TOUT}, s[16:19], s30 offen")
    assert wlate or OPT.get('tb')!=2
    if OPT.get('now'):
        A.i(f"s_mov_b32 s30, {WS_G}")
        A.i(f"buffer_load_dword v{TG}, v{TTMP}, s[36:39], s30 offen")
        A.i(f"buffer_load_dword v{TG+1}, v{TTMP}, s[36:39], s30 offen offset:64")
    else: gw_loads(True if wlate else 'w')
    A.label(f"{name}_tnow")
    if daf==6:
        XS=16; XL=52; XR=53; XM=54; XM2=55
        RING=[16,24,32,232]; FA=TDY; FV=TDY+1; VN=TDY+2
        ALL=0x44444
        A.i("s_cmp_ge_u32 s5, 4")
        A.i(f"s_cbranch_scc1 {name}_tyoung")
        A.i("s_lshl_b32 s6, s5, 10")
        A.i(f"v_add_u32 v{TAA}, s6, v{TAA}")
        A.i(f"v_mov_b32 v{FA}, {LCNT2}")
        for r in range(16): A.i(f"v_mov_b32 v{TACC+r}, 0")
        A.i("s_mov_b32 s72, 0")
        A.i(f"s_mov_b32 s73, {16*1152}")
        A.i(f"s_mov_b32 s31, {ALL}")
        A.i("s_waitcnt lgkmcnt(0)")
        A.i("s_barrier")
        xt(A,1,prof)
        mix_setup([(0,0),(1,0),(0,1),(1,1)],0)
        def rdset(j): return [f"ds_read_b128 {vr(RING[j]+4*tt,4)}, v{VN} offset:{tt*4096+j*1024}" for tt in range(2)]
        rdflag=[f"ds_read_b32 v{FV}, v{FA}"]
        def mm(st,slot,gaps=None):
            k=0
            for ci in range(2):
                for tt in range(2):
                    d=TACC+4*(2*ci+tt)
                    A.i(f"v_mfma_f32_16x16x32_bf16 {vr(d,4)}, {vr(WS_(ci,st),4)}, {vr(RING[slot]+4*tt,4)}, {vr(d,4)}")
                    if gaps:
                        for l in gaps[k]: A.i(l)
                    k+=1
        decide=[["s_waitcnt lgkmcnt(4)",f"v_readfirstlane_b32 s6, v{FV}"],
                ["s_and_b32 s6, s6, s31","s_ff1_i32_b32 s30, s6"],
                ["s_bitset0_b32 s31, s30","s_ashr_i32 s30, s30, 2","s_max_i32 s6, s30, 0"],
                ["s_lshl_b32 s6, s6, 13",f"v_add_u32 v{VN}, s6, v{TL16}"]]
        def dispatch(neg):
            A.i(f"s_cbranch_scc1 {name}_td{neg}")
            A.i("s_cmp_eq_u32 s30, 2")
            A.i(f"s_cbranch_scc1 {name}_tb2")
            A.i("s_cmp_eq_u32 s30, 3")
            A.i(f"s_cbranch_scc1 {name}_tb3")
            A.i(f"s_branch {name}_tb4")
            A.label(f"{name}_td{neg}")
            A.i("s_cmp_eq_u32 s30, 0")
            A.i(f"s_cbranch_scc1 {name}_tb0")
            A.i("s_cmp_eq_u32 s30, 1")
            A.i(f"s_cbranch_scc1 {name}_tb1")
            A.i(f"s_branch {name}_tnone")
        A.label(f"{name}_tnone")
        A.i("s_cmp_eq_u32 s31, 0")
        A.i(f"s_cbranch_scc1 {name}_tfin")
        A.label(f"{name}_tpick")
        for l in rdflag: A.i(l)
        A.i("s_waitcnt lgkmcnt(0)")
        A.i(f"v_readfirstlane_b32 s6, v{FV}")
        A.i("s_and_b32 s6, s6, s31")
        A.i(f"s_cbranch_scc0 {name}_tpick")
        A.i("s_ff1_i32_b32 s30, s6")
        A.i("s_bitset0_b32 s31, s30")
        A.i("s_ashr_i32 s30, s30, 2")
        A.i("s_lshl_b32 s6, s30, 13")
        A.i(f"v_add_u32 v{VN}, s6, v{TL16}")
        for l in rdset(0)+rdset(1)+rdflag+rdset(2)+rdset(3): A.i(l)
        A.i("s_cmp_lt_i32 s30, 2")
        dispatch('p')
        for q in range(5):
            A.label(f"{name}_tb{q}")
            A.i("s_waitcnt lgkmcnt(7)")
            mm(4*q,0,decide)
            if q<4:
                mm(4*q+1,1,[rdset(0),[],[],rdset(1)+rdflag])
                A.i("s_waitcnt lgkmcnt(7)")
                mm(4*q+2,2,[[],[],[],rdset(2)])
                A.i("s_waitcnt lgkmcnt(7)")
                mm(4*q+3,3,[[],["s_cmp_lt_i32 s30, 2"],[],rdset(3)])
            else:
                mm(17,1,[rdset(0),["s_cmp_lt_i32 s30, 2"],[],rdset(1)+rdflag+rdset(2)+rdset(3)])
            dispatch(q)
        A.label(f"{name}_tfin")
        xt(A,2,prof)
        xt(A,3,prof)
        epi([(0,0),(1,0),(0,32),(1,32)])
        A.i(f"s_branch {name}_done")
        A.label(f"{name}_tyoung")
        gw_loads(False)
        A.i("s_barrier")
        if prof:
            A.i("s_memtime s[100:101]")
            A.i("s_waitcnt lgkmcnt(0)")
            A.i("s_mov_b32 s99, 1")
        for p in range(5): xload6(p,md6)
        A.label(f"{name}_tl1")
        A.i("s_lshr_b32 s6, s98, 1")
        A.i("s_and_b32 s30, s98, 1")
        A.i("s_lshl_b32 s31, s6, 12")
        A.i("s_lshl_b32 s72, s30, 11")
        A.i("s_add_u32 s31, s31, s72")
        A.i(f"v_add_u32 v{XL}, s31, v{TL16}")
        A.i(f"v_and_b32 v{XR}, 3, v{V_LANE}")
        A.i(f"v_lshlrev_b32 v{XR}, 6, v{XR}")
        A.i(f"v_bfe_u32 v{XM}, v{V_LANE}, 2, 1")
        A.i(f"v_lshl_add_u32 v{XR}, v{XM}, 12, v{XR}")
        A.i(f"v_bfe_u32 v{XM}, v{V_LANE}, 3, 2")
        A.i(f"v_lshl_add_u32 v{XR}, v{XM}, 2, v{XR}")
        A.i(f"v_lshrrev_b32 v{XM}, 5, v{V_LANE}")
        A.i(f"v_lshl_add_u32 v{XR}, v{XM}, 8, v{XR}")
        A.i("s_lshl_b32 s6, s6, 10")
        A.i("s_lshl_b32 s30, s30, 9")
        A.i("s_add_u32 s6, s6, s30")
        A.i(f"v_add_u32 v{XR}, s6, v{XR}")
        A.i("s_mov_b32 s68, 31")
        A.i(f"s_mov_b32 s69, {SPIN}")
        FAD=TDY+2; FDT=TDY+3
        A.i(f"v_mov_b32 v{FAD}, {LCNT2}")
        A.i("s_cmp_ge_u32 s5, 6")
        A.i(f"s_cbranch_scc0 {name}_tl0")
        A.i("s_sub_u32 s6, s5, 6")
        A.i("s_mul_i32 s30, s6, 4608")
        A.i("s_add_u32 s30, s30, 4096")
        A.i(f"v_add_u32 v{TAA}, s30, v{TAA}")
        A.i("s_lshl_b32 s30, s6, 12")
        A.i(f"v_add_u32 v{TDY}, s30, v{TL16}")
        A.label(f"{name}_tl0")
        def part(p,wait,lab,force):
            r=XS+8*p
            if wait is not None: A.i(f"s_waitcnt vmcnt({wait})")
            if p<4:
                A.i(f"v_max3_u32 v{XM}, v{r}, v{r+1}, v{r+2}")
                A.i(f"v_max3_u32 v{XM2}, v{r+3}, v{r+4}, v{r+5}")
                A.i(f"v_max3_u32 v{XM}, v{XM}, v{r+6}, v{r+7}")
                A.i(f"v_max_u32 v{XM}, v{XM}, v{XM2}")
            else:
                A.i(f"v_max3_u32 v{XM}, v{r}, v{r+1}, v{r+2}")
                A.i(f"v_max_u32 v{XM}, v{XM}, v{r+3}")
            A.i(f"v_mov_b32 v{FDT}, {1<<(4*p)}")
            A.i(f"v_cmp_eq_u32 vcc, -1, v{XM}")
            if force:
                A.i("s_and_b64 vcc, vcc, s[62:63]")
                A.i(f"s_cbranch_scc1 {lab}")
            else: A.i(f"s_cbranch_vccnz {lab}")
            if p<4:
                for k in range(2): A.i(f"ds_write_b128 v{XL}, {vr(r+4*k,4)} offset:{p*8192+k*1024}")
            else:
                for k in range(4): A.i(f"ds_write_b32 v{XR}, v{r+k} offset:{32768+16*k}")
            A.i("s_mov_b64 exec, 1")
            A.i(f"ds_add_u32 v{FAD}, v{FDT}")
            A.i("s_mov_b64 exec, -1")
            A.i(f"s_bitset0_b32 s68, {p}")
            A.label(lab)
        A.i("s_cmp_eq_u32 s5, 6")
        A.i(f"s_cbranch_scc0 {name}_txa")
        wp=OPT.get('dwp',0)
        for p in range(5):
            part(p,[7,5,3,1,0][p]+(20 if p>wp else 0),f"{name}_txb{p}",False)
            if p==wp: gw_loads(False)
        A.i(f"s_branch {name}_txr")
        A.label(f"{name}_txa")
        for p in range(5): part(p,[7,5,3,1,0][p],f"{name}_txa{p}",False)
        A.label(f"{name}_txr")
        A.i("s_mov_b64 s[62:63], -1")
        A.label(f"{name}_txl")
        A.i("s_cmp_eq_u32 s68, 0")
        A.i(f"s_cbranch_scc1 {name}_txok")
        A.i("s_sub_u32 s69, s69, 1")
        A.i(f"s_cbranch_scc0 {name}_txn")
        A.i("s_mov_b64 s[62:63], 0")
        A.label(f"{name}_txn")
        if prof: A.i("s_add_u32 s99, s99, 1")
        for p in range(5):
            A.i(f"s_bitcmp1_b32 s68, {p}")
            A.i(f"s_cbranch_scc0 {name}_txl{p}")
            xload6(p,md6)
            A.label(f"{name}_txl{p}")
        A.i("s_waitcnt vmcnt(0)")
        for p in range(5):
            A.i(f"s_bitcmp1_b32 s68, {p}")
            A.i(f"s_cbranch_scc0 {name}_txc{p}")
            part(p,None,f"{name}_txc{p}",True)
        A.i(f"s_branch {name}_txl")
        A.label(f"{name}_txok")
        if OPT.get('dprio2',0)!=OPT.get('dprio',2): A.i(f"s_setprio {OPT.get('dprio2',0)}")
        xt(A,1,prof)
        xt(A,2,prof)
        A.i("s_cmp_ge_u32 s5, 6")
        A.i(f"s_cbranch_scc0 {name}_tidle")
        A.i("s_waitcnt vmcnt(0)")
        A.i("s_cmp_eq_u32 s5, 7")
        A.i(f"s_cselect_b32 s72, {16*1152}, 0")
        A.i(f"s_cbranch_scc0 {name}_tg0")
        A.i(f"v_mov_b32 v{TG}, v{TG+1}")
        A.label(f"{name}_tg0")
        mix_setup([('w',0)],0)
        A.label(f"{name}_tall")
        A.i(f"ds_read_b32 v{XM2}, v{FAD}")
        A.i("s_waitcnt lgkmcnt(0)")
        A.i(f"v_readfirstlane_b32 s6, v{XM2}")
        A.i(f"s_cmp_eq_u32 s6, {ALL}")
        A.i(f"s_cbranch_scc0 {name}_tall")
        DR=136; q=[]
        def rd(st):
            A.i(f"ds_read_b128 {vr(DR+4*st,4)}, v{TDY} offset:{(st>>2)*8192+(st&3)*1024}"); q.append(st)
        AH=12
        for st in range(AH): rd(st)
        for st in range(18):
            newer=sum(1 for x in q if x>st)
            A.i(f"s_waitcnt lgkmcnt({min(newer,15)})")
            d=TACC+4*(st&1)
            A.i(f"v_mfma_f32_16x16x32_bf16 {vr(d,4)}, {vr(WY_(0,st),4)}, {vr(DR+4*st,4)}, {vr(d,4) if st>1 else 0}")
            if st+AH<18: rd(st+AH)
        xt(A,3,prof)
        epi([(0,0)],[f"v_add_f32 v{TACC+r}, v{TACC+r}, v{TACC+4+r}" for r in range(4)])
        A.i(f"s_branch {name}_done")
        A.label(f"{name}_tidle")
        xt(A,3,prof)
        return
    if daf==5:
        XS=16; XL=52; XR=53; XM=54; XM2=55
        RING=[16,24,32,232]; FA=TDY; FV=TDY+1; VN=TDY+2
        ALL=0x44444
        A.i("s_cmp_ge_u32 s5, 4")
        A.i(f"s_cbranch_scc1 {name}_tyoung")
        A.i("s_lshl_b32 s6, s5, 10")
        A.i(f"v_add_u32 v{TAA}, s6, v{TAA}")
        A.i(f"v_mov_b32 v{FA}, {LCNT2}")
        for r in range(16): A.i(f"v_mov_b32 v{TACC+r}, 0")
        A.i("s_mov_b32 s72, 0")
        A.i(f"s_mov_b32 s73, {16*1152}")
        A.i(f"s_mov_b32 s31, {ALL}")
        A.i("s_waitcnt lgkmcnt(0)")
        A.i("s_barrier")
        xt(A,1,prof)
        mix_setup([(0,0),(1,0),(0,1),(1,1)],0)
        def rdset(j): return [f"ds_read_b128 {vr(RING[j]+4*tt,4)}, v{VN} offset:{tt*4096+j*1024}" for tt in range(2)]
        rdflag=[f"ds_read_b32 v{FV}, v{FA}"]
        def mm(st,slot,gaps=None):
            k=0
            for ci in range(2):
                for tt in range(2):
                    d=TACC+4*(2*ci+tt)
                    A.i(f"v_mfma_f32_16x16x32_bf16 {vr(d,4)}, {vr(WS_(ci,st),4)}, {vr(RING[slot]+4*tt,4)}, {vr(d,4)}")
                    if gaps:
                        for l in gaps[k]: A.i(l)
                    k+=1
        decide=[["s_waitcnt lgkmcnt(4)",f"v_readfirstlane_b32 s6, v{FV}"],
                ["s_and_b32 s6, s6, s31","s_ff1_i32_b32 s30, s6"],
                ["s_bitset0_b32 s31, s30","s_ashr_i32 s30, s30, 2","s_max_i32 s6, s30, 0"],
                ["s_lshl_b32 s6, s6, 13",f"v_add_u32 v{VN}, s6, v{TL16}"]]
        def dispatch(neg):
            A.i(f"s_cbranch_scc1 {name}_td{neg}")
            A.i("s_cmp_eq_u32 s30, 2")
            A.i(f"s_cbranch_scc1 {name}_tb2")
            A.i("s_cmp_eq_u32 s30, 3")
            A.i(f"s_cbranch_scc1 {name}_tb3")
            A.i(f"s_branch {name}_tb4")
            A.label(f"{name}_td{neg}")
            A.i("s_cmp_eq_u32 s30, 0")
            A.i(f"s_cbranch_scc1 {name}_tb0")
            A.i("s_cmp_eq_u32 s30, 1")
            A.i(f"s_cbranch_scc1 {name}_tb1")
            A.i(f"s_branch {name}_tnone")
        A.label(f"{name}_tnone")
        A.i("s_cmp_eq_u32 s31, 0")
        A.i(f"s_cbranch_scc1 {name}_tfin")
        A.label(f"{name}_tpick")
        for l in rdflag: A.i(l)
        A.i("s_waitcnt lgkmcnt(0)")
        A.i(f"v_readfirstlane_b32 s6, v{FV}")
        A.i("s_and_b32 s6, s6, s31")
        A.i(f"s_cbranch_scc0 {name}_tpick")
        A.i("s_ff1_i32_b32 s30, s6")
        A.i("s_bitset0_b32 s31, s30")
        A.i("s_ashr_i32 s30, s30, 2")
        A.i("s_lshl_b32 s6, s30, 13")
        A.i(f"v_add_u32 v{VN}, s6, v{TL16}")
        for l in rdset(0)+rdset(1)+rdflag+rdset(2)+rdset(3): A.i(l)
        A.i("s_cmp_lt_i32 s30, 2")
        dispatch('p')
        for q in range(5):
            A.label(f"{name}_tb{q}")
            A.i("s_waitcnt lgkmcnt(7)")
            mm(4*q,0,decide)
            if q<4:
                mm(4*q+1,1,[rdset(0),[],[],rdset(1)+rdflag])
                A.i("s_waitcnt lgkmcnt(7)")
                mm(4*q+2,2,[[],[],[],rdset(2)])
                A.i("s_waitcnt lgkmcnt(7)")
                mm(4*q+3,3,[[],["s_cmp_lt_i32 s30, 2"],[],rdset(3)])
            else:
                mm(17,1,[rdset(0),["s_cmp_lt_i32 s30, 2"],[],rdset(1)+rdflag+rdset(2)+rdset(3)])
            dispatch(q)
        A.label(f"{name}_tfin")
        xt(A,2,prof)
        xt(A,3,prof)
        epi([(0,0),(1,0),(0,32),(1,32)])
        A.i(f"s_branch {name}_done")
        A.label(f"{name}_tyoung")
        A.i("s_lshr_b32 s6, s98, 1")
        A.i("s_and_b32 s30, s98, 1")
        A.i("s_lshl_b32 s31, s6, 14")
        A.i("s_lshl_b32 s72, s30, 11")
        A.i("s_add_u32 s31, s31, s72")
        A.i("s_lshl_b32 s80, s74, 15")
        A.i("s_add_u32 s80, s80, s31")
        A.i(f"s_add_u32 s80, s80, {WS_OB}")
        for q in range(1,4): A.i(f"s_add_u32 s{80+q}, s80, {4096*q}")
        A.i("s_lshl_b32 s67, s74, 12")
        A.i("s_lshl_b32 s31, s98, 10")
        A.i("s_add_u32 s67, s67, s31")
        A.i(f"s_add_u32 s67, s67, {WS_OBR}")
        A.i("s_lshl_b32 s31, s6, 12")
        A.i("s_add_u32 s31, s31, s72")
        A.i(f"v_add_u32 v{XL}, s31, v{TL16}")
        A.i(f"v_and_b32 v{XR}, 3, v{V_LANE}")
        A.i(f"v_lshlrev_b32 v{XR}, 6, v{XR}")
        A.i(f"v_bfe_u32 v{XM}, v{V_LANE}, 2, 1")
        A.i(f"v_lshl_add_u32 v{XR}, v{XM}, 12, v{XR}")
        A.i(f"v_bfe_u32 v{XM}, v{V_LANE}, 3, 2")
        A.i(f"v_lshl_add_u32 v{XR}, v{XM}, 2, v{XR}")
        A.i(f"v_lshrrev_b32 v{XM}, 5, v{V_LANE}")
        A.i(f"v_lshl_add_u32 v{XR}, v{XM}, 8, v{XR}")
        A.i("s_lshl_b32 s6, s6, 10")
        A.i("s_lshl_b32 s30, s30, 9")
        A.i("s_add_u32 s6, s6, s30")
        A.i(f"v_add_u32 v{XR}, s6, v{XR}")
        A.i("s_mov_b32 s68, 31")
        A.i(f"s_mov_b32 s69, {SPIN}")
        A.i("s_mov_b64 s[62:63], -1")
        A.i("s_cmp_ge_u32 s5, 6")
        A.i(f"s_cbranch_scc0 {name}_tl0")
        A.i("s_sub_u32 s6, s5, 6")
        A.i("s_mul_i32 s30, s6, 4608")
        A.i("s_add_u32 s30, s30, 4096")
        A.i(f"v_add_u32 v{TAA}, s30, v{TAA}")
        A.i("s_lshl_b32 s30, s6, 12")
        A.i(f"v_add_u32 v{TDY}, s30, v{TL16}")
        A.i("s_cmp_eq_u32 s5, 7")
        A.i(f"s_cbranch_scc0 {name}_tl0")
        gw_loads(False)
        A.label(f"{name}_tl0")
        md=OPT.get('xmod','sc1').replace('-','')
        def xload(p):
            if p<4:
                for k in range(2): A.i(f"buffer_load_dwordx4 {vr(XS+8*p+4*k,4)}, v{TL16}, s[36:39], s{80+p} offen offset:{k*1024} {md}")
            else: A.i(f"buffer_load_dwordx4 {vr(XS+32,4)}, v{TL16}, s[36:39], s67 offen {md}")
        FAD=TDY+2; FDT=TDY+3
        A.i(f"v_mov_b32 v{FAD}, {LCNT2}")
        A.i("s_barrier")
        if prof:
            A.i("s_memtime s[100:101]")
            A.i("s_waitcnt lgkmcnt(0)")
            A.i("s_mov_b32 s99, 1")
        for p in range(5): xload(p)
        def loader(tag,extra):
            A.label(f"{name}_tx{tag}")
            for p in range(5):
                r=XS+8*p
                A.i(f"s_bitcmp1_b32 s68, {p}")
                A.i(f"s_cbranch_scc0 {name}_tx{tag}s{p}")
                A.i(f"s_waitcnt vmcnt({[7,5,3,1,0][p]+extra})")
                if p<4:
                    A.i(f"v_max3_u32 v{XM}, v{r}, v{r+1}, v{r+2}")
                    A.i(f"v_max3_u32 v{XM2}, v{r+3}, v{r+4}, v{r+5}")
                    A.i(f"v_max3_u32 v{XM}, v{XM}, v{r+6}, v{r+7}")
                    A.i(f"v_max_u32 v{XM}, v{XM}, v{XM2}")
                else:
                    A.i(f"v_max3_u32 v{XM}, v{r}, v{r+1}, v{r+2}")
                    A.i(f"v_max_u32 v{XM}, v{XM}, v{r+3}")
                A.i(f"v_cmp_eq_u32 vcc, -1, v{XM}")
                A.i("s_and_b64 vcc, vcc, s[62:63]")
                A.i(f"s_cbranch_scc1 {name}_tx{tag}s{p}")
                if p<4:
                    for k in range(2): A.i(f"ds_write_b128 v{XL}, {vr(r+4*k,4)} offset:{p*8192+k*1024}")
                else:
                    for k in range(4): A.i(f"ds_write_b32 v{XR}, v{r+k} offset:{32768+16*k}")
                A.i(f"v_mov_b32 v{FDT}, {1<<(4*p)}")
                A.i("s_mov_b64 exec, 1")
                A.i(f"ds_add_u32 v{FAD}, v{FDT}")
                A.i("s_mov_b64 exec, -1")
                A.i(f"s_bitset0_b32 s68, {p}")
                A.label(f"{name}_tx{tag}s{p}")
            A.i("s_cmp_eq_u32 s68, 0")
            A.i(f"s_cbranch_scc1 {name}_txok")
            A.i("s_sub_u32 s69, s69, 1")
            A.i(f"s_cbranch_scc0 {name}_tx{tag}r")
            A.i("s_mov_b64 s[62:63], 0")
            A.label(f"{name}_tx{tag}r")
            if prof: A.i("s_add_u32 s99, s99, 1")
            for p in range(5):
                A.i(f"s_bitcmp1_b32 s68, {p}")
                A.i(f"s_cbranch_scc0 {name}_tx{tag}l{p}")
                xload(p)
                A.label(f"{name}_tx{tag}l{p}")
            A.i("s_waitcnt vmcnt(0)")
            A.i(f"s_branch {name}_tx{tag}")
        A.i("s_cmp_eq_u32 s5, 6")
        A.i(f"s_cbranch_scc0 {name}_txa")
        gw_loads(False)
        loader('b',20)
        loader('a',0)
        A.label(f"{name}_txok")
        xt(A,1,prof)
        xt(A,2,prof)
        A.i("s_cmp_ge_u32 s5, 6")
        A.i(f"s_cbranch_scc0 {name}_tidle")
        A.i("s_waitcnt vmcnt(0)")
        A.i("s_cmp_eq_u32 s5, 7")
        A.i(f"s_cselect_b32 s72, {16*1152}, 0")
        A.i(f"s_cbranch_scc0 {name}_tg0")
        A.i(f"v_mov_b32 v{TG}, v{TG+1}")
        A.label(f"{name}_tg0")
        mix_setup([('w',0)],0)
        A.label(f"{name}_tall")
        A.i(f"ds_read_b32 v{XM2}, v{FAD}")
        A.i("s_waitcnt lgkmcnt(0)")
        A.i(f"v_readfirstlane_b32 s6, v{XM2}")
        A.i(f"s_cmp_eq_u32 s6, {ALL}")
        A.i(f"s_cbranch_scc0 {name}_tall")
        DR=136; q=[]
        def rd(st):
            A.i(f"ds_read_b128 {vr(DR+4*st,4)}, v{TDY} offset:{(st>>2)*8192+(st&3)*1024}"); q.append(st)
        AH=12
        for st in range(AH): rd(st)
        for st in range(18):
            newer=sum(1 for x in q if x>st)
            A.i(f"s_waitcnt lgkmcnt({min(newer,15)})")
            d=TACC+4*(st&1)
            A.i(f"v_mfma_f32_16x16x32_bf16 {vr(d,4)}, {vr(WY_(0,st),4)}, {vr(DR+4*st,4)}, {vr(d,4) if st>1 else 0}")
            if st+AH<18: rd(st+AH)
        xt(A,3,prof)
        epi([(0,0)],[f"v_add_f32 v{TACC+r}, v{TACC+r}, v{TACC+4+r}" for r in range(4)])
        A.i(f"s_branch {name}_done")
        A.label(f"{name}_tidle")
        xt(A,3,prof)
        return
    if daf==4:
        XS=16; XA=52; XL=53; XR=54; XM=55; XM2=63
        RING=[16,24,32,232]; FA=TDY; FV=TDY+1; VN=TDY+2
        A.i("s_cmp_ge_u32 s5, 4")
        A.i(f"s_cbranch_scc1 {name}_tyoung")
        A.i("s_lshl_b32 s6, s5, 10")
        A.i(f"v_add_u32 v{TAA}, s6, v{TAA}")
        A.i(f"v_mov_b32 v{FA}, {LCNT2}")
        for r in range(16): A.i(f"v_mov_b32 v{TACC+r}, 0")
        A.i("s_mov_b32 s72, 0")
        A.i(f"s_mov_b32 s73, {16*1152}")
        A.i("s_mov_b32 s31, 15")
        A.i("s_waitcnt lgkmcnt(0)")
        A.i("s_barrier")
        xt(A,1,prof)
        mix_setup([(0,0),(1,0),(0,1),(1,1)],0)
        def rdset(j):
            for tt in range(2): A.i(f"ds_read_b128 {vr(RING[j]+4*tt,4)}, v{VN} offset:{tt*16384+j*1024}")
        def rdrem(k):
            for tt in range(2):
                for i in range(4): A.i(f"ds_read_b32 v{RING[k]+4*tt+i}, v{TRM} offset:{32768+k*2048+i*128+tt*64}")
        def rdflag(): A.i(f"ds_read_b32 v{FV}, v{FA}")
        def mm(st,slot):
            for ci in range(2):
                for tt in range(2):
                    d=TACC+4*(2*ci+tt)
                    A.i(f"v_mfma_f32_16x16x32_bf16 {vr(d,4)}, {vr(WS_(ci,st),4)}, {vr(RING[slot]+4*tt,4)}, {vr(d,4)}")
        def take():
            A.i("s_ff1_i32_b32 s30, s6")
            A.i("s_bitset0_b32 s31, s30")
            A.i("s_lshl_b32 s6, s30, 12")
            A.i(f"v_add_u32 v{VN}, s6, v{TL16}")
        def dispatch():
            for q in range(3):
                A.i(f"s_cmp_eq_u32 s30, {q}")
                A.i(f"s_cbranch_scc1 {name}_tb{q}")
            A.i(f"s_branch {name}_tb3")
        A.label(f"{name}_tpick")
        rdflag()
        A.i("s_waitcnt lgkmcnt(0)")
        A.i(f"v_readfirstlane_b32 s6, v{FV}")
        A.i("s_and_b32 s6, s6, s31")
        A.i(f"s_cbranch_scc0 {name}_tpick")
        take()
        rdset(0); rdset(1); rdflag(); rdset(2); rdset(3)
        dispatch()
        for q in range(4):
            A.label(f"{name}_tb{q}")
            A.i("s_waitcnt lgkmcnt(7)")
            mm(4*q,0)
            A.i("s_waitcnt lgkmcnt(4)")
            A.i(f"v_readfirstlane_b32 s6, v{FV}")
            A.i("s_cmp_eq_u32 s31, 0")
            A.i(f"s_cbranch_scc1 {name}_tr{q}")
            A.i("s_and_b32 s6, s6, s31")
            A.i(f"s_cbranch_scc0 {name}_tn{q}")
            take()
            rdset(0)
            mm(4*q+1,1)
            rdset(1); rdflag()
            A.i("s_waitcnt lgkmcnt(7)")
            mm(4*q+2,2)
            rdset(2)
            A.i("s_waitcnt lgkmcnt(7)")
            mm(4*q+3,3)
            rdset(3)
            dispatch()
            A.label(f"{name}_tn{q}")
            mm(4*q+1,1)
            A.i("s_waitcnt lgkmcnt(2)")
            mm(4*q+2,2)
            A.i("s_waitcnt lgkmcnt(0)")
            mm(4*q+3,3)
            A.i(f"s_branch {name}_tpick")
            A.label(f"{name}_tr{q}")
            rdrem(0)
            mm(4*q+1,1)
            A.i("s_waitcnt lgkmcnt(10)")
            mm(4*q+2,2)
            rdrem(1)
            A.i("s_waitcnt lgkmcnt(15)")
            mm(4*q+3,3)
            if q<3: A.i(f"s_branch {name}_trem")
        A.label(f"{name}_trem")
        xt(A,2,prof)
        A.i("s_waitcnt lgkmcnt(8)")
        mm(16,0)
        A.i("s_waitcnt lgkmcnt(0)")
        mm(17,1)
        xt(A,3,prof)
        epi([(0,0),(1,0),(0,32),(1,32)])
        A.i(f"s_branch {name}_done")
        A.label(f"{name}_tyoung")
        A.i(f"v_and_b32 v{XA}, 31, v{V_LANE}")
        A.i(f"v_lshlrev_b32 v{XA}, 4, v{XA}")
        A.i(f"v_lshrrev_b32 v{XM}, 5, v{V_LANE}")
        A.i(f"v_lshl_add_u32 v{XA}, v{XM}, 11, v{XA}")
        A.i("s_lshl_b32 s6, s98, 12")
        A.i(f"v_add_u32 v{XL}, s6, v{XA}")
        A.i("s_lshl_b32 s80, s74, 15")
        A.i("s_add_u32 s80, s80, s6")
        A.i(f"s_add_u32 s80, s80, {WS_OB}")
        A.i("s_add_u32 s81, s80, 16384")
        A.i("s_lshl_b32 s6, s98, 10")
        A.i(f"v_add_u32 v{XR}, s6, v{TL16}")
        A.i("s_lshl_b32 s82, s74, 12")
        A.i("s_add_u32 s82, s82, s6")
        A.i(f"s_add_u32 s82, s82, {WS_OBR}")
        A.i("s_cmp_ge_u32 s5, 6")
        A.i(f"s_cbranch_scc0 {name}_tl0")
        A.i("s_sub_u32 s6, s5, 6")
        A.i("s_mul_i32 s30, s6, 4608")
        A.i("s_add_u32 s30, s30, 4096")
        A.i(f"v_add_u32 v{TAA}, s30, v{TAA}")
        A.i("s_lshl_b32 s30, s6, 14")
        A.i(f"v_add_u32 v{TDY}, s30, v{TL16}")
        A.i("s_lshl_b32 s30, s6, 6")
        A.i(f"v_add_u32 v{TDY+1}, s30, v{TRM}")
        A.i("s_cmp_eq_u32 s5, 7")
        A.i(f"s_cbranch_scc0 {name}_tl0")
        gw_loads(False)
        A.label(f"{name}_tl0")
        def xloads():
            md=OPT.get('xmod','sc1').replace('-','')
            for i in range(8):
                A.i(f"buffer_load_dwordx4 {vr(XS+4*i,4)}, v{XA}, s[36:39], s{80+(i>>2)} offen offset:{(i&3)*512} {md}")
            A.i(f"buffer_load_dwordx4 {vr(XS+32,4)}, v{TL16}, s[36:39], s82 offen {md}")
        A.i("s_barrier")
        if prof:
            A.i("s_memtime s[100:101]")
            A.i("s_waitcnt lgkmcnt(0)")
            A.i("s_mov_b32 s99, 1")
        xloads()
        A.i(f"s_mov_b32 s73, {SPIN}")
        A.i("s_cmp_eq_u32 s5, 6")
        A.i(f"s_cbranch_scc0 {name}_txw")
        gw_loads(False)
        A.i("s_waitcnt vmcnt(20)")
        A.i(f"s_branch {name}_txc")
        A.label(f"{name}_txw")
        A.i("s_waitcnt vmcnt(0)")
        A.label(f"{name}_txc")
        A.i(f"v_max3_u32 v{XM}, v{XS}, v{XS+1}, v{XS+2}")
        A.i(f"v_max3_u32 v{XM2}, v{XS+18}, v{XS+19}, v{XS+20}")
        for r in range(3,17,2):
            A.i(f"v_max3_u32 v{XM}, v{XM}, v{XS+r}, v{XS+r+1}")
            A.i(f"v_max3_u32 v{XM2}, v{XM2}, v{XS+18+r}, v{XS+18+r+1}")
        A.i(f"v_max3_u32 v{XM}, v{XM}, v{XS+17}, v{XS+35}")
        A.i(f"v_max_u32 v{XM}, v{XM}, v{XM2}")
        A.i(f"v_cmp_eq_u32 vcc, -1, v{XM}")
        A.i("s_and_b64 exec, exec, vcc")
        A.i(f"s_cbranch_scc0 {name}_txok")
        A.i("s_sub_u32 s73, s73, 1")
        A.i(f"s_cbranch_scc1 {name}_txok")
        if prof: A.i("s_add_u32 s99, s99, 1")
        xloads()
        A.i(f"s_branch {name}_txw")
        A.label(f"{name}_txok")
        A.i("s_mov_b64 exec, -1")
        xt(A,1,prof)
        for i in range(8):
            A.i(f"ds_write_b128 v{XL}, {vr(XS+4*i,4)} offset:{(i>>2)*16384+(i&3)*512}")
        A.i(f"ds_write_b128 v{XR}, {vr(XS+32,4)} offset:32768")
        A.i("s_lshl_b32 s6, 1, s98")
        A.i(f"v_mov_b32 v{XM}, {LCNT2}")
        A.i(f"v_mov_b32 v{XM2}, s6")
        A.i("s_mov_b64 exec, 1")
        A.i(f"ds_or_b32 v{XM}, v{XM2}")
        A.i("s_mov_b64 exec, -1")
        xt(A,2,prof)
        A.i("s_cmp_ge_u32 s5, 6")
        A.i(f"s_cbranch_scc0 {name}_tidle")
        A.i("s_waitcnt vmcnt(0)")
        A.i("s_cmp_eq_u32 s5, 7")
        A.i(f"s_cselect_b32 s72, {16*1152}, 0")
        A.i(f"s_cbranch_scc0 {name}_tg0")
        A.i(f"v_mov_b32 v{TG}, v{TG+1}")
        A.label(f"{name}_tg0")
        mix_setup([('w',0)],0)
        A.label(f"{name}_tall")
        A.i(f"ds_read_b32 v{XM2}, v{XM}")
        A.i("s_waitcnt lgkmcnt(0)")
        A.i(f"v_readfirstlane_b32 s6, v{XM2}")
        A.i("s_cmp_eq_u32 s6, 15")
        A.i(f"s_cbranch_scc0 {name}_tall")
        DR=136; q=[]
        def rd(st):
            if st<16: L=[f"ds_read_b128 {vr(DR+4*st,4)}, v{TDY} offset:{st*1024}"]
            else: L=[f"ds_read_b32 v{DR+4*st+i}, v{TDY+1} offset:{32768+(st-16)*2048+i*128}" for i in range(4)]
            for l in L: A.i(l); q.append(st)
        AH=12
        for st in range(AH): rd(st)
        for st in range(18):
            newer=sum(1 for x in q if x>st)
            A.i(f"s_waitcnt lgkmcnt({min(newer,15)})")
            d=TACC+4*(st&1)
            A.i(f"v_mfma_f32_16x16x32_bf16 {vr(d,4)}, {vr(WY_(0,st),4)}, {vr(DR+4*st,4)}, {vr(d,4) if st>1 else 0}")
            if st+AH<18: rd(st+AH)
        xt(A,3,prof)
        epi([(0,0)],[f"v_add_f32 v{TACC+r}, v{TACC+r}, v{TACC+4+r}" for r in range(4)])
        A.i(f"s_branch {name}_done")
        A.label(f"{name}_tidle")
        xt(A,3,prof)
        return
    if daf:
        XS=16; XA=TTMP; XL=TTMP+1; XR=TTMP+2; XM=TTMP+3; XM2=TDY
        A.i("s_cmp_ge_u32 s5, 4")
        A.i(f"s_cbranch_scc1 {name}_tyoung")
        A.i(f"v_and_b32 v{XA}, 31, v{V_LANE}")
        A.i(f"v_lshlrev_b32 v{XA}, 4, v{XA}")
        A.i(f"v_lshrrev_b32 v{XM}, 5, v{V_LANE}")
        A.i(f"v_lshl_add_u32 v{XA}, v{XM}, 11, v{XA}")
        A.i("s_lshl_b32 s6, s5, 12")
        A.i(f"v_add_u32 v{XL}, s6, v{XA}")
        A.i("s_lshl_b32 s30, s74, 15")
        A.i("s_add_u32 s30, s30, s6")
        A.i(f"s_add_u32 s30, s30, {WS_OB}")
        A.i("s_add_u32 s31, s30, 16384")
        A.i("s_lshl_b32 s6, s5, 10")
        A.i(f"v_add_u32 v{XR}, s6, v{TL16}")
        A.i("s_lshl_b32 s72, s74, 12")
        A.i("s_add_u32 s72, s72, s6")
        A.i(f"s_add_u32 s72, s72, {WS_OBR}")
        A.i(f"v_add_u32 v{TAA}, s6, v{TAA}")
        def xloads():
            md=OPT.get('xmod','sc1').replace('-','')
            for i in range(8):
                A.i(f"buffer_load_dwordx4 {vr(XS+4*i,4)}, v{XA}, s[36:39], s{30+(i>>2)} offen offset:{(i&3)*512} {md}")
            A.i(f"buffer_load_dwordx4 {vr(XS+32,4)}, v{TL16}, s[36:39], s72 offen {md}")
        if daf==3:
            A.i("s_waitcnt lgkmcnt(0)")
            A.i("s_barrier")
        else:
            A.i(f"v_mov_b32 v{XM2}, {LCNT2}")
            A.label(f"{name}_tgo")
            A.i(f"ds_read_b32 v{XM}, v{XM2}")
            A.i("s_waitcnt lgkmcnt(0)")
            A.i(f"v_readfirstlane_b32 s6, v{XM}")
            A.i(f"s_cmp_ge_u32 s6, {48+OPT.get('dgo',4) if daf==1 else 68}")
            A.i(f"s_cbranch_scc0 {name}_tgo")
        if prof:
            A.i("s_memtime s[100:101]")
            A.i("s_waitcnt lgkmcnt(0)")
            A.i("s_mov_b32 s99, 1")
        xloads()
        mix_setup([(0,0),(1,0),(0,1),(1,1)],9)
        A.i(f"s_mov_b32 s73, {SPIN}")
        A.label(f"{name}_txw")
        A.i("s_waitcnt vmcnt(0)")
        A.i(f"v_max3_u32 v{XM}, v{XS}, v{XS+1}, v{XS+2}")
        A.i(f"v_max3_u32 v{XM2}, v{XS+18}, v{XS+19}, v{XS+20}")
        for r in range(3,17,2):
            A.i(f"v_max3_u32 v{XM}, v{XM}, v{XS+r}, v{XS+r+1}")
            A.i(f"v_max3_u32 v{XM2}, v{XM2}, v{XS+18+r}, v{XS+18+r+1}")
        A.i(f"v_max3_u32 v{XM}, v{XM}, v{XS+17}, v{XS+35}")
        A.i(f"v_max_u32 v{XM}, v{XM}, v{XM2}")
        A.i(f"v_cmp_eq_u32 vcc, -1, v{XM}")
        A.i("s_and_b64 exec, exec, vcc")
        A.i(f"s_cbranch_scc0 {name}_txok")
        A.i("s_sub_u32 s73, s73, 1")
        A.i(f"s_cbranch_scc1 {name}_txok")
        if prof: A.i("s_add_u32 s99, s99, 1")
        xloads()
        A.i(f"s_branch {name}_txw")
        A.label(f"{name}_txok")
        A.i("s_mov_b64 exec, -1")
        xt(A,1,prof)
        if daf==1: A.i("s_barrier")
        for i in range(8):
            A.i(f"ds_write_b128 v{XL}, {vr(XS+4*i,4)} offset:{(i>>2)*16384+(i&3)*512}")
        A.i(f"ds_write_b128 v{XR}, {vr(XS+32,4)} offset:32768")
        A.i("s_mov_b32 s72, 0")
        A.i(f"s_mov_b32 s73, {16*1152}")
        A.i("s_waitcnt lgkmcnt(0)")
        A.i("s_barrier")
        xt(A,2,prof)
        gemm([0,1],2,False)
        xt(A,3,prof)
        epi([(0,0),(1,0),(0,32),(1,32)])
        A.i(f"s_branch {name}_done")
        A.label(f"{name}_tyoung")
        if daf==3 and OPT.get('d67'):
            A.i("s_cmp_ge_u32 s5, 6")
            A.i(f"s_cbranch_scc0 {name}_tidle")
            A.i("s_sub_u32 s6, s5, 6")
            A.i("s_mul_i32 s30, s6, 4608")
            A.i("s_add_u32 s30, s30, 4096")
            A.i(f"v_add_u32 v{TAA}, s30, v{TAA}")
            A.i("s_lshl_b32 s30, s6, 14")
            A.i(f"v_add_u32 v{TDY}, s30, v{TL16}")
            A.i("s_lshl_b32 s30, s6, 6")
            A.i(f"v_add_u32 v{TDY+1}, s30, v{TRM}")
            A.i("s_mov_b32 s73, s6")
            A.i("s_cmp_eq_u32 s5, 7")
            A.i(f"s_cbranch_scc0 {name}_t6")
            gw_loads(False)
            A.i("s_barrier")
            xt(A,1,prof)
            A.i("s_waitcnt vmcnt(18)")
            A.i(f"v_mov_b32 v{TG}, v{TG+1}")
            mix_setup([('w',0)],18)
            A.i(f"s_mov_b32 s72, {16*1152}")
            A.i("s_waitcnt vmcnt(0)")
            A.i("s_barrier")
            xt(A,2,prof)
            A.i(f"s_branch {name}_t67")
            A.label(f"{name}_t6")
            A.i("s_barrier")
            xt(A,1,prof)
            if OPT['d67']==1:
                A.i("s_barrier")
                gw_loads(False)
            else:
                gw_loads(False)
                A.i("s_barrier")
            xt(A,2,prof)
            mix_setup([('w',0)],18)
            A.i("s_mov_b32 s72, 0")
            A.i("s_waitcnt vmcnt(0)")
            A.label(f"{name}_t67")
            gemm([0],1,True)
            xt(A,3,prof)
            epi([(0,0)])
            A.i(f"s_branch {name}_done")
            A.label(f"{name}_tidle")
            A.i("s_barrier")
            xt(A,1,prof)
            A.i("s_barrier")
            xt(A,2,prof)
            xt(A,3,prof)
            return
        if daf>=2:
            A.i("s_cmp_eq_u32 s5, 7")
            A.i(f"s_cbranch_scc0 {name}_tidle")
            gw_loads(False)
            A.i("s_mov_b32 s72, 0")
            A.i(f"s_mov_b32 s73, {16*1152}")
            if daf==3:
                A.i("s_barrier")
                xt(A,1,prof)
                mix_setup([(0,8),(1,8)],18)
                A.i("s_waitcnt vmcnt(0)")
                A.i("s_barrier")
                xt(A,2,prof)
            else:
                xt(A,1,prof)
                A.i("s_barrier")
                xt(A,2,prof)
                mix_setup([(0,8),(1,8)],18)
                A.i("s_waitcnt vmcnt(0)")
            gemm([0,1],1,False)
            xt(A,3,prof)
            epi([(0,0),(1,0)])
            A.i(f"s_branch {name}_done")
            A.label(f"{name}_tidle")
            if daf==3: A.i("s_barrier")
            xt(A,1,prof)
            A.i("s_barrier")
            xt(A,2,prof)
            xt(A,3,prof)
            return
        A.i("s_cmp_ge_u32 s5, 6")
        A.i(f"s_cbranch_scc1 {name}_tidle")
        A.i("s_sub_u32 s6, s5, 4")
        A.i("s_mul_i32 s30, s6, 4608")
        A.i("s_add_u32 s30, s30, 4096")
        A.i(f"v_add_u32 v{TAA}, s30, v{TAA}")
        A.i("s_lshl_b32 s30, s6, 14")
        A.i(f"v_add_u32 v{TDY}, s30, v{TL16}")
        A.i("s_lshl_b32 s30, s6, 6")
        A.i(f"v_add_u32 v{TDY+1}, s30, v{TRM}")
        A.i("s_cmp_eq_u32 s6, 1")
        A.i("s_cselect_b64 vcc, -1, 0")
        A.i("s_mov_b32 s73, s6")
        gw_loads(False)
        A.i("s_barrier")
        xt(A,1,prof)
        A.i("s_waitcnt vmcnt(18)")
        A.i(f"v_cndmask_b32 v{TG}, v{TG}, v{TG+1}, vcc")
        mix_setup([('w',0)],18)
        A.i(f"s_mul_i32 s72, s73, {16*1152}")
        A.i("s_waitcnt vmcnt(0)")
        A.i("s_barrier")
        xt(A,2,prof)
        gemm([0],1,True)
        xt(A,3,prof)
        epi([(0,0)])
        A.i(f"s_branch {name}_done")
        A.label(f"{name}_tidle")
        A.i("s_barrier")
        xt(A,1,prof)
        A.i("s_barrier")
        xt(A,2,prof)
        xt(A,3,prof)
        return
    pw=OPT.get('tpoll',3)
    if pw=='L': A.i("s_cmp_eq_u32 s73, 7")
    else: A.i(f"s_cmp_eq_u32 s5, {pw}")
    A.i(f"s_cbranch_scc0 {name}_tb2")
    if ptc:
        A.i("s_lshl_b32 s30, s74, 7")
        A.i(f"s_add_u32 s30, s30, {WS_FLAG+0x2000}")
    else:
        R=OPT.get('prep',1)
        A.i("s_and_b32 s30, s2, 7")
        A.i(f"s_mul_i32 s30, s30, {R*128 if R>1 else 256}")
        A.i(f"s_add_u32 s30, s30, {WS_FLAG+0x1000}")
        if R>1:
            A.i("s_lshr_b32 s6, s2, 3")
            A.i(f"s_and_b32 s6, s6, {R-1}")
            A.i("s_lshl_b32 s6, s6, 7")
            A.i("s_add_u32 s30, s30, s6")
    A.i("s_mov_b32 s6, 0")
    N=OPT.get('pn',1)
    if N==1: spin(A,f"{name}_tspin",TTMP+2,30,31)
    else:
        PR=OPT.get('preg',TX)
        for i in range(N): A.i(f"v_mov_b32 v{PR+i}, 0")
        A.i(f"v_mov_b32 v{TTMP}, {LCNT2}")
        A.i(f"s_mov_b32 s31, {SPIN*N}")
        A.label(f"{name}_tspin")
        for i in range(N):
            A.i(f"buffer_load_dword v{PR+i}, off, s[36:39], s30 sc1")
            for k in range(OPT.get('pdl',1)):
                A.i(f"ds_read_b32 v{TTMP+2}, v{TTMP}")
                A.i("s_waitcnt lgkmcnt(0)")
            A.i(f"s_waitcnt vmcnt({N-1})")
            A.i(f"v_readfirstlane_b32 s6, v{PR+(i+1)%N}")
            A.i("s_cmp_eq_u32 s6, 32")
            A.i(f"s_cbranch_scc1 {name}_tspin_go")
        A.i(f"s_sub_u32 s31, s31, {N}")
        A.i(f"s_cbranch_scc0 {name}_tspin")
        A.label(f"{name}_tspin_go")
    A.label(f"{name}_tb2")
    A.i("s_barrier")
    xt(A,1,prof)
    A.i("s_lshl_b32 s30, s74, 15")
    A.i("s_lshl_b32 s31, s5, 10")
    A.i("s_add_u32 s30, s30, s31")
    A.i(f"s_add_u32 s30, s30, {WS_OB}")
    tb=OPT.get('tb')
    for i in range(4):
        A.i("s_mov_b32 m0, s31")
        A.i("s_nop 0")
        A.i(f"buffer_load_dwordx4 v{TL16}, s[36:39], s30 offen {OPT.get('xmod','sc1').replace('-','')} lds".replace('  ',' '))
        d=[16384,-8192,16384,8192][i] if tb else 8192
        if i<3: A.i(f"s_add_u32 s30, s30, {d}")
        A.i(f"s_add_u32 s31, s31, {d}")
    A.i("s_cmp_ge_u32 s5, 4")
    A.i(f"s_cbranch_scc1 {name}_tx4")
    A.i("s_lshl_b32 s30, s74, 12")
    A.i("s_lshl_b32 s6, s5, 10")
    A.i("s_add_u32 s30, s30, s6")
    A.i(f"s_add_u32 s30, s30, {WS_OBR}")
    A.i("s_mov_b32 m0, s31")
    A.i("s_nop 0")
    A.i(f"buffer_load_dwordx4 v{TL16}, s[36:39], s30 offen {OPT.get('xmod','sc1').replace('-','')} lds".replace('  ',' '))
    A.label(f"{name}_tx4")
    A.i("s_cmp_ge_u32 s5, 4")
    A.i(f"s_cbranch_scc1 {name}_tyoung")
    A.i("s_lshl_b32 s6, s5, 10")
    A.i(f"v_add_u32 v{TAA}, s6, v{TAA}")
    mix_setup([(0,0),(1,0),(0,1),(1,1)],5)
    A.i("s_mov_b32 s72, 0")
    A.i(f"s_mov_b32 s73, {16*1152}")
    A.i(f"s_waitcnt vmcnt({3 if tb else 0})")
    A.i("s_barrier")
    xt(A,2,prof)
    gemm([0,1],2,False,None,OPT.get('tbar',6) if tb else None)
    xt(A,3,prof)
    if tb: A.i("s_barrier")
    epi([(0,0),(1,0),(0,32),(1,32)])
    A.i(f"s_branch {name}_done")
    A.label(f"{name}_tyoung")
    if tb==2:
        PBUF=ABASE+9216
        A.i("s_and_b32 s6, s5, 1")
        A.i("s_mul_i32 s30, s6, 4608")
        A.i("s_add_u32 s30, s30, 4096")
        A.i(f"v_add_u32 v{TAA}, s30, v{TAA}")
        A.i("s_lshl_b32 s30, s6, 14")
        A.i(f"v_add_u32 v{TDY}, s30, v{TL16}")
        A.i("s_lshl_b32 s30, s6, 6")
        A.i(f"v_add_u32 v{TDY+1}, s30, v{TRM}")
        A.i("s_lshl_b32 s30, s6, 10")
        A.i(f"s_add_u32 s30, s30, {PBUF}")
        A.i(f"v_add_u32 v{TDY+2}, s30, v{TL16}")
        A.i(f"s_mul_i32 s72, s6, {16*1152}")
        def half(steps):
            for k,st in enumerate(steps):
                r=EX+4*k
                if st<16: A.i(f"ds_read_b128 {vr(r,4)}, v{TDY} offset:{st*1024}")
                else:
                    for i in range(4): A.i(f"ds_read_b32 v{r+i}, v{TDY+1} offset:{32768+(st-16)*2048+i*128}")
        def mm(steps):
            for k,st in enumerate(steps):
                newer=sum((1 if x<16 else 4) for x in steps[k+1:])
                A.i(f"s_waitcnt lgkmcnt({min(newer,15)})")
                A.i(f"v_mfma_f32_16x16x32_bf16 {vr(TACC,4)}, {vr(EW+4*k,4)}, {vr(EX+4*k,4)}, {vr(TACC,4) if k else 0}")
        A.i("s_cmp_ge_u32 s5, 6")
        A.i(f"s_cbranch_scc1 {name}_tk1")
        k0=list(range(0,8)); k1=list(range(8,18))
        A.i("s_mul_i32 s6, s75, 9")
        A.i("s_add_u32 s6, s6, 8")
        A.i("s_lshl_b32 s31, s6, 5")
        A.i(f"v_add_u32 v{TOUT}, s31, v{TOUT}")
        A.i(f"v_mov_b32 v{TG}, v{EG}")
        A.i(f"v_mov_b32 v{TG+1}, v{EG}")
        mix_setup([('w',0)],4)
        A.i("s_waitcnt vmcnt(2)")
        A.i("s_barrier")
        xt(A,2,prof)
        half(k0)
        A.i("s_waitcnt vmcnt(0)")
        A.i("s_barrier")
        mm(k0)
        xt(A,3,prof)
        A.i("s_barrier")
        A.i(f"ds_read_b128 {vr(TX,4)}, v{TDY+2}")
        A.i("s_waitcnt lgkmcnt(0)")
        epi([(0,0)],[f"v_add_f32 v{TACC+r}, v{TACC+r}, v{TX+r}" for r in range(4)])
        A.i(f"s_branch {name}_done")
        A.label(f"{name}_tk1")
        A.i("s_waitcnt vmcnt(2)")
        A.i("s_barrier")
        xt(A,2,prof)
        A.i("s_waitcnt vmcnt(0)")
        A.i("s_barrier")
        half(k1)
        mm(k1)
        A.i("s_nop 7")
        A.i(f"ds_write_b128 v{TDY+2}, {vr(TACC,4)}")
        A.i("s_waitcnt lgkmcnt(0)")
        xt(A,3,prof)
        A.i("s_barrier")
        return
    if tb:
        assert wlate
        PBUF=ABASE+9216
        A.i("s_and_b32 s6, s5, 1")
        A.i("s_mul_i32 s30, s6, 4608")
        A.i("s_add_u32 s30, s30, 4096")
        A.i(f"v_add_u32 v{TAA}, s30, v{TAA}")
        A.i("s_lshl_b32 s30, s6, 14")
        A.i(f"v_add_u32 v{TDY}, s30, v{TL16}")
        A.i("s_lshl_b32 s30, s6, 6")
        A.i(f"v_add_u32 v{TDY+1}, s30, v{TRM}")
        A.i("s_lshl_b32 s30, s6, 10")
        A.i(f"s_add_u32 s30, s30, {PBUF}")
        A.i(f"v_add_u32 v{TDY+2}, s30, v{TL16}")
        A.i("s_cmp_eq_u32 s6, 1")
        A.i("s_cselect_b64 vcc, -1, 0")
        A.i("s_mov_b32 s73, s6")
        A.i("s_cmp_ge_u32 s5, 6")
        A.i(f"s_cbranch_scc1 {name}_tk1")
        k0=list(range(0,8)); k1=list(range(8,18))
        gw_loads(False,k0)
        A.i(f"s_waitcnt vmcnt({2+2+len(k0)})")
        A.i("s_barrier")
        xt(A,2,prof)
        A.i(f"s_waitcnt vmcnt({2+len(k0)})")
        A.i("s_barrier")
        A.i(f"s_waitcnt vmcnt({len(k0)})")
        A.i(f"v_cndmask_b32 v{TG}, v{TG}, v{TG+1}, vcc")
        mix_setup([('w',0)],len(k0))
        A.i(f"s_mul_i32 s72, s73, {16*1152}")
        A.i("s_waitcnt vmcnt(0)")
        gemm([0],1,True,k0)
        xt(A,3,prof)
        A.i("s_barrier")
        A.i(f"ds_read_b128 {vr(TX,4)}, v{TDY+2}")
        A.i("s_waitcnt lgkmcnt(0)")
        epi([(0,0)],[f"v_add_f32 v{TACC+r}, v{TACC+r}, v{TX+r}" for r in range(4)])
        A.i(f"s_branch {name}_done")
        A.label(f"{name}_tk1")
        gw_loads(False,k1,False)
        A.i(f"s_waitcnt vmcnt({2+len(k1)})")
        A.i("s_barrier")
        xt(A,2,prof)
        A.i(f"s_waitcnt vmcnt({len(k1)})")
        A.i("s_barrier")
        A.i("s_waitcnt vmcnt(0)")
        gemm([0],1,True,k1)
        A.i("s_nop 7")
        A.i(f"ds_write_b128 v{TDY+2}, {vr(TACC,4)}")
        A.i("s_waitcnt lgkmcnt(0)")
        xt(A,3,prof)
        A.i("s_barrier")
        return
    A.i("s_cmp_ge_u32 s5, 6")
    A.i(f"s_cbranch_scc1 {name}_tidle")
    A.i("s_sub_u32 s6, s5, 4")
    A.i("s_mul_i32 s30, s6, 4608")
    A.i("s_add_u32 s30, s30, 4096")
    A.i(f"v_add_u32 v{TAA}, s30, v{TAA}")
    A.i("s_lshl_b32 s30, s6, 14")
    A.i(f"v_add_u32 v{TDY}, s30, v{TL16}")
    A.i("s_lshl_b32 s30, s6, 6")
    A.i(f"v_add_u32 v{TDY+1}, s30, v{TRM}")
    A.i("s_cmp_eq_u32 s6, 1")
    A.i("s_cselect_b64 vcc, -1, 0")
    A.i(f"s_mul_i32 s72, s6, {16*1152}")
    if wlate:
        A.i("s_mov_b32 s73, s6")
        gw_loads(False)
        A.i("s_waitcnt vmcnt(20)")
        A.i("s_barrier")
        xt(A,2,prof)
        A.i("s_waitcnt vmcnt(18)")
        A.i(f"v_cndmask_b32 v{TG}, v{TG}, v{TG+1}, vcc")
        mix_setup([('w',0)],18)
        A.i(f"s_mul_i32 s72, s73, {16*1152}")
        A.i("s_waitcnt vmcnt(0)")
    else:
        A.i("s_waitcnt vmcnt(4)")
        A.i(f"v_cndmask_b32 v{TG}, v{TG}, v{TG+1}, vcc")
        mix_setup([('w',0)],4)
        A.i("s_waitcnt vmcnt(0)")
        A.i("s_barrier")
        xt(A,2,prof)
    gemm([0],1,True)
    xt(A,3,prof)
    epi([(0,0)])
    A.i(f"s_branch {name}_done")
    A.label(f"{name}_tidle")
    A.i("s_waitcnt vmcnt(0)")
    A.i("s_barrier")
    xt(A,2,prof)
    xt(A,3,prof)

FLV=170
def mono_flag(A,srd,off):
    A.i(f"v_mov_b32 v{T2}, 1")
    if off: A.i(f"v_add_u32 v{FLV}, {off}, v{FLV}")
    A.i(f"buffer_store_byte v{T2}, v{FLV}, s[{srd}:{srd+3}], 0 offen sc1")
def mono_spin(A,lab,load,dst,mask):
    A.i(f"s_mov_b32 s6, {SPIN}")
    A.label(lab)
    A.i(load)
    A.i("s_waitcnt vmcnt(0)")
    A.i(f"v_and_b32 v{dst}, {mask}, v{dst}")
    A.i(f"v_cmp_ne_u32 vcc, {mask}, v{dst}")
    A.i("s_nop 0")
    A.i(f"s_cbranch_vccz {lab}_go")
    A.i("s_sub_u32 s6, s6, 1")
    A.i(f"s_cbranch_scc0 {lab}")
    A.label(lab+"_go")
def mono_gate_regs(A,ad,mk):
    A.i(f"v_lshlrev_b32 v{ad}, 2, v{V_LANE}")
    A.i(f"v_and_b32 v{ad}, 28, v{ad}")
    A.i(f"v_mov_b32 v{mk}, 0x01010101")
def mono_head_regs(A,ad,mk,base,amask,tmp):
    A.i("s_mul_i32 s64, s3, 18")
    A.i("s_add_u32 s65, s64, 17")
    A.i("s_xor_b32 s64, s64, s65")
    A.i("s_cmp_ge_u32 s64, 64")
    A.i("s_cselect_b32 s65, 2, 1")
    A.i("s_lshl_b32 s64, s4, 3")
    A.i("s_lshl_b64 s[72:73], 1, s64")
    if amask:
        A.i("s_lshr_b64 s[74:75], s[72:73], 8")
        A.i("s_or_b64 s[74:75], s[74:75], s[72:73]")
    else:
        A.i("s_mov_b32 s74, 0x01010101")
        A.i("s_mov_b32 s75, 0x01010101")
    A.i(f"v_and_b32 v{tmp}, 1, v{V_LANE}")
    A.i(f"v_cmp_eq_u32 vcc, 1, v{tmp}")
    A.i(f"v_mov_b32 v{mk}, s72")
    A.i(f"v_mov_b32 v{ad}, s73")
    A.i(f"v_cndmask_b32 v{mk}, v{mk}, v{ad}, vcc")
    A.i(f"v_mov_b32 v{tmp}, s74")
    A.i(f"v_mov_b32 v{ad}, s75")
    A.i(f"v_cndmask_b32 v{tmp}, v{tmp}, v{ad}, vcc")
    A.i(f"v_cmp_gt_u32 vcc, 4, v{V_LANE}")
    A.i("s_nop 0")
    A.i(f"v_cndmask_b32 v{mk}, v{tmp}, v{mk}, vcc")
    A.i(f"v_bfe_u32 v{tmp}, v{V_LANE}, 1, 1")
    A.i(f"v_cmp_gt_u32 vcc, s65, v{tmp}")
    A.i("s_nop 0")
    A.i(f"v_cndmask_b32 v{mk}, 0, v{mk}, vcc")
    A.i("s_lshl_b32 s64, s3, 7")
    A.i(f"s_add_u32 s64, s64, {base}")
    A.i(f"v_lshlrev_b32 v{ad}, 2, v{V_LANE}")
    A.i(f"v_add_u32 v{ad}, s64, v{ad}")
    A.i(f"v_mov_b32 v{tmp}, 0x7fff0000")
    A.i(f"v_cmp_gt_u32 vcc, 12, v{V_LANE}")
    A.i("s_nop 0")
    A.i(f"v_cndmask_b32 v{ad}, v{tmp}, v{ad}, vcc")
    A.i(f"v_cndmask_b32 v{mk}, 0, v{mk}, vcc")
def mono_handoff(A,name,prof):
    a,b,c,d=172,173,174,175
    A.i("s_mov_b32 s16, s20")
    A.i("s_and_b32 s17, s21, 0xffff")
    A.i("s_mov_b32 s18, 0x2000000")
    A.i("s_mov_b32 s19, 0x20000")
    mono_head_regs(A,a,b,WS_FLAGB,False,c)
    mono_gate_regs(A,d,d+1)
    A.i(f"s_cmp_eq_u32 s5, {OPT.get('mgw',5)}")
    A.i(f"s_cbranch_scc0 {name}_h2")
    A.i("s_cmp_eq_u32 s67, 1")
    A.i(f"s_cbranch_scc0 {name}_h2")
    mono_spin(A,f"{name}_gs0",f"global_load_dword v{c}, v{d}, s[92:93] sc1",c,f"v{d+1}")
    A.label(f"{name}_h2")
    A.i("s_waitcnt vmcnt(0)")
    if prof:
        A.i("s_memrealtime s[58:59]")
        stamp(A,3,prof)
        A.i("s_mov_b32 s57, s46"); A.i("s_mov_b32 s95, s58")
    A.i("s_barrier")
    A.i("s_cmp_eq_u32 s5, 0")
    A.i(f"s_cbranch_scc0 {name}_h3")
    A.i("s_cmp_eq_u32 s67, 1")
    A.i(f"s_cbranch_scc0 {name}_h4")
    mono_flag(A,16,0)
    if prof and OPT.get('mnoa'):
        A.i("s_waitcnt vmcnt(0)")
        A.i("s_memrealtime s[78:79]")
        A.i("s_waitcnt lgkmcnt(0)")
    A.i(f"s_branch {name}_h3")
    A.label(f"{name}_h4")
    A.i("s_cmp_eq_u32 s67, 3")
    A.i(f"s_cbranch_scc0 {name}_h3")
    A.i("s_sub_u32 s6, s2, 224")
    A.i(f"v_mov_b32 v{c}, s6")
    A.i(f"v_mov_b32 v{d+2}, 1")
    A.i("s_mov_b64 exec, 1")
    A.i(f"global_store_byte v{c}, v{d+2}, s[92:93] sc1")
    A.i("s_mov_b64 exec, -1")
    A.label(f"{name}_h3")
    A.i("s_cmp_eq_u32 s5, 4")
    A.i(f"s_cbranch_scc0 {name}_h5")
    A.i("s_cmp_eq_u32 s67, 1")
    A.i(f"s_cbranch_scc1 {name}_h6")
    mono_spin(A,f"{name}_gs4",f"global_load_dword v{c}, v{d}, s[92:93] sc1",c,f"v{d+1}")
    A.label(f"{name}_h6")
    mono_spin(A,f"{name}_bs",f"buffer_load_dword v{c}, v{a}, s[16:19], 0 offen sc1",c,f"v{b}")
    if prof and OPT.get('mnoa'): A.i(f"s_sub_u32 s78, {SPIN}, s6")
    A.label(f"{name}_h5")
    A.i("s_mov_b32 s97, 0")
    A.i("s_barrier")
    if prof: A.i("s_memrealtime s[58:59]")
    stamp(A,0,prof)
def mono_wait(A,name,base,tag):
    vals=(9,11,12,14)
    A.i("s_cmp_eq_u32 s97, 0")
    A.i(f"s_cbranch_scc0 {name}_mw{tag}0")
    A.i(f"s_waitcnt vmcnt({base})")
    A.i(f"s_branch {name}_mw{tag}_done")
    A.label(f"{name}_mw{tag}0")
    for n,v in enumerate(vals):
        if n<len(vals)-1:
            A.i(f"s_cmp_eq_u32 s97, {v}")
            A.i(f"s_cbranch_scc0 {name}_mw{tag}{n+1}")
        A.i(f"s_waitcnt vmcnt({base+v})")
        if n<len(vals)-1:
            A.i(f"s_branch {name}_mw{tag}_done")
            A.label(f"{name}_mw{tag}{n+1}")
    A.label(f"{name}_mw{tag}_done")
def gen_k2(A,name="k2_attn_kernel",prof=False):
    ag=OPT.get('ag')
    if ag:
        ag_regs(); assert OPT.get('sw1') and OPT.get('pk') and not OPT.get('itst')
    mono=OPT.get('mono')
    if mono:
        A.label(f"{mono}_trans")
        A.i(f"s_load_dwordx2 s[92:93], s[0:1], {KA_DBG}")
        if prof:
            A.i("s_mov_b32 s54, s40"); A.i("s_mov_b32 s55, s42"); A.i("s_mov_b32 s56, s44"); A.i("s_mov_b32 s94, s58")
    else:
        kernel_header(A,name)
        A.i("s_cmp_ge_u32 s2, 256")
        A.i(f"s_cbranch_scc1 {name}_end")
        A.i(f"s_load_dwordx2 s[20:21], s[0:1], {KA_WS}")
        if OPT.get('eprio'): A.i("s_setprio 1")
    fuse=OPT.get('fuse')
    if fuse:
        assert ag and OPT.get('t2') and not OPT.get('amap') and not OPT.get('swap')
        OPT['pfwo']=0
        A.i(f"s_load_dwordx2 s[76:77], s[0:1], {KA_OUT}")
    if OPT.get('pfwo'):
        if not ag: A.i(f"s_load_dwordx2 s[76:77], s[0:1], {KA_AWO}")
        A.i(f"s_load_dwordx2 s[78:79], s[0:1], {KA_BWO}")
    if not mono:
        if prof: A.i("s_memrealtime s[58:59]")
        if OPT.get('xst')==2 and prof: A.i("s_memtime s[40:41]")
        else: stamp(A,0,prof)
    A.i(f"v_and_b32 v{V_LANE}, 63, v0")
    A.i(f"v_lshrrev_b32 v{T0}, 6, v0")
    A.i("s_and_b32 s3, s2, 7")
    A.i(f"v_readfirstlane_b32 s5, v{T0}")
    A.i("s_nop 3")
    A.i("s_mov_b32 s70, s5")
    if OPT.get('cpf')==1: code_touch(A,name+"_ct",name,name+"_codeend",5,99,96,72,True)
    A.i("s_mov_b32 s71, 0x07060302")
    A.i("s_lshl_b32 s3, s3, 2")
    A.i("s_lshr_b32 s4, s2, 3")
    A.i("s_and_b32 s6, s4, 3")
    A.i("s_add_u32 s3, s3, s6")
    A.i("s_lshr_b32 s4, s2, 5")
    A.i("s_lshl_b32 s7, s4, 3")
    A.i("s_add_u32 s7, s7, s5")
    A.i(f"v_lshlrev_b32 v{A_KM}, 4, v{V_LANE}")
    if not mono: A.i(f"v_mov_b32 v{DMAV}, v{A_KM}")
    A.i(f"v_and_b32 v{T0}, 31, v{V_LANE}")
    A.i(f"v_lshlrev_b32 v{A_KR}, 2, v{T0}")
    A.i(f"v_add_u32 v{A_KR}, {OFF_KR}, v{A_KR}")
    if OPT.get('krg'):
        assert not mono
        A.i(f"v_mov_b32 v{LAR}, v{A_KR}")
        A.i(f"v_lshlrev_b32 v{A_KR}, 4, v{T0}")
        A.i(f"v_mov_b32 v{T1}, {512+OFF_V+18*16}")
        A.i(f"v_cmp_gt_u32 vcc, 32, v{V_LANE}")
        A.i(f"v_cndmask_b32 v{A_KR}, v{T1}, v{A_KR}, vcc")
    A.i(f"v_lshrrev_b32 v{T1}, 5, v{V_LANE}")
    if OPT.get('vs'):
        assert OPT.get('vclamp')==2 and not OPT.get('krg') and not mono
        A.i(f"v_lshrrev_b32 v{T2}, 2, v{T0}")
        A.i(f"v_add_u32 v{T1}, v{T1}, v{T2}")
        A.i(f"v_and_b32 v{T1}, 3, v{T1}")
        A.i(f"v_lshlrev_b32 v{T1}, 4, v{T1}")
        A.i(f"v_lshl_add_u32 v{A_V}, v{T0}, 6, v{T1}")
    else: A.i(f"v_mul_u32_u24 v{T1}, 304, v{T1}")
    if OPT.get('vs'): pass
    elif OPT.get('vclamp')==1:
        A.i(f"v_min_u32 v{A_V}, 18, v{T0}")
        A.i(f"v_lshl_add_u32 v{A_V}, v{A_V}, 4, v{T1}")
    else:
        A.i(f"v_lshl_add_u32 v{A_V}, v{T0}, 4, v{T1}")
    A.i(f"v_add_u32 v{A_V}, {OFF_V}, v{A_V}")
    A.i(f"v_mov_b32 v{LAV}, v{A_V}")
    if OPT.get('vclamp')==2:
        A.i(f"v_cmp_lt_u32 vcc, 18, v{T0}")
        A.i(f"v_mov_b32 v{T2}, 0x40000")
        A.i(f"v_cndmask_b32 v{A_V}, v{A_V}, v{T2}, vcc")
    A.i(f"v_lshlrev_b32 v{T1}, 2, v{V_LANE}")
    A.i(f"s_mul_i32 s6, s3, {KV_HEAD}")
    A.i("s_lshl_b32 s30, s3, 6")
    A.i("s_add_u32 s30, s30, s7")
    A.i(f"s_mul_i32 s30, s30, {QT_B}")
    A.i(f"s_mul_i32 s31, s7, {TILE_B}")
    A.i("s_cmp_eq_u32 s7, 0")
    A.i("s_cselect_b32 s34, 0, -1")
    A.i(f"s_sub_u32 s35, s31, {TILE_B}")
    A.i("s_cselect_b32 s35, s35, s35")
    A.i("s_cmp_eq_u32 s7, 0")
    A.i("s_cselect_b32 s35, s31, s35")
    if OPT.get('fsrd'):
        assert WS_KVB==0
        A.i(f"s_add_u32 s30, s30, {WS_QB}")
        A.i(f"s_mov_b32 s10, {KV_HEAD}")
        A.i("s_mov_b32 s11, 0x20000")
        A.i(f"s_mov_b32 s14, {QT_B}")
        A.i("s_mov_b32 s15, 0x20000")
        A.i("s_lshl_b32 s22, s5, 10")
        A.i("s_mov_b32 m0, s22")
    xp(A,0)
    A.i("s_waitcnt lgkmcnt(0)")
    xp(A,1)
    def srd(d,off_const,off_s,num):
        A.i(f"s_add_u32 s{d}, s20, s{off_s}")
        A.i(f"s_addc_u32 s{d+1}, s21, 0")
        if off_const:
            A.i(f"s_add_u32 s{d}, s{d}, {off_const}")
            A.i(f"s_addc_u32 s{d+1}, s{d+1}, 0")
        A.i(f"s_and_b32 s{d+1}, s{d+1}, 0xffff")
        A.i(f"s_mov_b32 s{d+2}, {num}")
        A.i(f"s_mov_b32 s{d+3}, 0x20000")
    fast=OPT.get('fsrd')
    if not fast:
        srd(8,WS_KVB,6,KV_HEAD)
        srd(12,WS_QB,30,QT_B)
    if mono: mono_handoff(A,name,prof)
    qm=OPT.get('qmod','')
    if fast:
        A.i("s_add_u32 s8, s20, s6")
        A.i("s_addc_u32 s9, s21, 0")
        A.i("s_and_b32 s9, s9, 0xffff")
        A.i(f"buffer_load_dwordx4 v{DMAV}, s[8:11], s22 offen {OPT.get('kvmod','')} lds".replace('  ',' '))
        A.i("s_add_u32 s12, s20, s30")
        A.i("s_addc_u32 s13, s21, 0")
        A.i("s_and_b32 s13, s13, 0xffff")
    A.i(f"buffer_load_dwordx4 {vr(QM,4)}, v{A_KM}, s[12:15], 0 offen {qm}".rstrip())
    A.i(f"buffer_load_dword v{QR}, v{T1}, s[12:15], 0 offen offset:1024 {qm}".rstrip())
    if fast: A.i("s_add_u32 s22, s22, 8192")
    else: A.i("s_lshl_b32 s22, s5, 10")
    dma=["s_mov_b32 m0, s22","s_nop 0",f"buffer_load_dwordx4 v{A_KM if mono else DMAV}, s[8:11], s22 offen {OPT.get('kvmod','')} lds".replace('  ',' '),"s_add_u32 s22, s22, 8192"]
    ordv=OPT.get('ord',0)
    for i in range(1 if fast else 0,3 if ordv<2 else 1):
        if i==1 and ordv==1: A.i("s_barrier")
        for l in dma: A.i(l)
    if OPT.get('eprio') and not mono: A.i("s_setprio 0")
    def late_dma():
        for i in range(2):
            for l in dma: A.i(l)
    xp(A,2)
    if mono:
        if not OPT.get('mnoa'):
            A.i("s_cmp_eq_u32 s96, 1")
            A.i(f"s_cbranch_scc1 {mono}_epi_qk")
            A.i("s_cmp_eq_u32 s96, 2")
            A.i(f"s_cbranch_scc1 {mono}_epi_v")
        A.label(f"{mono}_cont")
        A.i(f"v_mov_b32 v{DMAV}, v{A_KM}")
    A.i(f"s_add_u32 s24, s20, {WS_KVA}")
    A.i("s_addc_u32 s25, s21, 0")
    A.i("s_and_b32 s25, s25, 0xffff")
    A.i(f"s_mov_b32 s26, {WS_OB-WS_KVA}")
    A.i("s_mov_b32 s27, 0x20000")
    if ag:
        A.i("s_mov_b32 s36, s20")
        A.i("s_and_b32 s37, s21, 0xffff")
        A.i("s_mov_b32 s38, 0x2000000")
    else:
        A.i(f"s_add_u32 s36, s20, {WS_OA}")
        A.i("s_addc_u32 s37, s21, 0")
        A.i("s_and_b32 s37, s37, 0xffff")
        A.i(f"s_mov_b32 s38, {2048*1152}")
    A.i("s_mov_b32 s39, 0x20000")
    if fuse:
        A.i("s_mov_b32 s16, s76")
        A.i("s_and_b32 s17, s77, 0xffff")
    else:
        A.i(f"s_add_u32 s16, s20, {WS_OB}")
        A.i("s_addc_u32 s17, s21, 0")
        A.i("s_and_b32 s17, s17, 0xffff")
    A.i(f"s_mov_b32 s18, {2048*1152}")
    A.i("s_mov_b32 s19, 0x20000")
    A.i(f"v_mov_b32 v{LAQ}, v{T1}")
    v1upd(A)
    if not OPT.get('krg'): A.i(f"v_mov_b32 v{LAR}, v{A_KR}")
    if ordv==2: late_dma()
    def consts():
        if not OPT.get('krg'):
            A.i(f"v_mov_b32 v{KR+1}, 0x3f803f80")
            A.i(f"v_mov_b32 v{KRB+1}, 0x3f803f80")
        A.i(f"v_mov_b32 v{QR+1}, 0")
        for r in range(16): A.i(f"v_mov_b32 v{O+r}, 0")
        for r in range(4): A.i(f"v_mov_b32 v{V1+r}, 0")
        for r in range(4): A.i(f"v_mov_b32 v{P+4+r}, 0")
    def prologue():
        A.i(f"ds_read_b128 {vr(KM,4)}, v{A_KM}"+(f" offset:{toff(0)}" if toff(0) else ""))
        if OPT.get('krg'): A.i(f"ds_read_b128 {vr(KG[0],4)}, v{A_KR}")
        else: A.i(f"ds_read_b32 v{KR}, v{A_KR}")
        A.i(f"v_mov_b32 v{QR0}, v{QR}")
        A.i(f"v_mov_b32 v{QR0+1}, 0")
        A.i("s_waitcnt lgkmcnt(0)")
        mfma16(A,S0,KM,QM,None)
        A.i(f"ds_read_b128 {vr(KM,4)}, v{A_KM} offset:{toff(1)}")
        A.i("s_nop 9")
        mfma8(A,S0,KR,QR,S0)
        if not OPT.get('krg'): A.i(f"ds_read_b32 v{KR}, v{A_KR} offset:{TILE_B}")
        A.i(f"ds_read_b128 {vr(V0,4)}, v{A_V}"+(f" offset:{toff(0)}" if toff(0) else ""))
        A.i("s_nop 9")
        max16(A,X0,S0,True)
        xhalf_max(A,X0,X0+1)
        set_bias(A,X0,X0+2)
        if OPT.get('pk'):
            for r in range(0,16,2): A.i(f"v_pk_add_f32 {vr(S0+r,2)}, {vr(S0+r,2)}, {vr(X0,2)} op_sel_hi:[1,0] neg_lo:[0,1] neg_hi:[0,1]")
        else:
            for r in range(16): A.i(f"v_sub_f32 v{S0+r}, v{S0+r}, v{X0}")
        A.i("s_waitcnt lgkmcnt(0)")
    LCNT=163832
    def notP(label):
        A.i("s_cmp_ge_u32 s5, 4")
        A.i(f"s_cbranch_scc{0 if OPT.get('swap') else 1} {label}")
    us=OPT.get('us')
    if us:
        A.i("s_and_b32 s98, s5, 3")
        A.i("s_lshl_b32 s29, s4, 3")
        A.i("s_add_u32 s29, s29, s98")
        A.i("s_add_u32 s28, s29, 4")
        A.i(f"v_bfe_u32 v{T0}, v{V_LANE}, 4, 1")
        A.i(f"v_lshlrev_b32 v{T0}, 14, v{T0}")
        A.i(f"v_lshrrev_b32 v{T2}, 5, v{V_LANE}")
        A.i(f"v_lshl_add_u32 v{T0}, v{T2}, 8, v{T0}")
        A.i(f"v_and_b32 v{T2}, 15, v{V_LANE}")
        A.i(f"v_lshl_add_u32 v{VOA}, v{T2}, 4, v{T0}")
        if ordv==3: late_dma()
        notP(f"{name}_nobias")
        make_bias(A)
        A.i(f"v_mov_b32 v{X0}, {LCNT}")
        A.i(f"v_mov_b32 v{X0+2}, 0")
        A.i(f"v_mov_b32 v{X0+3}, 0")
        A.i(f"ds_write_b64 v{X0}, {vr(X0+2,2)}")
        A.label(f"{name}_nobias")
    elif ag:
        A.i("s_and_b32 s98, s5, 3")
        notP(f"{name}_young")
        if OPT.get('swap'):
            A.i("s_setprio 1")
            A.i("s_sub_u32 s22, s22, 4096")
        A.i("s_lshl_b32 s29, s4, 3")
        A.i("s_add_u32 s29, s29, s98")
        def kd(i0,i1):
            for i in range(i0,i1):
                for q in range(2):
                    A.i(f"s_add_u32 s30, s22, {(i-3)*8192+q*4096}")
                    A.i("s_mov_b32 m0, s30")
                    A.i("s_nop 0")
                    A.i(f"buffer_load_dwordx4 v{DMAV}, s[8:11], s30 offen {OPT.get('kvmod','')} lds".replace('  ',' '))
            return 2*(i1-i0)
        make_bias(A)
        A.i(f"v_bfe_u32 v{T0}, v{V_LANE}, 4, 1")
        A.i(f"v_lshlrev_b32 v{T0}, 14, v{T0}")
        A.i(f"v_lshrrev_b32 v{T2}, 5, v{V_LANE}")
        A.i(f"v_lshl_add_u32 v{T0}, v{T2}, 8, v{T0}")
        A.i(f"v_and_b32 v{T2}, 15, v{V_LANE}")
        A.i(f"v_lshl_add_u32 v{VOA}, v{T2}, 4, v{T0}")
        A.i("s_add_u32 s28, s29, 4")
        A.i(f"v_mov_b32 v{X0}, {LCNT}")
        A.i(f"v_mov_b32 v{X0+1}, 0")
        if fuse:
            A.i(f"v_mov_b32 v{X0+2}, 0")
            A.i(f"v_mov_b32 v{X0+3}, 0")
            A.i(f"ds_write_b64 v{X0}, {vr(X0+2,2)}")
        else: A.i(f"ds_write_b32 v{X0}, v{X0+1}")
        lo=OPT.get('llo',1)
        if lo>=1: local_loads(A,LA,28,0)
        if lo>=2: local_loads(A,LB,29,1)
        A.i(f"s_waitcnt vmcnt({2+9*lo}) lgkmcnt(0)")
        A.i("s_barrier")
        stamp(A,1,prof)
        if lo<1: local_loads(A,LA,28,0)
        if lo<2: local_loads(A,LB,29,1)
        A.i("s_waitcnt vmcnt(18)")
        A.i("s_barrier")
        xs(A,0)
        i1=OPT.get('dsp',12)
        nA=kd(3,8)
        A.i(f"s_waitcnt vmcnt({9+nA})")
        xs(A,1)
        def mid2():
            xs(A,2)
            n=kd(8,i1)
            A.i(f"s_waitcnt vmcnt({n})")
            A.i("s_barrier")
            xs(A,3)
        local_attn(A,LA,28,mid2)
        xs(A,4)
        nB=kd(i1,19)
        A.i("s_cmp_lg_u32 s29, 0")
        A.i(f"s_cbranch_scc1 {name}_hasprev")
        for r in range(8): A.i(f"v_mov_b32 v{BIAS1+r}, v{LNEG}")
        A.label(f"{name}_hasprev")
        b3=OPT.get('b3pos',0)
        def mid3():
            xs(A,5)
            A.i("s_waitcnt vmcnt(0)")
            A.i("s_barrier")
            xs(A,6)
        if b3==0:
            local_attn(A,LB,29,mid3)
        else:
            local_attn(A,LB,29)
            if b3==1:
                A.i("s_waitcnt vmcnt(2)")
                A.i("s_barrier")
        stamp(A,2,prof)
        consts()
        prologue()
        if b3==2:
            A.i("s_waitcnt vmcnt(2)")
            A.i("s_barrier")
        stamp(A,3,prof)
        A.i("s_mov_b32 s66, 1")
        A.i("s_mov_b32 s23, 0")
        A.i("s_mov_b32 s65, 99")
        A.i(f"s_branch {name}_loop")
        A.label(f"{name}_young")
    else:
        make_bias(A)
    if ordv==4: late_dma()
    consts()
    if ordv==5: late_dma()
    xp(A,3)
    if mono: mono_wait(A,name,2,'a')
    else: A.i("s_waitcnt vmcnt(2)" if OPT.get('sw1') else "s_waitcnt vmcnt(0)")
    xp(A,4)
    A.i("s_barrier")
    xp(A,5)
    stamp(A,1,prof)
    prologue()
    if OPT.get('sw1'):
        if mono: mono_wait(A,name,0,'b')
        else: A.i("s_waitcnt vmcnt(0)")
        A.i("s_barrier")
    stamp(A,2,prof)
    bal=OPT.get('bal',0)
    pr=OPT.get('prio',0)
    if bal or pr or OPT.get('prl'):
        A.i("s_cmp_ge_u32 s5, 4")
        A.i("s_cselect_b64 vcc, -1, 0")
    cnt=[0]
    prl=str(OPT.get('prl',''))
    itn=[0]
    def iteration(with_dma=False,hooks=None):
        pr=OPT.get('prio',0)
        if prl: pr=int(prl[itn[0]])
        itn[0]+=1
        _it[0]=itn[0]
        for tau in range(8):
            if bal in (1,2) and tau==0:
                cnt[0]+=1
                A.i(f"s_cbranch_vccz {name}_pr{cnt[0]}")
                A.i("s_setprio 1")
                A.label(f"{name}_pr{cnt[0]}")
            if pr and tau==0:
                cnt[0]+=1
                A.i(f"s_cbranch_vccz {name}_pr{cnt[0]}")
                A.i("s_setprio 1")
                A.label(f"{name}_pr{cnt[0]}")
            yp=OPT.get('yp')
            if yp and itn[0]>=OPT.get('ypfrom',1):
                a,b=yp//10,yp%10
                if tau==a:
                    cnt[0]+=1
                    A.i("s_cmp_ge_u32 s5, 4")
                    A.i(f"s_cbranch_scc0 {name}_yp{cnt[0]}")
                    A.i("s_setprio 1")
                    A.label(f"{name}_yp{cnt[0]}")
                if tau==b: A.i("s_setprio 0")
            if pr and pr<8 and tau==pr: A.i("s_setprio 0")
            if bal==1 and tau==4: A.i("s_setprio 0")
            if bal==2 and tau==5: A.i("s_setprio 0")
            if bal==3 and tau in (0,4):
                cnt[0]+=1
                A.i(f"s_cbranch_vccz {name}_pr{cnt[0]}")
                A.i("s_setprio 1")
                A.label(f"{name}_pr{cnt[0]}")
            if bal==3 and tau in (2,6): A.i("s_setprio 0")
            step(A,tau,S0 if tau%2==0 else S1, S1 if tau%2==0 else S0, dma if with_dma else None, hooks[tau] if hooks else None)
        if OPT.get('yp') and OPT['yp']%10==8 and OPT.get('ypr8',1): A.i("s_setprio 0")
        for a in (A_KM,A_KR,A_V):
            A.i(f"v_add_u32 v{a}, {8*TILE_B}, v{a}")
        v1upd(A)
        if OPT.get('itst') and itn[0]<=7:
            A.i(f"s_memtime s[{84+2*(itn[0]-1)}:{85+2*(itn[0]-1)}]")
    def dma_piece(sreg,adv):
        L=[f"s_mov_b32 m0, s{sreg}","s_nop 0",f"buffer_load_dwordx4 v{DMAV}, s[8:11], s{sreg} offen {OPT.get('kvmod','')} lds".replace('  ',' ')]
        if adv: L.append("s_add_u32 s22, s22, 8192")
        return L
    if us:
        d0=[int(c) for c in str(OPT.get('d0',11111111))]
        n0=sum(d0); assert n0>=8
        hk=[[[] for k in range(4)] for t in range(8)]
        dw=OPT.get('dw','a')
        if dw=='a':
            for t in range(8):
                for q in range(d0[t]): hk[t][[3,1,2,0][q]]+=dma_piece(22,True)
        else:
            sk=["s_cmp_ge_u32 s5, 4"]; n=0
            for t in range(8):
                for q in range(d0[t]):
                    for h in range(2):
                        n+=1; lab=f"{name}_dk{n}"
                        body=([f"s_add_u32 s30, s22, {4096 if dw=='o' else -4096}"]+dma_piece(30,False)) if h==0 else dma_piece(22,True)
                        hk[t][([1,3] if d0[t]==1 else [0,1,2,3])[2*q+h]]+=sk+[f"s_cbranch_scc{1 if dw=='o' else 0} {lab}"]+body+[lab+":"]
        iteration(False,hk)
        xs(A,0)
        if mono:
            assert dw=='o'
            A.i("s_cmp_ge_u32 s5, 4")
            A.i(f"s_cbranch_scc0 {name}_nodrain")
            A.i("s_waitcnt vmcnt(0)")
            A.label(f"{name}_nodrain")
        A.i(f"s_waitcnt vmcnt({n0-5 if dw=='a' else 2*(n0-5)})")
        A.i("s_barrier")
        xs(A,1)
        notP(f"{name}_young")
        if mono and not OPT.get('mnoa'):
            mono_head_regs(A,X0,X0+1,WS_FLAGA,True,X0+2)
            mono_spin(A,f"{name}_as",f"buffer_load_dword v{X0+2}, v{X0}, s[36:39], 0 offen sc1",X0+2,f"v{X0+1}")
        pa,la=local_loads_l(LA,28,80,81,82)
        pb,lb=local_loads_l(LB,29,83,84,67)
        for l in pa+pb: A.i(l)
        hk=[[[] for k in range(4)] for t in range(8)]
        alp=OPT.get('alp',3)
        for n,l in enumerate(la+lb): hk[n//alp][[0,1,3,2][n%alp]].append(l)
        iteration(False,hk)
        xs(A,2)
        A.i("s_waitcnt vmcnt(9)")
        xs(A,3)
        local_attn_mid(A,LA,28)
        xs(A,4)
        A.i("s_cmp_lg_u32 s29, 0")
        A.i(f"s_cbranch_scc1 {name}_hasprev")
        for r in range(8): A.i(f"v_mov_b32 v{BIAS1+r}, v{LNEG}")
        A.label(f"{name}_hasprev")
        A.i("s_waitcnt vmcnt(2)")
        local_attn_mid(A,LB,29)
        xs(A,5)
        if OPT.get('sw2'):
            A.i("s_lshr_b32 s75, s2, 3")
            A.i("s_and_b32 s75, s75, 3")
            A.i("s_mul_i32 s6, s75, 9")
            A.i("s_lshl_b32 s72, s5, 1")
            A.i("s_add_u32 s6, s6, s72")
            A.i(f"s_mul_i32 s72, s6, {18*1024}")
            A.i(f"s_add_u32 s72, s72, {WS_WOTB}")
            wl=[[f"s_add_u32 s73, s72, {(ci*18+st)*1024}",f"buffer_load_dwordx4 {vr(WPRE(ci,st),4)}, v{DMAV}, s[36:39], s73 offen"] for ci in range(2) for st in range(17)]
            def whooks(L):
                hk=[[[] for k in range(4)] for t in range(8)]
                for n,g in enumerate(L):
                    u=n*16//len(L)
                    hk[u//2][[1,3][u%2]]+=g
                return hk
            iteration(False,whooks(wl[:17]))
            A.i("s_waitcnt vmcnt(17)")
            xs(A,6)
            A.i("s_barrier")
            stamp(A,3,prof)
            A.i("s_cmp_eq_u32 s98, 3")
            A.i(f"s_cbranch_scc0 {name}_nosig")
            A.i(f"v_mov_b32 v{X0+1}, 1")
            A.i("s_lshl_b32 s30, s4, 8")
            A.i(f"s_add_u32 s30, s30, {WS_FLAG}")
            A.i("s_mov_b64 exec, 1")
            A.i(f"buffer_atomic_add v{X0+1}, off, s[36:39], s30 sc1")
            A.i("s_mov_b64 exec, -1")
            A.label(f"{name}_nosig")
            if OPT.get('pfwot',1): touch(A,36,WS_WOT,PFJ_O)
            A.i("s_and_b32 s74, s2, 7")
            A.i("s_lshl_b32 s74, s74, 3")
            A.i("s_lshr_b32 s6, s2, 5")
            A.i("s_add_u32 s74, s74, s6")
            A.i("s_lshl_b32 s6, s74, 7")
            A.i(f"s_add_u32 s6, s6, {WS_G}")
            A.i(f"v_and_b32 v{T0}, 15, v{V_LANE}")
            A.i(f"v_lshlrev_b32 v{T0}, 2, v{T0}")
            A.i(f"buffer_load_dword v{EGO}, v{T0}, s[36:39], s6 offen")
            A.i(f"buffer_load_dword v{EGO+1}, v{T0}, s[36:39], s6 offen offset:64")
            iteration(False,whooks(wl[17:]))
            A.i("s_mov_b32 s66, 0")
            A.i("s_mov_b32 s23, 2")
        else:
            A.i("s_mov_b32 s66, 1")
            A.i("s_mov_b32 s23, 0")
        A.i("s_mov_b32 s65, 99")
        A.i(f"s_branch {name}_loop")
        A.label(f"{name}_young")
        if mono:
            A.i("s_cmp_eq_u32 s5, 4")
            A.i(f"s_cbranch_scc0 {name}_noaflag")
            A.i("s_cmp_eq_u32 s67, 1")
            A.i(f"s_cbranch_scc0 {name}_noaflag")
            mono_flag(A,36,WS_FLAGA-WS_FLAGB)
            A.label(f"{name}_noaflag")
        if OPT.get('daf')==6:
            A.i("s_and_b32 s80, s2, 7")
            A.i("s_lshl_b32 s80, s80, 3")
            A.i("s_lshr_b32 s6, s2, 5")
            A.i("s_add_u32 s80, s80, s6")
            A.i("s_lshl_b32 s67, s80, 12")
            A.i("s_lshl_b32 s80, s80, 15")
            A.i("s_lshr_b32 s6, s98, 1")
            A.i("s_lshl_b32 s6, s6, 14")
            A.i("s_add_u32 s80, s80, s6")
            A.i("s_and_b32 s6, s98, 1")
            A.i("s_lshl_b32 s6, s6, 11")
            A.i("s_add_u32 s80, s80, s6")
            A.i(f"s_add_u32 s80, s80, {WS_OB}")
            for q in range(1,4): A.i(f"s_add_u32 s{80+q}, s80, {4096*q}")
            A.i("s_lshl_b32 s6, s98, 10")
            A.i("s_add_u32 s67, s67, s6")
            A.i(f"s_add_u32 s67, s67, {WS_OBR}")
        rows=list(range(3+n0,19))
        if dw=='o': A.i(f"s_add_u32 s22, s22, {n0*8192}")
        hk=[[[] for k in range(4)] for t in range(8)]
        for n,r in enumerate(rows):
            t=n*8//len(rows) if len(rows)>8 else n
            hk[t][1]+=["s_sub_u32 s30, s22, 4096"]+dma_piece(30,r==18)
            if r<18: hk[t][3]+=dma_piece(22,True)
        iteration(False,hk)
        xs(A,2)
        A.i("s_mov_b32 s66, 5")
        A.i("s_mov_b32 s23, 0")
        A.i("s_mov_b32 s65, 99")
    elif ag:
        iteration()
        xs(A,0)
        A.i("s_barrier")
        xs(A,2)
        iteration()
        xs(A,3)
        if OPT.get('b3y',2)==3: iteration()
        xs(A,4)
        A.i("s_barrier")
        xs(A,6)
    else:
        iteration(True)
        xs(A,0)
        A.i("s_waitcnt vmcnt(3)")
        xs(A,1)
        A.i("s_barrier")
        xs(A,2)
        iteration(True)
        xs(A,3)
        iteration()
        xs(A,4)
        A.i("s_waitcnt vmcnt(0)")
        xs(A,5)
        A.i("s_barrier")
        xs(A,6)
    if prof and not us: A.i("s_waitcnt lgkmcnt(0)")
    if not us: stamp(A,3,prof)
    if bal and OPT.get('pfwo'):
        A.i("s_cmp_ge_u32 s5, 4")
        A.i(f"s_cbranch_scc1 {name}_nopf")
        A.i("s_mov_b32 s29, s7")
        prefetch_wo(A)
        A.i("s_mov_b32 s7, s29")
        A.label(f"{name}_nopf")
    if OPT.get('itst'):
        for _ in range(4): iteration()
    else:
        if not us: A.i(f"s_mov_b32 s23, {4 if (ag and OPT.get('b3y',2)==2) else 3}")
        if ag and not us:
            A.i("s_mov_b32 s66, 0")
            A.i(f"s_mov_b32 s65, {OPT.get('ypr',99)}")
        A.label(f"{name}_loop")
        if ag and OPT.get('ypr',99)!=99:
            A.i("s_cmp_eq_u32 s23, s65")
            A.i(f"s_cbranch_scc0 {name}_nopr")
            A.i("s_setprio 1")
            A.label(f"{name}_nopr")
        iteration()
        A.i("s_sub_u32 s23, s23, 1")
        A.i(f"s_cbranch_scc0 {name}_loop")
    if us:
        agit=OPT.get('agit',4)
        A.i("s_cmp_eq_u32 s66, 0")
        A.i(f"s_cbranch_scc1 {name}_last")
        A.i("s_cmp_eq_u32 s66, 3")
        A.i(f"s_cbranch_scc1 {name}_ph3")
        A.i("s_waitcnt vmcnt(0)")
        xs(A,6)
        A.i("s_barrier")
        stamp(A,3,prof)
        if OPT.get('sw2'):
            A.i("s_mov_b32 s66, 3")
            A.i(f"s_mov_b32 s23, {4-agit}")
            A.i(f"s_branch {name}_loop")
        else:
          A.i("s_cmp_eq_u32 s66, 1")
          A.i(f"s_cbranch_scc1 {name}_osig")
          A.i("s_mov_b32 s66, 0")
          A.i("s_mov_b32 s23, 3")
          A.i(f"s_branch {name}_loop")
        if not OPT.get('sw2'):
         for _ in range(1):
          A.label(f"{name}_osig")
          A.i("s_cmp_eq_u32 s98, 3")
          A.i(f"s_cbranch_scc0 {name}_nosig")
          A.i(f"v_mov_b32 v{X0+1}, 1")
          A.i("s_lshl_b32 s30, s4, 8")
          A.i(f"s_add_u32 s30, s30, {WS_FLAG}")
          A.i("s_mov_b64 exec, 1")
          A.i(f"buffer_atomic_add v{X0+1}, off, s[36:39], s30 sc1")
          A.i("s_mov_b64 exec, -1")
          A.label(f"{name}_nosig")
          if OPT.get('pfwot',1): touch(A,36,WS_WOT,PFJ)
          A.i("s_mov_b32 s66, 3")
          A.i(f"s_mov_b32 s23, {4-agit}")
          A.i(f"s_branch {name}_loop")
        A.label(f"{name}_ph3")
        A.i("s_mov_b32 s66, 0")
        if agit>=2: A.i(f"s_mov_b32 s23, {agit-2}")
        A.i("s_cmp_eq_u32 s98, 3")
        A.i(f"s_cbranch_scc1 {name}_{['fpv','last'][agit] if agit<2 else 'loop'}")
        A.i("s_and_b32 s30, s2, 7")
        A.i("s_lshl_b32 s30, s30, 8")
        A.i(f"s_add_u32 s30, s30, {WS_FLAG}")
        A.i("s_mov_b32 s6, 0")
        spin(A,f"{name}_aspin",POLL,30,31)
        A.i("s_mov_b32 s66, 4")
        ag_setup(A); ag_bases(A)
        pre,hooks,tail=ag_sched(8*agit)
        emit(A,pre)
        for it in range(agit): iteration(False,hooks[8*it:8*it+8])
        A.i(f"s_branch {name}_fpv")
        A.label(f"{name}_last")
        if OPT.get('tb')==2:
            A.i("s_cmp_ge_u32 s5, 4")
            A.i(f"s_cbranch_scc0 {name}_noew")
            A.i("s_lshr_b32 s75, s2, 3")
            A.i("s_and_b32 s75, s75, 3")
            A.i("s_mul_i32 s6, s75, 9")
            A.i("s_add_u32 s6, s6, 8")
            A.i(f"s_mul_i32 s30, s6, {18*1024}")
            A.i("s_cmp_ge_u32 s5, 6")
            A.i("s_cselect_b32 s6, 8192, 0")
            A.i("s_add_u32 s30, s30, s6")
            A.i(f"s_add_u32 s30, s30, {WS_WOTB}")
            for k in range(10):
                if k and k%4==0: A.i("s_add_u32 s30, s30, 4096")
                A.i(f"buffer_load_dwordx4 {vr(EW+4*k,4)}, v{DMAV}, s[36:39], s30 offen offset:{(k%4)*1024}")
            A.i("s_and_b32 s74, s2, 7")
            A.i("s_lshl_b32 s74, s74, 3")
            A.i("s_lshr_b32 s6, s2, 5")
            A.i("s_add_u32 s74, s74, s6")
            A.i("s_lshl_b32 s6, s74, 1")
            A.i("s_and_b32 s30, s5, 1")
            A.i("s_add_u32 s6, s6, s30")
            A.i("s_lshl_b32 s6, s6, 6")
            A.i(f"s_add_u32 s30, s6, {WS_G}")
            A.i(f"v_and_b32 v{EG+1}, 15, v{V_LANE}")
            A.i(f"v_lshlrev_b32 v{EG+1}, 2, v{EG+1}")
            A.i(f"buffer_load_dword v{EG}, v{EG+1}, s[36:39], s30 offen")
            A.label(f"{name}_noew")
    elif ag:
        A.i("s_cmp_eq_u32 s66, 0")
        A.i(f"s_cbranch_scc1 {name}_last")
        A.i("s_cmp_eq_u32 s66, 1")
        A.i(f"s_cbranch_scc0 {name}_ph2")
        A.i("s_waitcnt vmcnt(0)")
        A.i(f"v_mov_b32 v{X0}, {LCNT}")
        A.i(f"v_mov_b32 v{X0+1}, 1")
        A.i("s_mov_b64 exec, 1")
        A.i(f"ds_add_rtn_u32 v{X0+2}, v{X0}, v{X0+1}")
        A.i("s_waitcnt lgkmcnt(0)")
        A.i(f"v_readfirstlane_b32 s6, v{X0+2}")
        A.i("s_lshl_b32 s30, s4, 8")
        A.i(f"s_add_u32 s30, s30, {WS_FLAG}")
        A.i("s_cmp_eq_u32 s6, 3")
        A.i(f"s_cbranch_scc0 {name}_nosig")
        A.i(f"buffer_atomic_add v{X0+1}, off, s[36:39], s30 sc1")
        A.label(f"{name}_nosig")
        A.i("s_mov_b64 exec, -1")
        if OPT.get('pfwot',1): touch(A,36,WS_WOT,PFJ)
        t2=OPT.get('t2')
        A.i("s_mov_b32 s66, 2")
        A.i(f"s_mov_b32 s23, {1 if t2 else 4}")
        A.i(f"s_branch {name}_loop")
        A.label(f"{name}_ph2")
        A.i("s_cmp_eq_u32 s66, 2")
        A.i(f"s_cbranch_scc0 {name}_ph3")
        A.i("s_and_b32 s30, s2, 7")
        A.i("s_lshl_b32 s30, s30, 8")
        A.i(f"s_add_u32 s30, s30, {WS_FLAG}")
        A.i(f"buffer_load_dword v{POLL}, off, s[36:39], s30 sc1")
        A.i("s_mov_b32 s66, 3")
        A.i("s_mov_b32 s23, 0")
        A.i(f"s_branch {name}_loop")
        A.label(f"{name}_ph3")
        A.i("s_waitcnt vmcnt(0)")
        A.i(f"v_readfirstlane_b32 s6, v{POLL}")
        A.i("s_mov_b32 s66, 0")
        if t2:
            A.i("s_mov_b32 s23, 2")
            A.i("s_cmp_eq_u32 s98, 3")
            A.i(f"s_cbranch_scc1 {name}_loop")
            if fuse:
                A.i("s_and_b32 s30, s2, 7")
                A.i("s_lshl_b32 s30, s30, 8")
                A.i(f"s_add_u32 s30, s30, {WS_FLAG}")
                spin(A,f"{name}_aspin",POLL,30,31)
            else:
                A.i(f"s_cmp_eq_u32 s6, {32 if not OPT.get('agskip') else 33}")
                A.i(f"s_cbranch_scc0 {name}_loop")
            A.i("s_mov_b32 s66, 4")
            ag_setup(A); ag_bases(A)
            pre,hooks,tail=ag_sched()
            emit(A,pre)
            for it in range(4): iteration(False,hooks[8*it:8*it+8])
            A.i(f"s_branch {name}_fpv")
        else:
            A.i("s_cmp_eq_u32 s98, 3")
            A.i(f"s_cbranch_scc1 {name}_last")
            A.i(f"s_cmp_eq_u32 s6, {32 if not OPT.get('agskip') else 33}")
            A.i(f"s_cbranch_scc0 {name}_last")
            A.i("s_mov_b32 s66, 4")
            ag_setup(A)
            emit(A,ag_loads(AGB[0],GB0)[0])
        A.label(f"{name}_last")
    if ag: pass
    elif bal:
        local_loads(A,LB,7,1)
    else:
        A.i("s_cmp_ge_u32 s5, 4")
        A.i(f"s_cbranch_scc1 {name}_noA")
        A.i("s_add_u32 s28, s7, 4")
        local_loads(A,LA,28,0)
        local_loads(A,LB,7,1)
        A.label(f"{name}_noA")
    iteration()
    A.label(f"{name}_fpv")
    A.i("s_waitcnt lgkmcnt(0)")
    stamp(A,4,prof)
    mfma16(A,O,V1,P+4,O)
    A.i("s_nop 11")
    A.label(f"{name}_check")
    A.i(f"v_mov_b32 v{X0}, v{O+10}")
    A.i(f"v_mov_b32 v{X0+1}, v{O+10}")
    A.i(f"v_mul_f32 v{X0+2}, 0, v{O}")
    A.i(f"v_fma_f32 v{X0+2}, v{O+1}, 0, v{X0+2}")
    A.i(f"v_permlane32_swap_b32 v{X0}, v{X0+1}")
    for r in range(2,10):
        A.i(f"v_fma_f32 v{X0+2}, v{O+r}, 0, v{X0+2}")
    A.i(f"v_add_f32 v{X0+2}, v{X0+2}, v{X0}")
    A.i(f"v_mov_b32 v{X0+3}, 0x5f800000")
    A.i(f"v_cmp_nlt_f32 vcc, v{X0+2}, v{X0+3}")
    A.i("s_nop 4")
    A.i(f"s_cbranch_vccnz {name}_slow")
    if OPT.get('fslow'): A.i(f"s_branch {name}_slow")
    A.label(f"{name}_fin")
    if fuse and OPT.get('daf')==1:
        A.i("s_cmp_ge_u32 s5, 4")
        A.i(f"s_cbranch_scc0 {name}_nogo")
        A.i(f"v_mov_b32 v{X0+6}, {LCNT2}")
        A.i(f"v_mov_b32 v{X0+7}, 1")
        A.i("s_mov_b64 exec, 1")
        A.i(f"ds_add_u32 v{X0+6}, v{X0+7}")
        A.i("s_mov_b64 exec, -1")
        A.label(f"{name}_nogo")
    if fuse: finish_frag_b(A,P)
    else: finish_store(A,16,P,7,3,OPT.get("obmod",""))
    if not OPT.get('xst'): stamp(A,6,prof)
    if fuse and OPT.get('daf')==2:
        A.i("s_cmp_eq_u32 s66, 4")
        A.i(f"s_cbranch_scc1 {name}_nogo")
        A.i("s_cmp_ge_u32 s5, 4")
        A.i("s_cselect_b32 s6, 1, 16")
        A.i(f"v_mov_b32 v{X0+6}, {LCNT2}")
        A.i(f"v_mov_b32 v{X0+7}, s6")
        A.i("s_mov_b64 exec, 1")
        A.i(f"ds_add_u32 v{X0+6}, v{X0+7}")
        A.i("s_mov_b64 exec, -1")
        A.label(f"{name}_nogo")
    if fuse:
        A.i("s_cmp_eq_u32 s66, 4")
        A.i(f"s_cbranch_scc0 {name}_tail")
        emit(A,tail)
        A.i("s_nop 7")
        ag_epi(A)
        if OPT.get('daf') in (1,2):
            A.i(f"v_mov_b32 v{X0+6}, {LCNT2}")
            A.i(f"v_mov_b32 v{X0+7}, 16")
            A.i("s_mov_b64 exec, 1")
            A.i(f"ds_add_u32 v{X0+6}, v{X0+7}")
            A.i("s_mov_b64 exec, -1")
        A.label(f"{name}_tail")
        gen_tail(A,name,prof)
    elif ag:
        notP(f"{name}_done")
        if OPT.get('swap'): A.i("s_setprio 0")
        if OPT.get('pfwo'):
            A.i("s_and_b32 s79, s79, 0xffff")
            A.i(f"s_mov_b32 s72, s78")
            A.i(f"s_mov_b32 s73, s79")
            A.i(f"s_mov_b32 s74, {576*1152}")
            A.i("s_mov_b32 s75, 0x20000")
            touch(A,72,0,GJ+1)
        A.i("s_cmp_eq_u32 s66, 4")
        A.i(f"s_cbranch_scc0 {name}_done")
        if OPT.get('t2'):
            emit(A,tail)
            A.i("s_nop 7")
            ag_epi(A)
        else: ag_task(A,name,3+(1 if OPT.get('pfwo') else 0))
    elif bal:
        A.i("s_setprio 0")
        A.i("s_waitcnt vmcnt(3)")
    else:
        A.i("s_cmp_ge_u32 s5, 4")
        A.i(f"s_cbranch_scc1 {name}_done")
        A.i("s_waitcnt vmcnt(12)")
        local_attn(A,LA,28)
    if not ag:
        A.i("s_cmp_lg_u32 s7, 0")
        A.i(f"s_cbranch_scc1 {name}_hasprev")
        for r in range(8): A.i(f"v_mov_b32 v{BIAS1+r}, v{LNEG}")
        A.label(f"{name}_hasprev")
        if not bal: A.i("s_waitcnt vmcnt(3)")
        local_attn(A,LB,7)
        if OPT.get('pfwo') and not bal: prefetch_wo(A)
    A.label(f"{name}_done")
    if prof: A.i("s_waitcnt vmcnt(0)")
    stamp(A,5,prof)
    stamp_store(A,14 if (OPT.get('itst') or OPT.get('xst')) else (11 if fuse else 7),prof,name,0x40000)
    if prof and mono:
        A.i(f"s_sub_u32 s64, s64, 0x40000")
        A.i(f"s_subb_u32 s65, s65, 0")
        for k,r in ((0,54),(1,55),(2,56),(3,57),(14,94),(15,95))+(((4,78),) if OPT.get('mnoa') else ()):
            A.i(f"v_mov_b32 v{X0+9}, s{r}")
            A.i(f"global_store_dword v{X0+8}, v{X0+9}, s[64:65] offset:{4*k}")
        A.i("s_getreg_b32 s6, hwreg(HW_REG_XCC_ID, 0, 4)")
        A.i(f"v_mov_b32 v{X0+9}, s6")
        A.i(f"global_store_dword v{X0+8}, v{X0+9}, s[64:65] offset:{52}")
    A.label(f"{name}_end")
    A.i("s_endpgm")
    A.label(f"{name}_slow")
    A.i(f"v_subrev_u32 v{A_KM}, {64*TILE_B}, v{A_KM}")
    A.i(f"v_subrev_u32 v{A_KR}, {64*TILE_B}, v{A_KR}")
    A.i(f"v_subrev_u32 v{A_V}, {64*TILE_B}, v{A_V}")
    v1upd(A)
    if OPT.get('krg'):
        A.i(f"v_mov_b32 v{X0}, 0xff800000")
        A.i(f"v_mov_b32 v{QR}, v{QR0}")
        A.i(f"v_mov_b32 v{QR+1}, 0")
        A.i(f"v_mov_b32 v{QRO}, 0")
        A.i(f"v_mov_b32 v{QRO+1}, v{QR0}")
        A.i("s_mov_b32 s23, 16")
        A.label(f"{name}_slow_max")
        A.i(f"ds_read_b128 {vr(KG[0],4)}, v{A_KR}")
        for i in range(4):
            A.i(f"ds_read_b128 {vr(KM,4)}, v{A_KM} offset:{toff(i)}")
            A.i("s_waitcnt lgkmcnt(0)")
            mfma16(A,S0,KM,QM,None)
            A.i("s_nop 9")
            mfma8(A,S0,KG[0]+2*(i>>1),QRO if i&1 else QR,S0)
            A.i("s_nop 11")
            max16(A,X0,S0,False)
        A.i(f"v_add_u32 v{A_KM}, {GRP_B}, v{A_KM}")
        A.i(f"v_add_u32 v{A_KR}, {GRP_B}, v{A_KR}")
        A.i("s_sub_u32 s23, s23, 1")
        A.i("s_cmp_lg_u32 s23, 0")
        A.i(f"s_cbranch_scc1 {name}_slow_max")
        A.i(f"v_subrev_u32 v{A_KM}, {64*TILE_B}, v{A_KM}")
        A.i(f"v_subrev_u32 v{A_KR}, {64*TILE_B}, v{A_KR}")
        xhalf_max(A,X0,X0+1)
        set_bias(A,X0,X0+2)
        for r in range(16): A.i(f"v_mov_b32 v{O+r}, 0")
        A.i("s_mov_b32 s23, 16")
        A.label(f"{name}_slow_main")
        A.i(f"ds_read_b128 {vr(KG[0],4)}, v{A_KR}")
        for i in range(4):
            A.i(f"ds_read_b128 {vr(KM,4)}, v{A_KM} offset:{toff(i)}")
            A.i(f"ds_read_b128 {vr(V0,4)}, v{A_V} offset:{toff(i)}")
            A.i(f"ds_read_b128 {vr(V1,4)}, v{A_V} offset:{toff(i)+608}")
            A.i("s_waitcnt lgkmcnt(0)")
            mfma16(A,S0,KM,QM,None)
            A.i("s_nop 9")
            mfma8(A,S0,KG[0]+2*(i>>1),QRO if i&1 else QR,S0)
            A.i("s_nop 11")
            for r in range(16): A.i(f"v_exp_f32 v{S0+r}, v{S0+r}")
            A.i("s_nop 0")
            for r in range(8): A.i(f"v_cvt_pk_bf16_f32 v{P+r}, v{S0+2*r}, v{S0+2*r+1}")
            A.i("s_nop 1")
            mfma16(A,O,V0,P,O)
            mfma16(A,O,V1,P+4,O)
            A.i("s_nop 7")
        A.i(f"v_add_u32 v{A_KM}, {GRP_B}, v{A_KM}")
        A.i(f"v_add_u32 v{A_KR}, {GRP_B}, v{A_KR}")
        A.i(f"v_add_u32 v{A_V}, {GRP_B}, v{A_V}")
        A.i("s_sub_u32 s23, s23, 1")
        A.i("s_cmp_lg_u32 s23, 0")
        A.i(f"s_cbranch_scc1 {name}_slow_main")
    else:
        A.i(f"v_mov_b32 v{X0}, 0xff800000")
        A.i("s_mov_b32 s23, 64")
        A.label(f"{name}_slow_max")
        A.i(f"ds_read_b128 {vr(KM,4)}, v{A_KM}")
        A.i(f"ds_read_b32 v{KR}, v{A_KR}")
        A.i("s_waitcnt lgkmcnt(0)")
        mfma16(A,S0,KM,QM,None)
        A.i("s_nop 9")
        mfma8(A,S0,KR,QR0,S0)
        A.i("s_nop 11")
        max16(A,X0,S0,False)
        A.i(f"v_add_u32 v{A_KM}, {TILE_B}, v{A_KM}")
        A.i(f"v_add_u32 v{A_KR}, {TILE_B}, v{A_KR}")
        A.i("s_sub_u32 s23, s23, 1")
        A.i("s_cmp_lg_u32 s23, 0")
        A.i(f"s_cbranch_scc1 {name}_slow_max")
        A.i(f"v_subrev_u32 v{A_KM}, {64*TILE_B}, v{A_KM}")
        A.i(f"v_subrev_u32 v{A_KR}, {64*TILE_B}, v{A_KR}")
        xhalf_max(A,X0,X0+1)
        set_bias(A,X0,X0+2)
        for r in range(16): A.i(f"v_mov_b32 v{O+r}, 0")
        A.i("s_mov_b32 s23, 64")
        A.label(f"{name}_slow_main")
        A.i(f"ds_read_b128 {vr(KM,4)}, v{A_KM}")
        A.i(f"ds_read_b32 v{KR}, v{A_KR}")
        A.i(f"ds_read_b128 {vr(V0,4)}, v{A_V}")
        A.i(f"ds_read_b128 {vr(V1,4)}, {v1a(0)}")
        A.i("s_waitcnt lgkmcnt(0)")
        mfma16(A,S0,KM,QM,None)
        A.i("s_nop 9")
        mfma8(A,S0,KR,QR,S0)
        A.i("s_nop 11")
        for r in range(16): A.i(f"v_exp_f32 v{S0+r}, v{S0+r}")
        A.i("s_nop 0")
        for r in range(8): A.i(f"v_cvt_pk_bf16_f32 v{P+r}, v{S0+2*r}, v{S0+2*r+1}")
        A.i("s_nop 1")
        mfma16(A,O,V0,P,O)
        mfma16(A,O,V1,P+4,O)
        A.i(f"v_add_u32 v{A_KM}, {TILE_B}, v{A_KM}")
        A.i(f"v_add_u32 v{A_KR}, {TILE_B}, v{A_KR}")
        A.i(f"v_add_u32 v{A_V}, {TILE_B}, v{A_V}")
        v1upd(A)
        A.i("s_sub_u32 s23, s23, 1")
        A.i("s_cmp_lg_u32 s23, 0")
        A.i(f"s_cbranch_scc1 {name}_slow_main")
    A.i("s_nop 11")
    A.i(f"v_mov_b32 v{X0}, v{O+10}")
    A.i(f"v_mov_b32 v{X0+1}, v{O+10}")
    A.i("s_nop 1")
    A.i(f"v_permlane32_swap_b32 v{X0}, v{X0+1}")
    A.i("s_nop 1")
    A.i(f"s_branch {name}_fin")
    if OPT.get('cpf') or OPT.get('cend'): A.label(f"{name}_codeend")
    kernel_footer(A,OPT.get('mono') or name,NV)
```
